```python
import torch

def _softmax(x, axis=-1):
    return torch.softmax(x, dim=axis)
def _gelu(x):
    return torch.nn.functional.gelu(x, approximate="tanh")
def _silu(x):
    return torch.nn.functional.silu(x)
def _sigmoid(x):
    return torch.sigmoid(x)
def _layernorm(x, axis=-1, eps=1e-5):
    m = x.mean(dim=axis, keepdim=True)
    v = x.var(dim=axis, keepdim=True, unbiased=False)
    return (x - m) / torch.sqrt(v + eps)
def _scatter_add(tgt, idx, src, axis=0):
    return tgt.clone().index_add_(axis, idx, src)
def _segment_sum(src, seg, n):
    out = torch.zeros((n,) + src.shape[1:], dtype=src.dtype)
    return out.index_add_(0, seg, src)
def _pad(x, pw):
    flat = tuple(v for pair in reversed(pw) for v in pair)
    return torch.nn.functional.pad(x, flat)

kernel_name = 'standalone__gqa_block_cached__near_ridge'

def setup_inputs():

    _w = (lambda a: (lambda t: t.to(torch.bfloat16) if t.is_floating_point() else t)(torch.as_tensor(a)))
    B, Sq, D = 8, 240, 640
    Hq, Hkv, Sk, Dh = 32, 32, 1024, 192
    assert Hq % Hkv == 0, (Hq, Hkv)
    return {
        "x": _w((lambda *s: torch.randn(*s, dtype=torch.bfloat16) * 0.8)(B, Sq, D)),
        "k_cache": _w((lambda *s: torch.randn(*s, dtype=torch.bfloat16) * 0.8)(B, Hkv, Sk, Dh)),
        "v_cache": _w((lambda *s: torch.randn(*s, dtype=torch.bfloat16) * 0.05)(B, Hkv, Sk, Dh)),
        "wq": _w((lambda *s: torch.randn(*s, dtype=torch.bfloat16) * 0.8)(D, Hq * Dh) * (D ** -0.5)),
        "wo": _w((lambda *s: torch.randn(*s, dtype=torch.bfloat16) * 0.05)(Hq * Dh, D) * ((Hq * Dh) ** -0.5)),
    }

def reference(x, k_cache, v_cache, wq, wo):
    B, Sq, D = x.shape
    Hq, Dh = 32, 192
    Hkv = k_cache.shape[1]
    rep = Hq // Hkv
    q = (lambda x, *d: x.permute(*d))((x @ wq).reshape(B, Sq, Hq, Dh), 0, 2, 1, 3)
    k = (lambda x, n, axis: torch.repeat_interleave(x, n, dim=axis))(k_cache, rep, axis=1)
    v = (lambda x, n, axis: torch.repeat_interleave(x, n, dim=axis))(v_cache, rep, axis=1)
    scores = torch.einsum("bhqd,bhkd->bhqk", q, k) * (Dh ** -0.5)
    p = _softmax(scores, axis=-1)
    o = torch.einsum("bhqk,bhkd->bhqd", p, v)
    return (lambda x, *d: x.permute(*d))(o, 0, 2, 1, 3).reshape(B, Sq, Hq * Dh) @ wo
```

```python
from sched import *

def vr(b, n=4): return 'v[%d:%d]' % (b, b + n - 1)
def ar(b, n=4): return 'a[%d:%d]' % (b, b + n - 1)
DEP = 6
WS = DEP * 4096

def gen_k2(opt, finish):
    L = []
    a = lambda t: L.extend(I(x) for x in t.strip().split('\n'))
    opol = opt.get('k2o', ''); wpol = opt.get('k2w', '')
    a('''s_cmp_lt_u32 s2, 240
s_cbranch_scc1 K2_go
s_endpgm
K2_go:
s_load_dwordx4 s[4:7], s[0:1], 32
s_load_dwordx2 s[18:19], s[0:1], 56''')
    if opt.get('stamps2'): a('s_memrealtime s[64:65]\ns_memtime s[68:69]')
    a('''v_lshrrev_b32 v29, 6, v0
v_and_b32 v30, 63, v0
v_readfirstlane_b32 s40, v29
s_and_b32 s46, s2, 7
s_lshr_b32 s47, s2, 3''')
    if opt.get('kmap', 0) == 0:
        a('''s_mul_i32 s52, s47, 26
s_lshr_b32 s52, s52, 8
s_mul_i32 s53, s52, 10
s_sub_u32 s47, s47, s53
s_mul_i32 s46, s46, 3
s_add_u32 s46, s46, s52''')
    else:
        a('''s_mul_i32 s52, s47, 52
s_lshr_b32 s52, s52, 8
s_mul_i32 s53, s52, 5
s_sub_u32 s47, s47, s53
s_and_b32 s53, s46, 1
s_mul_i32 s53, s53, 5
s_add_u32 s47, s47, s53
s_lshr_b32 s46, s46, 1
s_mul_i32 s46, s46, 6
s_add_u32 s46, s46, s52''')
    a('''v_mul_u32_u24 v31, 49152, v29
v_lshl_add_u32 v1, v30, 4, v31
v_add_u32 v2, 196608, v1
v_add_u32 v3, 393216, v1
v_add_u32 v4, 589824, v1
v_add_u32 v5, 786432, v1
v_lshrrev_b32 v31, 3, v30
v_and_b32 v32, 6, v31
v_and_b32 v33, 7, v30
v_xor_b32 v32, v32, v33
v_mul_u32_u24 v33, 1536, v29
v_add_u32 v31, v31, v33
v_mul_u32_u24 v31, 1280, v31
v_lshl_add_u32 v6, v32, 4, v31
v_add_u32 v7, 9216, v6
v_add_u32 v8, 18432, v6
v_add_u32 v9, 27648, v6
s_mul_i32 s41, s40, %d
s_mul_i32 s52, s46, 983040
s_lshl_b32 s53, s47, 7
s_mul_i32 s54, s46, 102400
s_add_u32 s54, s54, s53
s_sub_u32 s22, 23592960, s52
s_mov_b32 s23, 0x00020000
s_sub_u32 s26, 7864320, s53
s_mov_b32 s27, 0x00020000
s_sub_u32 s30, 2457600, s54
s_mov_b32 s31, 0x00020000
s_mov_b32 s42, 0
s_mov_b32 s43, 0
s_mov_b32 s44, 4096
s_waitcnt lgkmcnt(0)
s_add_u32 s20, s18, s52
s_addc_u32 s21, s19, 0
s_add_u32 s24, s4, s53
s_addc_u32 s25, s5, 0
s_add_u32 s28, s6, s54
s_addc_u32 s29, s7, 0''' % WS)
    mid = '''v_lshrrev_b32 v31, 2, v30
v_and_b32 v32, 6, v31
v_bfe_u32 v33, v30, 1, 1
v_xor_b32 v32, v32, v33
v_lshlrev_b32 v32, 4, v32
v_lshl_add_u32 v32, v31, 7, v32
v_and_b32 v33, 1, v30
v_lshl_add_u32 v32, v33, 3, v32
v_add_u32 v10, s41, v32
v_xor_b32 v11, 32, v10
v_xor_b32 v12, 64, v10
v_xor_b32 v13, 96, v10
v_lshlrev_b32 v31, 4, v30
v_add_u32 v14, s41, v31
v_lshl_add_u32 v15, v29, 10, v31
v_and_b32 v31, 15, v30
v_mul_u32_u24 v31, 1280, v31
v_lshrrev_b32 v32, 4, v30
v_lshl_add_u32 v31, v32, 3, v31
v_lshl_add_u32 v16, v29, 5, v31
s_mov_b32 s45, 7'''
    OB = 128
    AF = 32
    def ofrag(u, qt): return OB + u * 20 + qt * 4
    def afrag(p, nt): return AF + p * 16 + nt * 4
    acc = lambda qt, nt: (qt * 4 + nt) * 4
    cnt = [0]
    W = {}; O = {}; T = {}
    def ld_w(k):
        u = k % DEP
        reg = (u * 4096, u * 4096 + 4096, False, 'w%d' % k, 0)
        pre = [I('s_add_u32 m0, s41, %d' % (u * 4096))]
        W[k] = [I('buffer_load_dwordx4 v%d, s[24:27], s42 offen offset:%d%s lds' % (6 + t, 1024 * t, wpol), lds=reg) for t in range(4)]
        post = [I('s_add_u32 s42, s42, 40960')]
        return pre, W[k], post
    def ld_o(k, qt):
        u = k % DEP
        x = I('buffer_load_dwordx4 %s, v%d, s[20:23], s%d offen offset:%d%s' % (vr(ofrag(u, qt)), 1 + qt, 43 + (u >> 2), (u & 3) * 1024, opol))
        O.setdefault(k, []).append(x)
        return x
    def rd_t(k):
        u = k % DEP
        reg = (u * 4096, u * 4096 + 4096, False, 'w%d' % k, 0)
        T[k] = [I('ds_read_b64_tr_b16 %s, v%d offset:%d' % (vr(afrag(k & 1, nt) + 2 * hh, 2), 10 + nt, u * 4096 + 2048 * hh), lds=reg) for nt in range(4) for hh in range(2)]
        return T[k]
    NK = 48
    for k in range(DEP):
        p, w, q = ld_w(k); L += p
        for qt in range(5):
            if qt < 4: L.append(w[qt])
            L.append(ld_o(k, qt))
        L += q
        if k == 0: a(mid)
    a('s_add_u32 s43, s43, 6144\ns_add_u32 s44, s44, 6144')
    L.append(WAIT(W[0])); L += rd_t(0)
    iters = []
    for it in range(NK // DEP):
        B = []
        for u in range(DEP):
            k = it * DEP + u
            nxt = k + DEP < NK
            B.append(WAIT(O[k] + (W[k + 1] if k + 1 < NK else []) + T[k]))
            fill = []
            if nxt:
                p, w, q = ld_w(k + DEP)
                fill = [p + [w[0]], [w[1]], [w[2]], [w[3]] + q]
            tr = rd_t(k + 1) if k + 1 < NK else []
            m = 0
            for qt in range(5):
                for nt in range(4):
                    d = ar(acc(qt, nt))
                    B.append(I('v_mfma_f32_16x16x32_bf16 %s, %s, %s, %s' % (d, vr(afrag(k & 1, nt)), vr(ofrag(u, qt)), d)))
                    if nt == 0 and qt < 4 and fill: B += fill[qt]
                    if nt in (1, 2) and qt < 4 and tr: B.append(tr[2 * qt + nt - 1])
                    if nt == 3 and nxt: B.append(ld_o(k + DEP, qt))
            if u == DEP - 1 and nxt: B += [I('s_add_u32 s43, s43, 6144'), I('s_add_u32 s44, s44, 6144')]
        iters.append(B)
    zero = [I('v_accvgpr_write_b32 a%d, 0' % i) for i in range(80)]
    wi = [i for i, x in enumerate(L) if x.op == 'WAIT'][0]
    L[wi:wi] = zero
    E = []
    e = lambda t: E.extend(I(x) for x in t.strip().split('\n'))
    wr = [I('ds_write_b128 v14, %s offset:%d' % (ar(4 * t), 1024 * t), lds=(0, 4 * WS, True, 'red', None)) for t in range(20)]
    E.append(I('s_nop 7'))
    E += wr
    E.append(WAIT(wr)); e('s_barrier')
    rd = {}
    for qt in range(5):
        for p in range(4):
            rd[qt, p] = I('ds_read_b128 %s, v%d offset:%d' % (vr(OB + qt * 16 + p * 4), 15 if p < 2 else 17, (p & 1) * WS + qt * 4096), lds=(0, 4 * WS, True, 'red', None))
    E.insert(0, I('v_add_u32 v17, %d, v15' % (2 * WS)))
    for qt in range(3):
        for p in range(4): E.append(rd[qt, p])
    for qt in range(5):
        b = OB + qt * 16
        E.append(WAIT([rd[qt, p] for p in range(4)]))
        if qt + 3 < 5:
            for p in range(4): E.append(rd[qt + 3, p])
        for r in range(4): e('v_add_f32 v%d, v%d, v%d\nv_add_f32 v%d, v%d, v%d' % (b + r, b + r, b + 4 + r, b + 8 + r, b + 8 + r, b + 12 + r))
        for r in range(4): e('v_add_f32 v%d, v%d, v%d' % (b + r, b + r, b + 8 + r))
        for h in range(2): e('v_cvt_pk_bf16_f32 v%d, v%d, v%d' % (b + h, b + 2 * h, b + 2 * h + 1))
        e('s_mov_b32 s52, %d' % (qt * 20480))
        e('buffer_store_dwordx2 %s, v16, s[28:31], s52 offen' % vr(b, 2))
    marks = [I('; it%d' % i) for i in range(len(iters) + 1)]
    lin = list(L)
    for i, B in enumerate(iters): lin += [marks[i]] + B
    lin += [marks[-1]] + E
    for x in wr: x.lds = None
    for x in rd.values(): x.lds = None
    lin, info, nn = finish(lin, 'K2')
    pos = [lin.index(m) for m in marks]
    seg = [lin[pos[i] + 1:pos[i + 1]] for i in range(len(iters))]
    for i in range(1, 7): assert [x.txt for x in seg[i]] == [x.txt for x in seg[0]], i
    out = lin[:pos[0]] + [I('K2_loop:')] + seg[0] + [I('s_sub_u32 s45, s45, 1'), I('s_cmp_lg_u32 s45, 0'), I('s_cbranch_scc1 K2_loop')] + seg[7] + lin[pos[-1] + 1:]
    if opt.get('stamps2'):
        import gen
        out += gen.stamp_code('K2_st', 0)
    out.append(I('s_endpgm'))
    print('K2: %d instrs, nops %d' % (len(out), nn))
    return ('gqa_outproj_kernel', 240, 4 * WS, out, 512, 256)
```

```python
import re

TRANS = ('v_exp_f32', 'v_rcp_f32', 'v_log_f32', 'v_rsq_f32', 'v_sqrt_f32')
NODST_S = ('s_cmp', 's_waitcnt', 's_barrier', 's_nop', 's_branch', 's_cbranch', 's_endpgm', 's_setprio', 's_sleep', 's_bitcmp')

def regs_of(op):
    op = op.strip()
    if op.startswith('-'): op = op[1:]
    if op.startswith('|'): op = op.strip('|')
    m = re.fullmatch(r'([vas])(\d+)', op)
    if m: return [(m.group(1), int(m.group(2)))]
    m = re.fullmatch(r'([vas])\[(\d+):(\d+)\]', op)
    if m: return [(m.group(1), i) for i in range(int(m.group(2)), int(m.group(3)) + 1)]
    if op == 'vcc': return [('s', 106), ('s', 107)]
    if op == 'exec': return [('s', 126), ('s', 127)]
    if op == 'm0': return [('s', 124)]
    return []

class I:
    def __init__(self, txt, **kw):
        self.txt = txt.strip()
        self.lds = kw.get('lds')
        self.cover = kw.get('cover')
        self.note = kw.get('note')
        self.parse()
    def parse(self):
        t = self.txt
        self.rd = set(); self.wr = set(); self.cr = None; self.dreg = None
        if t.endswith(':') or t.startswith('.') or t.startswith(';'):
            self.kind = 'label'; self.op = ''; return
        sp = t.split(None, 1)
        op = self.op = sp[0]
        ops = []
        if len(sp) > 1:
            ops = [o.strip() for o in sp[1].split(',')]
            last = ops[-1].split()
            mods = last[1:]; ops[-1] = last[0]
        else:
            mods = []
        self.mods = mods
        R = lambda lst: set(r for o in lst for r in regs_of(o))
        if op == 'WAIT':
            self.kind = 'wait'
        elif op.startswith('v_mfma'):
            self.kind = 'mfma'; self.wr = R(ops[:1]); self.rd = R(ops[1:]); self.cr = R(ops[3:4]); self.ab = R(ops[1:3])
            self.dreg = ops[0]; self.creg = ops[3]
        elif op.startswith('ds_read'):
            self.kind = 'ds'; self.wr = R(ops[:1]); self.rd = R(ops[1:])
        elif op.startswith('ds_'):
            self.kind = 'ds'; self.rd = R(ops)
        elif op.startswith('buffer_load') or op.startswith('global_load'):
            self.kind = 'vmem'
            if 'lds' in mods: self.rd = R(ops) | {('s', 124)}
            else: self.wr = R(ops[:1]); self.rd = R(ops[1:])
        elif op.startswith('buffer_atomic') :
            self.kind = 'vmem'; self.rd = R(ops)
            if 'sc0' in mods: self.wr = R(ops[:1])
        elif op.startswith('buffer_store') or op.startswith('global_store'):
            self.kind = 'vmem'; self.rd = R(ops); self.sdata = R(ops[:1])
        elif op.startswith('buffer_'):
            self.kind = 'vmem'
        elif op.startswith('v_'):
            self.kind = 'trans' if op in TRANS else 'valu'
            if 'swap' in op: self.wr = R(ops); self.rd = R(ops)
            else:
                self.wr = R(ops[:1]); self.rd = R(ops[1:])
                if op.startswith('v_fmac') or op.startswith('v_mac'): self.rd |= self.wr
                if op in ('v_add_co_u32', 'v_addc_co_u32'): self.wr = R(ops[:2]); self.rd = R(ops[2:])
        elif op.startswith('s_'):
            if op.startswith('s_waitcnt'): self.kind = 'wait'
            elif op == 's_barrier': self.kind = 'bar'
            elif op == 's_nop': self.kind = 'nop'; self.n = int(ops[0]) + 1
            elif op.startswith('s_load') or op.startswith('s_mem') or op.startswith('s_buffer_load'):
                self.kind = 'smem'; self.wr = R(ops[:1]); self.rd = R(ops[1:])
            elif op.startswith(NODST_S): self.kind = 'salu'; self.rd = R(ops)
            else:
                self.kind = 'salu'; self.wr = R(ops[:1]); self.rd = R(ops[1:])
                if 'saveexec' in op: self.wr |= {('s', 126), ('s', 127)}
        else:
            raise ValueError('unknown op: ' + t)
    def __repr__(self): return self.txt

def WAIT(cover): return I('WAIT', cover=list(cover))

class Job:
    seq = 0
    def __init__(self, ins, lo, hi, deps=(), first=False, name=''):
        self.ins = ins if isinstance(ins, I) else I(ins)
        self.lo = lo; self.hi = hi
        self.deps = [(d if isinstance(d, tuple) else (d, 1)) for d in deps if d is not None]
        self.gap = None; self.first = first; self.name = name
        Job.seq += 1; self.seq = Job.seq
        k = self.ins.kind
        self.cls = 's' if k in ('salu', 'wait', 'bar', 'nop') else k

def schedule(mf, jobs, verbose=False, urgent=6, slots_fn=None):
    n = len(mf)
    for _ in range(50):
        ch = False
        for j in jobs:
            for d, dist in j.deps:
                if d.gap is None and d.hi > j.hi - dist:
                    d.hi = j.hi - dist; ch = True
        if not ch: break
    out = []
    pend = sorted([j for j in jobs if j.gap is None], key=lambda j: (j.lo, j.seq))
    act = []; pi = 0; cyc = 0; over = 0
    for g in range(n):
        while pi < len(pend) and pend[pi].lo <= g:
            act.append(pend[pi]); pi += 1
        out.append(mf[g])
        placed = []
        def ready(j):
            for d, dist in j.deps:
                if d.gap is None or d.gap > g - dist: return False
            return True
        def take(j):
            j.gap = g; act.remove(j); placed.append(j)
        def pick(pred):
            c = [j for j in act if pred(j) and ready(j)]
            return min(c, key=lambda j: (j.hi, j.seq)) if c else None
        j = pick(lambda j: j.cls == 's' and j.first) or pick(lambda j: j.cls == 's')
        if j: take(j)
        slots = slots_fn(g) if slots_fn else 2
        while True:
            j = pick(lambda j: j.cls == 's' and j.hi <= g)
            if not j: break
            take(j); slots -= 1
        vec_started = False
        if slots >= 1:
            cand = {c: pick(lambda j, c=c: j.cls == c) for c in ('ds', 'vmem', 'trans', 'valu')}
            if slots < 2: cand['trans'] = None
            ch = None
            urg = [c for c in ('vmem', 'trans') if cand[c] and cand[c].hi - g <= 1 and not (cand['ds'] and cand['ds'].hi <= cand[c].hi)]
            if urg: ch = min(urg, key=lambda c: cand[c].hi)
            elif cand['ds']: ch = 'ds'
            elif cand['vmem']: ch = 'vmem'
            elif cand['trans'] and not (cand['valu'] and cand['valu'].hi < cand['trans'].hi and cand['valu'].hi - g <= urgent): ch = 'trans'
            elif cand['valu']: ch = 'valu'
            if ch:
                take(cand[ch])
                slots -= 2 if ch in ('trans', 'vmem') else 1
                while slots >= 1:
                    j = pick(lambda j: j.cls == 'valu')
                    if not j: break
                    take(j); slots -= 1
        while slots >= 1:
            j = pick(lambda j: j.cls == 's')
            if not j: break
            take(j); slots -= 1
        while True:
            j = pick(lambda j: j.hi <= g)
            if not j: break
            take(j); over += 1
        late = [j for j in act if j.hi <= g]
        if late and verbose: print('gap', g, 'late (deps not ready):', [(j.ins.txt, j.hi) for j in late][:4])
        out.extend(j.ins for j in placed)
    left = sorted(act + pend[pi:], key=lambda j: (j.hi, j.seq))
    res = []
    g = n
    while left:
        for j in left:
            if all(d.gap is not None for d, _ in j.deps):
                j.gap = g; g += 1; res.append(j.ins); left.remove(j); break
        else:
            raise RuntimeError('cyclic deps')
    return out, res, over

def est_cycles(seq):
    t = 0; lastm = -16; prev = None
    for x in seq:
        k = x.kind
        if k == 'label': continue
        if k == 'mfma':
            t = max(t, lastm + 16); lastm = t; t += 4
        elif k in ('valu', 'trans', 'ds', 'vmem'):
            t = max(t, lastm + 8)
            if k == 'ds' and prev in ('valu', 'trans'): t += 8
            if k == 'ds' and prev == 'ds': t += 4
            t += 8 if k in ('trans', 'vmem') else 4
        elif k == 'nop': t += 4 * x.n
        else: t += 4
        prev = k
    return t

def resolve_waits(seq):
    vm = []; lg = []
    for x in seq:
        if x.kind == 'vmem': vm.append(x)
        elif x.kind == 'ds': lg.append(x)
        elif x.op == 'WAIT':
            parts = []
            for q, nm, mx in ((vm, 'vmcnt', 63), (lg, 'lgkmcnt', 15)):
                ids = {id(y): i for i, y in enumerate(q)}
                idx = [ids[id(c)] for c in x.cover if id(c) in ids]
                if idx:
                    cnt = min(len(q) - 1 - max(idx), mx)
                    parts.append('%s(%d)' % (nm, cnt))
            for c in x.cover:
                assert any(c is y for y in vm) or any(c is y for y in lg), ('wait covers unissued op', c.txt)
            x.txt = 's_waitcnt ' + ' '.join(parts) if parts else 's_nop 0'
            x.parse()
        if len(vm) > 200: vm = vm[-100:]
        if len(lg) > 200: lg = lg[-100:]

def hazard(seq, i, x):
    k = x.kind
    isv = k in ('valu', 'trans')
    vr = lambda s: {r for r in s if r[0] in 'va'}
    sr = lambda s: {r for r in s if r[0] == 's'}
    st = 0; worst = 0; msg = ''
    for b in range(i - 1, -1, -1):
        y = seq[b]
        if y.kind == 'label': continue
        need = 0; why = ''
        yv = y.kind in ('valu', 'trans')
        def N(n_, w):
            nonlocal need, why
            if n_ > need: need = n_; why = w
        if yv and k == 'mfma' and vr(y.wr) & x.rd: N(2, 'valu->mfma')
        if y.kind == 'mfma':
            if k == 'mfma':
                if y.wr & x.ab: N(8, 'mfmaD->AB')
                if y.wr & x.cr and y.dreg != x.creg: N(6, 'mfmaD->C partial')
                if y.wr & x.wr and y.dreg != x.creg: N(8, 'mfma WAW')
            elif k in ('valu', 'trans', 'ds', 'vmem'):
                if y.wr & (x.rd | x.wr): N(8, 'mfmaD->use')
                if isv and y.cr & x.wr: N(3, 'mfmaC WAR')
        if y.kind == 'trans' and k == 'valu' and y.wr & x.rd: N(1, 'trans->valu')
        if yv and isv and vr(y.wr) & x.rd:
            if 'permlane' in x.op or 'dpp' in x.op: N(2, 'valu->permlane')
            if x.op in ('v_readfirstlane_b32', 'v_readlane_b32'): N(1, 'valu->readlane')
        if yv and sr(y.wr):
            if isv and sr(y.wr) & x.rd: N(2, 'valu sgpr->valu')
            if k == 'vmem' and sr(y.wr) & x.rd: N(5, 'valu sgpr->vmem')
            if k == 'salu' and sr(y.wr) & x.rd: N(1, 'valu sgpr->salu (conservative)')
        if y.kind == 'salu' and ('s', 124) in y.wr and k == 'vmem' and ('s', 124) in x.rd: N(1, 'm0->dma')
        if y.kind == 'vmem' and hasattr(y, 'sdata') and len(y.sdata) >= 3 and y.sdata & x.wr: N(2, 'store data WAR')
        if need - st > worst:
            worst = need - st; msg = '%s  <- %s : %s needs %d has %d' % (x.txt, y.txt, why, need, st)
        st += y.n if y.kind == 'nop' else 1
        if st >= 10: break
    return worst, msg

def fix_hazards(seq, verbose=False):
    out = []; tot = 0
    for x in seq:
        if x.kind != 'label':
            miss, msg = hazard(out, len(out), x)
            if miss > 0:
                out.append(I('s_nop %d' % (miss - 1))); tot += miss
                if verbose: print('  nop', miss, msg)
        out.append(x)
    return out, tot

def check(seq, name=''):
    errs = []
    seq = [x for x in seq if x.kind != 'label']
    vmq = []; lgq = []; smem = []
    nbar = 0
    done_bar = {}
    info = dict(fill_done={}, first_read={}, read_done={}, first_fill={}, region={})
    reads = []; fills = []
    def complete(y):
        y.done_bar = nbar
    for i, x in enumerate(seq):
        x.done_bar = None
        k = x.kind
        isv = k in ('valu', 'trans')
        vr = lambda s: {r for r in s if r[0] in 'va'}
        sr = lambda s: {r for r in s if r[0] == 's'}
        touch = x.rd | x.wr
        for q in (vmq, lgq, smem):
            for y in q:
                if y.wr & touch: errs.append('%s: [%d] %s touches pending dest of %s' % (name, i, x.txt, y.txt))
        if k == 'wait':
            m = re.search(r'vmcnt\((\d+)\)', x.txt)
            if m:
                c = int(m.group(1))
                while len(vmq) > c: complete(vmq.pop(0))
            m = re.search(r'lgkmcnt\((\d+)\)', x.txt)
            if m:
                c = int(m.group(1))
                if smem and c > 0: errs.append('%s: [%d] counted lgkm wait with smem outstanding' % (name, i))
                if c == 0: smem.clear()
                while len(lgq) > c: complete(lgq.pop(0))
        if k == 'bar': nbar += 1
        if k == 'vmem':
            vmq.append(x)
            if len(vmq) > 63: errs.append('%s: [%d] vmcnt overflow' % (name, i))
        if k == 'ds': lgq.append(x)
        if k == 'smem': smem.append(x)
        if x.lds is not None:
            lo, hi, shared, tag, part = x.lds
            x.at_bar = nbar
            isfill = (k == 'vmem') or x.op.startswith('ds_write')
            if not isfill:
                fl = [f for f in fills if f.lds[3] == tag]
                if not fl: errs.append('%s: [%d] read of unfilled tag %s' % (name, i, tag))
                for f in fl:
                    if f.done_bar is None: errs.append('%s: [%d] %s reads tag %s before fill complete' % (name, i, x.txt, tag))
                    elif shared and f.done_bar >= nbar: errs.append('%s: [%d] %s reads shared tag %s w/o barrier' % (name, i, x.txt, tag))
                for f in fills:
                    if f.lds[3] != tag and f.lds[0] < hi and lo < f.lds[1] and (shared or f.lds[2] or f.lds[4] == part) and fl and f.ord > fl[0].ord:
                        errs.append('%s: [%d] %s reads tag %s after overwritten by %s' % (name, i, x.txt, tag, f.lds[3]))
                info['first_read'].setdefault(tag, nbar)
                reads.append(x)
            else:
                for r_ in reads:
                    if r_.lds[3] != tag and r_.lds[0] < hi and lo < r_.lds[1] and (shared or r_.lds[2] or r_.lds[4] == part):
                        if r_.done_bar is None: errs.append('%s: [%d] fill %s over pending read of %s' % (name, i, tag, r_.lds[3]))
                        elif (shared or r_.lds[2]) and r_.done_bar >= nbar: errs.append('%s: [%d] fill %s over read of %s w/o barrier' % (name, i, tag, r_.lds[3]))
                info['first_fill'].setdefault(tag, nbar)
                info['region'][tag] = (lo, hi, shared)
                x.ord = len(fills)
                fills.append(x)
        miss, msg = hazard(seq, i, x)
        if miss > 0: errs.append('%s: [%d] %s' % (name, i, msg))
    for f in fills:
        t = f.lds[3]
        d = f.done_bar if f.done_bar is not None else 10 ** 9
        info['fill_done'][t] = max(info['fill_done'].get(t, -1), d)
    for r_ in reads:
        t = r_.lds[3]
        d = r_.done_bar if r_.done_bar is not None else 10 ** 9
        info['read_done'][t] = max(info['read_done'].get(t, -1), d)
    info['nbar'] = nbar
    return errs, info

def cross_check(infos):
    errs = []
    a = infos[0]
    if len(set(i['nbar'] for i in infos)) != 1: errs.append('barrier counts differ: %s' % [i['nbar'] for i in infos])
    tags = list(a['region'].keys())
    for t in tags:
        lo, hi, sh = a['region'][t]
        if sh:
            fd = max(i['fill_done'].get(t, -1) for i in infos)
            fr = min(i['first_read'].get(t, 10 ** 9) for i in infos)
            if fr < 10 ** 9 and fd >= fr: errs.append('cross RAW %s fill_done %d first_read %d' % (t, fd, fr))
        for u in tags:
            if u == t: continue
            lo2, hi2, sh2 = a['region'][u]
            if lo < hi2 and lo2 < hi and (sh or sh2) and tags.index(u) < tags.index(t):
                rd = max(i['read_done'].get(u, -1) for i in infos)
                ff = min(i['first_fill'].get(t, 10 ** 9) for i in infos)
                if rd >= ff: errs.append('cross WAR %s over %s read_done %d first_fill %d' % (t, u, rd, ff))
    return errs
```

```python
import sys, math, struct
from sched import *

INF = 10 ** 6
TS = 24576
XB0 = 98304
FLAG = 147456
STAMP_OFF = 0x10000000
def f2u(f): return struct.unpack('<I', struct.pack('<f', f))[0]
def vr(b, n=4): return 'v[%d:%d]' % (b, b + n - 1)
def ar(b, n=4): return 'a[%d:%d]' % (b, b + n - 1)

class Prog:
    def __init__(self, dlat=8):
        self.mf = []; self.jobs = []; self.lastw = {}; self.rds = {}; self.dlat = dlat
        self.pre = []
    def _conf(self, ins):
        c = []
        for r in ins.rd:
            if r in self.lastw: c.append((self.lastw[r], 'raw', r))
        for r in ins.wr:
            if r in self.lastw: c.append((self.lastw[r], 'waw', r))
            for x in self.rds.get(r, ()): c.append((x, 'war', r))
        return c
    def _rec(self, ins, who):
        for r in ins.rd: self.rds.setdefault(r, []).append(who)
        for r in ins.wr: self.lastw[r] = who; self.rds[r] = []
    def mfma(self, d, a, b, c):
        ins = I('v_mfma_f32_16x16x32_bf16 %s, %s, %s, %s' % (d, a, b, c))
        m = len(self.mf)
        for x, ty, r in self._conf(ins):
            if isinstance(x, Job):
                lim = m - 1
                if ty == 'raw' and x.cls in ('valu', 'trans'): lim = m - 3
                x.hi = min(x.hi, lim)
        self.mf.append(ins); self._rec(ins, m)
        return m
    def job(self, ins, lo=0, hi=INF, deps=(), first=False, pre=False, dlat=None, **kw):
        ins = ins if isinstance(ins, I) else I(ins, **kw)
        j = Job(ins, lo, hi, deps, first)
        seen = set(id(d) for d, _ in j.deps)
        for x, ty, r in self._conf(ins):
            if isinstance(x, Job):
                if id(x) in seen: continue
                seen.add(id(x))
                dist = 1
                if x.cls == 'valu' and j.cls == 'valu': dist = 0
                if 'permlane' in ins.op and ty == 'raw': dist = 2
                if x.cls == 's' and j.cls == 's': dist = 0
                if ty == 'war' and hasattr(x.ins, 'sdata'): dist = 2
                j.deps.append((x, dist))
            else:
                y = self.mf[x]
                if ty in ('raw', 'waw'): j.lo = max(j.lo, x + (dlat if dlat is not None else self.dlat))
                elif r in y.cr and j.cls in ('valu', 'trans'): j.lo = max(j.lo, x + 3)
                else: j.lo = max(j.lo, x)
        self._rec(ins, j)
        if pre:
            j.gap = -10; self.pre.append(ins)
        self.jobs.append(j)
        return j
    def n(self): return len(self.mf)

RING = 208; ONES = 240; LACC = 192
def qacc(T, qt): return 64 + ((T >> 1) * 4 + qt) * 8 + 4 * (T & 1)
def qfrag(s, qt): return 64 + (s * 4 + qt) * 8
_lows = [32 + 4 * k for k in range(8)] + [16 + 4 * k for k in range(4)]
_ups = [64 + 8 * k + 4 for k in range(24)]
SBLK = {}; PBLK = {}; NEGM = {}
for kt in range(4):
    for qt in range(4): SBLK[kt, qt] = _lows[kt * 4 + qt] if kt < 2 else _ups[4 + (kt - 2) * 4 + qt]
for qt in range(4): NEGM[qt] = _ups[qt]
_rest = _ups[12:] + _lows[8:]
for i, key in enumerate([(bf, kp, qt) for bf in range(2) for kp in range(2) for qt in range(4)]): PBLK[key] = _rest[i]
def oacc(dt, qt): return dt * 16 + qt * 4

TILES = [('W', n) for n in range(10)] + [('K', 0)]
for j in range(15): TILES += [('K', j + 1), ('V', j)]
TILES += [('V', 15)]
def slot_of(n): return n % 4 if n < 10 else (n - 10 + 2) % 6

def k1_body(NQ, opt):
    P = Prog()
    nt = ' nt' if opt.get('nt', 1) else ''
    wpol = opt.get('wpol', '')
    GL = 2 * NQ
    dmas = {}; plan = []
    def dma_group(tag, region, m0txt, sofftxt, lst, at, spc, deps):
        ins = [I(t, lds=region) for t in lst]
        dmas.setdefault(tag, []).extend(ins)
        if at is None:
            P.job(m0txt, pre=True); P.job(sofftxt, pre=True)
            for x in ins: P.job(x, pre=True)
        else: plan.append((at, len(plan), m0txt, sofftxt, ins, spc, deps))
    def flush_plan():
        for at, _, m0txt, sofftxt, ins, spc, deps in sorted(plan, key=lambda e: e[:2]):
            P.job(m0txt, lo=max(at - 4, 0)); P.job(sofftxt, lo=max(at - 4, 0))
            for i, x in enumerate(ins):
                t = int(at + i * spc)
                P.job(x, lo=t, hi=t + 2, deps=deps)
        plan.clear()
    def dma_tile(n, at, spc=0, deps=()):
        kind, j = TILES[n]; so = slot_of(n) * TS
        reg = (so, so + TS, True, n, None)
        for half in range(2):
            if kind == 'W':
                lst = ['buffer_load_dwordx4 v%d, s[24:27], s43 offen offset:%d%s lds' % (22 + t, 1024 * t, wpol) for t in range(3)]
                soff = (0 if opt.get('fixw') else j) * 64 * 12288 + half * 8 * 12288
            else:
                srd = 's[28:31]' if kind == 'K' else 's[32:35]'
                lst = ['buffer_load_dwordx4 v%d, %s, s43 offen offset:%d%s lds' % (7 + t, srd, 1024 * t, nt) for t in range(3)]
                soff = (0 if opt.get('fixkv') else j) * TS + half * 3072
            dma_group(n, reg, 's_add_u32 m0, s41, %d' % (so + half * 3072), 's_mov_b32 s43, %d' % soff, lst, None if at is None else int(at + half * 3 * spc), spc, deps)
    def xreg(n, qt): return (XB0 + (n & 1) * 32768, XB0 + (n & 1) * 32768 + 32768, False, 'X%d_%d' % (n, qt), qt)
    def dma_x(n, qt, at, spc=0, deps=()):
        half = qt >> 1
        lst = ['buffer_load_dwordx4 v%d, s[20:23], s43 offen offset:%d%s lds' % (25 + t, 1024 * t, wpol) for t in (2 * (qt & 1), 2 * (qt & 1) + 1)]
        dma_group('X%d_%d' % (n, qt), xreg(n, qt), 's_add_u32 m0, s42, %d' % ((n & 1) * 32768 + half * 4096), 's_mov_b32 s43, %d' % ((0 if opt.get('fixw') else n) * 128 + half * 40960), lst, at, spc, deps)
    def xfrag(n, u, qt): return (n & 1) * 32 + (u * 4 + qt) * 4
    def x_reads(n, qt, lo, hi, deps, pre=False):
        return [P.job(I('ds_read_b128 %s, v%d offset:%d' % (ar(xfrag(n, u, qt)), 20 + u, (n & 1) * 32768 + qt * 2048), lds=xreg(n, qt)), lo=lo, hi=hi, deps=deps, pre=pre) for u in range(2)]
    base = {'K': slot_of(10) * TS, 'V': slot_of(12) * TS}
    def reads_txt(n, g):
        kind, j = TILES[n]; so = slot_of(n) * TS; rb = RING + (g % 4) * 8
        reg = (so, so + TS, True, n, None); out = []
        if kind == 'W':
            s, e = g >> 1, g & 1
            areg = 16 + (s & 1) + (2 if so >= 49152 else 0); o = so % 49152 + 128 * (s >> 1) + 8 * e
            for u in range(2):
                for hh in range(2):
                    out.append(I('ds_read_b64_tr_b16 %s, v%d offset:%d' % (ar(rb + 4 * u + 2 * hh, 2), areg, o + 1536 * hh + 12288 * u), lds=reg))
        elif kind == 'K':
            kt, sp = g // 3, g % 3
            for e in range(2):
                out.append(I('ds_read_b128 %s, v%d offset:%d' % (ar(rb + 4 * e), 1 + e, so - base['K'] + 128 * sp + 6144 * kt), lds=reg))
        else:
            for kp in range(2):
                for hh in range(2):
                    out.append(I('ds_read_b64_tr_b16 %s, v%d offset:%d' % (ar(rb + 4 * kp + 2 * hh, 2), 3 + (g & 3), so - base['V'] + 128 * (g >> 2) + 6144 * hh + 12288 * kp), lds=reg))
        return out

    start = {}; pos = 0
    for n, (kind, j) in enumerate(TILES):
        if kind == 'V': start[n, 'l'] = pos; pos += GL
        for g in range(12): start[n, g] = pos; pos += GL
    total = pos
    def prev_end(n, g, back):
        k = n * 12 + g - back
        if k < 0: return -1
        return start[k // 12, k % 12] + GL - 1

    for qt in range(NQ): dma_x(0, qt, None)
    dma_tile(0, None)
    for qt in range(NQ): dma_x(1, qt, None)
    dma_tile(1, None); dma_tile(2, None)
    for t in opt['mid']: P.job(t, pre=True)
    P.job(WAIT(dmas[0]), pre=True)
    bar = {0: P.job('s_barrier', pre=True)}
    xr = {(0, qt): x_reads(0, qt, 0, 0, [], pre=True) for qt in range(NQ)}
    after_bar = {n: [n + 2] for n in range(1, 8)}
    after_bar[8] = [10, 12]; after_bar[9] = [11, 13]
    for n in range(10, 42): after_bar[n] = [n + 4] if n + 4 < 42 else []
    waitjob = {}
    stamps = opt.get('stamps')
    def stamp(k, at):
        if stamps:
            a = P.job('s_memrealtime s[%d:%d]' % (72 + 4 * k, 73 + 4 * k), lo=at, hi=at); a.cls = 's'
            b = P.job('s_memtime s[%d:%d]' % (74 + 4 * k, 75 + 4 * k), lo=at, hi=at, deps=[(a, 0)]); b.cls = 's'
            P.job('s_waitcnt lgkmcnt(0)', lo=at, hi=at, deps=[(b, 0)])

    def softmax(j, sub_kt=0):
        for kt in range(4):
            for qt in range(NQ):
                sb = SBLK[kt, qt]; pb = PBLK[j & 1, kt >> 1, qt] + 2 * (kt & 1)
                if kt < sub_kt:
                    for r in range(4): P.job('v_add_f32 v%d, v%d, v%d' % (sb + r, sb + r, NEGM[qt]))
                for r in range(4): P.job('v_exp_f32 v%d, v%d' % (sb + r, sb + r))
                for h in range(2): P.job('v_cvt_pk_bf16_f32 v%d, v%d, v%d' % (pb + h, sb + 2 * h, sb + 2 * h + 1))
    SUBKT = opt.get('subkt', 3)
    tmpblk = []
    for n, (kind, j) in enumerate(TILES):
        if kind in 'KV':
            so = slot_of(n) * TS
            if not (0 <= so - base[kind] <= TS):
                regs = (1, 2) if kind == 'K' else (3, 4, 5, 6)
                for r in regs: P.job('v_add_u32 v%d, %d, v%d' % (r, (so - base[kind]) & 0xffffffff, r))
                base[kind] = so
        if kind == 'V':
            for qt in range(NQ):
                for kp in range(2):
                    P.mfma(ar(LACC + 4 * qt), ar(ONES), vr(PBLK[j & 1, kp, qt]), '0' if (j == 0 and kp == 0) else ar(LACC + 4 * qt))
            if j == 15:
                RL = NEGM[0]
                for qt in range(NQ):
                    P.job('v_accvgpr_read_b32 v%d, a%d' % (RL + qt, LACC + 4 * qt), dlat=4)
                    P.job('v_cmp_nge_f32 s[%d:%d], s45, v%d' % (48 + 2 * qt, 49 + 2 * qt, RL + qt))
                    P.job('v_rcp_f32 v%d, v%d' % (RL + qt, RL + qt))
                for qt in range(1, NQ): P.job('s_or_b64 s[48:49], s[48:49], s[%d:%d]' % (48 + 2 * qt, 49 + 2 * qt))
                P.job('s_or_b32 s48, s48, s49')
                P.job('v_mov_b32 v11, s48')
                freg = (FLAG, FLAG + 16, True, 'flag', None)
                fw = P.job(I('ds_write_b32 v12, v11', lds=freg), hi=start[n, 4])
                w1 = P.job(WAIT([fw.ins]), lo=start[n, 6] - 1, hi=start[n, 6] - 1, deps=[fw])
                b1 = P.job('s_barrier', lo=start[n, 6] - 1, hi=start[n, 6] - 1, deps=[(w1, 0)])
                fr = P.job(I('ds_read_b128 v[12:15], v13', lds=freg), deps=[b1], hi=start[n, 7])
                w2 = P.job(WAIT([fr.ins]), lo=start[n, 9], deps=[(fr, 8)])
                P.job('v_or_b32 v12, v12, v13', deps=[w2])
                P.job('v_or3_b32 v12, v12, v14, v15', deps=[w2])
                P.job('v_readfirstlane_b32 s48, v12')
                tmpblk = [SBLK[a, b] for a in range(4) for b in range(4)] + [PBLK[0, a, b] for a in range(2) for b in range(4)]
        for g in range(12):
            k = n * 12 + g
            st = start[n, g]
            pre = k < 3
            deps = [(bar[n], 0)]
            lo = max(prev_end(n, g, 4), 0)
            rj = [P.job(x, lo=lo, hi=lo + GL + 2, deps=deps, pre=pre) for x in reads_txt(n, g)]
            cover = [x.ins for x in rj]
            wd = list(rj)
            xq = g // 2 if (kind == 'W' and g % 2 == 0 and g // 2 < NQ and n + 1 <= 9) else None
            xd = g // 2 - 1 if (kind == 'W' and g % 2 == 0 and 0 <= g // 2 - 1 < NQ and n + 1 <= 9) else None
            if k == 0:
                for qt in range(NQ): cover += [x.ins for x in xr[0, qt]]
            if xd is not None: cover += [x.ins for x in xr[n + 1, xd]]; wd += xr[n + 1, xd]
            if g == 9 and n + 1 < 42: cover += dmas[n + 1]
            if xq is not None and k > 0: cover += dmas['X%d_%d' % (n + 1, xq)]
            wj = P.job(WAIT(cover), lo=st - 1, hi=st - 1, deps=wd, first=True, pre=(k == 0))
            waitjob[n, g] = wj
            if g == 9 and n + 1 < 42:
                bar[n + 1] = P.job('s_barrier', lo=st - 1, hi=st - 1, deps=[(wj, 0)])
                tl = after_bar[n + 1]
                span = opt.get('spw', 5) if n + 1 < 7 else opt.get('spa', 11)
                for i, t in enumerate(tl):
                    spc = span * GL / (6.0 * len(tl))
                    dma_tile(t, st + 4 + i * 6 * spc, spc, [bar[n + 1]])
                if n >= 9: flush_plan()
            if xq is not None:
                wx = wj
                if k == 0: wx = P.job(WAIT(dmas['X1_0']), lo=GL - 3, hi=GL - 3)
                xr[n + 1, xq] = x_reads(n + 1, xq, st - 1, st + GL + 2, [(wx, 0)])
            if k == 0:
                for qt in range(NQ): dma_x(2, qt, [4, GL + 4, 3 * GL + 4, 5 * GL + 4][qt], GL // 2 - 1)
            if xd is not None and n + 3 <= 9:
                dma_x(n + 3, xd, st + 4, GL // 2 - 1 if n == 0 else (GL if xd < 3 else GL // 2), [wj])
            sl = [int(z) for z in str(opt.get('sl', '0,10,12,41')).split(',')]
            if g == 0 and n in sl: stamp(1 + sl.index(n), st)
            rb = RING + (g % 4) * 8
            for qt in range(NQ):
                for e in range(2):
                    A = ar(rb + 4 * e)
                    if kind == 'W':
                        d = vr(qacc(g, qt)); P.mfma(d, A, ar(xfrag(n, e, qt)), '0' if (n == 0 and e == 0) else d)
                    elif kind == 'K':
                        kt, sp = g // 3, g % 3
                        d = vr(SBLK[kt, qt]); c = d
                        if sp == 0 and e == 0: c = '0' if (j == 0 and kt < SUBKT) else vr(NEGM[qt])
                        P.mfma(d, A, vr(qfrag(2 * sp + e, qt)), c)
                    else:
                        d = ar(oacc(g, qt)); P.mfma(d, A, vr(PBLK[j & 1, e, qt]), '0' if (j == 0 and e == 0) else d)
            if n == 9:
                for qt in range(NQ):
                    b = qacc(g, qt)
                    for r in range(4): P.job('v_mul_f32 v%d, s44, v%d' % (b + r, b + r), dlat=5)
                    for h in range(2): P.job('v_cvt_pk_bf16_f32 v%d, v%d, v%d' % (qfrag(g >> 1, qt) + 2 * (g & 1) + h, b + 2 * h, b + 2 * h + 1))
            if n == 10 and g == 2:
                for qt in range(NQ):
                    sb = SBLK[0, qt]; t = PBLK[1, 0, qt]
                    P.job('v_max3_f32 v%d, v%d, v%d, v%d' % (t, sb, sb + 1, sb + 2), dlat=5)
                    P.job('v_max_f32 v%d, v%d, v%d' % (t, t, sb + 3), dlat=5)
                    P.job('v_mov_b32 v%d, v%d' % (t + 1, t))
                    P.job('v_permlane32_swap_b32 v%d, v%d' % (t, t + 1))
                    P.job('v_max_f32 v%d, v%d, v%d' % (t, t, t + 1))
                    P.job('v_mov_b32 v%d, v%d' % (t + 1, t))
                    P.job('v_permlane16_swap_b32 v%d, v%d' % (t, t + 1))
                    P.job('v_max_f32 v%d, v%d, v%d' % (t, t, t + 1))
                    for r in range(4): P.job('v_sub_f32 v%d, 0, v%d' % (NEGM[qt] + r, t))
            if n == 41:
                for qt in range(NQ):
                    key = (g >> 1) * NQ + qt
                    t0 = tmpblk[(2 * key) % len(tmpblk)]; t = t0 if (g & 1) == 0 else tmpblk[(2 * key + 1) % len(tmpblk)]
                    for r in range(4): P.job('v_accvgpr_read_b32 v%d, a%d' % (t + r, oacc(g, qt) + r), dlat=5)
                    for r in range(4): P.job('v_mul_f32 v%d, v%d, v%d' % (t + r, t + r, NEGM[0] + qt))
                    for h in range(2): P.job('v_cvt_pk_bf16_f32 v%d, v%d, v%d' % (t0 + 2 * (g & 1) + h, t + 2 * h, t + 2 * h + 1))
                    if g & 1:
                        s = g >> 1
                        P.job('buffer_store_dwordx4 %s, v10, s[36:39], s%d offen offset:%d%s' % (vr(t0), 56 + 2 * qt + (s >> 2), (s & 3) * 1024, opt.get('opol', '')))
        if kind == 'K': softmax(j, SUBKT if j == 0 else 0)
    assert P.n() == total
    dense = opt.get('dense', 5)
    slots_fn = lambda g: dense if g >= start[41, 1] else 2
    w0i = waitjob[0, 0].ins
    P.pre.remove(w0i); P.pre.append(w0i)
    body, left, over = schedule(P.mf, P.jobs, verbose=opt.get('verbose'), slots_fn=slots_fn)
    seq = P.pre + body + left
    return seq, over

def k1_prologue(opt):
    L = []
    a = lambda t: L.extend(I(x) for x in t.strip().split('\n'))
    a('''s_cmp_lt_u32 s2, 256
s_cbranch_scc1 K1_go
s_endpgm
K1_go:
s_load_dwordx8 s[4:11], s[0:1], 0
s_load_dwordx2 s[18:19], s[0:1], 56''')
    if opt.get('stamps'): a('s_memrealtime s[64:65]\ns_memtime s[68:69]')
    a('''v_lshrrev_b32 v29, 6, v0
v_and_b32 v30, 63, v0
v_readfirstlane_b32 s40, v29''')
    if opt.get('map', 0) == 0:
        a('s_and_b32 s46, s2, 7\ns_lshr_b32 s47, s2, 3')
    else:
        a('''s_and_b32 s46, s2, 1
s_lshl_b32 s46, s46, 2
s_bfe_u32 s52, s2, 0x20003
s_or_b32 s46, s46, s52
s_bfe_u32 s47, s2, 0x20001
s_lshl_b32 s47, s47, 3
s_lshr_b32 s52, s2, 5
s_or_b32 s47, s47, s52''')
    a('''v_lshrrev_b32 v31, 3, v30
v_and_b32 v32, 6, v31
v_and_b32 v33, 7, v30
v_xor_b32 v32, v32, v33
v_lshl_add_u32 v31, v29, 6, v31
v_mul_u32_u24 v31, 1280, v31
v_lshl_add_u32 v25, v32, 4, v31
v_add_u32 v26, 9216, v25
v_add_u32 v27, 18432, v25
v_add_u32 v28, 27648, v25''')
    a('v_mul_u32_u24 v34, 6144, v29\nv_lshlrev_b32 v35, 4, v29')
    for t in range(3):
        a('''v_add_u32 v31, %d, v30
v_mul_u32_u24 v32, 171, v31
v_lshrrev_b32 v32, 12, v32
v_mul_u32_u24 v33, 24, v32
v_sub_u32 v33, v31, v33
v_lshlrev_b32 v36, 1, v32
v_and_b32 v36, 4, v36
v_xor_b32 v33, v33, v36
v_add_u32 v36, v35, v32
v_mul_u32_u24 v36, 12288, v36
v_lshl_add_u32 v33, v33, 4, v36
v_subrev_u32 v%d, %d, v33
v_and_b32 v32, 6, v32
v_xor_b32 v32, v32, v30
v_lshl_add_u32 v%d, v32, 4, v34''' % (64 * t, 22 + t, 1024 * t, 7 + t))
    a('''s_mul_i32 s41, s40, 6144
s_lshl_b32 s42, s40, 13
s_add_u32 s42, s42, %d
s_mul_i32 s52, s46, 307200
s_mul_i32 s53, s47, 384
s_lshl_b32 s54, s46, 5
s_add_u32 s54, s54, s47
s_mul_i32 s54, s54, 393216
s_mul_i32 s55, s46, 2880
s_mul_i32 s56, s47, 6
s_add_u32 s55, s55, s56
s_lshl_b32 s55, s55, 10
s_mov_b32 s22, 307200
s_mov_b32 s23, 0x00020000
s_sub_u32 s26, 7864320, s53
s_mov_b32 s27, 0x00020000
s_mov_b32 s30, 393216
s_mov_b32 s31, 0x00020000
s_mov_b32 s34, 393216
s_mov_b32 s35, 0x00020000
s_sub_u32 s38, 23592960, s55
s_mov_b32 s39, 0x00020000
s_waitcnt lgkmcnt(0)
s_add_u32 s20, s4, s52
s_addc_u32 s21, s5, 0
s_add_u32 s24, s10, s53
s_addc_u32 s25, s11, 0
s_add_u32 s28, s6, s54
s_addc_u32 s29, s7, 0
s_add_u32 s32, s8, s54
s_addc_u32 s33, s9, 0
s_add_u32 s36, s18, s55
s_addc_u32 s37, s19, 0
s_cmp_eq_u32 s40, 3
s_cbranch_scc1 K1_w3''' % XB0)
    mid = '''v_lshrrev_b32 v31, 4, v30
v_and_b32 v32, 15, v30
v_and_b32 v33, 6, v32
v_xor_b32 v33, v33, v31
v_lshlrev_b32 v33, 4, v33
v_lshl_add_u32 v20, v32, 7, v33
v_add_u32 v20, s42, v20
v_xor_b32 v21, 64, v20
v_mul_u32_u24 v1, 384, v32
v_add_u32 v1, v1, v33
v_add_u32 v1, %d, v1
v_xor_b32 v2, 64, v1
v_bfe_u32 v32, v30, 2, 2
v_lshl_add_u32 v33, v31, 3, v32
v_mul_u32_u24 v33, 384, v33
v_lshlrev_b32 v32, 1, v32
v_and_b32 v32, 4, v32
v_and_b32 v34, 3, v30
v_xor_b32 v32, v32, v34
v_lshl_add_u32 v16, v32, 4, v33
v_xor_b32 v17, 64, v16
v_add_u32 v18, 49152, v16
v_add_u32 v19, 49152, v17
v_lshrrev_b32 v31, 2, v30
v_and_b32 v32, 6, v31
v_lshrrev_b32 v33, 1, v34
v_xor_b32 v32, v32, v33
v_lshlrev_b32 v32, 4, v32
v_and_b32 v33, 1, v30
v_lshl_add_u32 v32, v33, 3, v32
v_mul_u32_u24 v31, 384, v31
v_add_u32 v3, v31, v32
v_add_u32 v3, %d, v3
v_xor_b32 v4, 32, v3
v_xor_b32 v5, 64, v3
v_xor_b32 v6, 96, v3
v_mul_u32_u24 v10, 786432, v29
v_lshl_add_u32 v10, v30, 4, v10
v_lshlrev_b32 v12, 2, v29
v_add_u32 v12, %d, v12
v_mov_b32 v13, %d
v_mov_b32 v31, 0x3f803f80
v_accvgpr_write_b32 a240, v31
v_accvgpr_write_b32 a241, v31
v_accvgpr_write_b32 a242, v31
v_accvgpr_write_b32 a243, v31
s_mov_b32 s44, 0x%08x
s_mov_b32 s45, 0x%08x''' % (slot_of(10) * TS, slot_of(12) * TS, FLAG, FLAG, f2u(math.log2(math.e) / math.sqrt(192.0)), f2u(opt.get('limit', 2.0 ** 30)))
    mid = mid.split('\n')
    for qt in range(4):
        for hh in range(2): mid.append('s_mov_b32 s%d, %d' % (56 + 2 * qt + hh, qt * 196608 + hh * 4096))
    return L, mid

def stamp_code(label, nst, tmp=96):
    L = []
    a = lambda t: L.extend(I(x) for x in t.strip().split('\n'))
    a('s_waitcnt vmcnt(0)\ns_memrealtime s[66:67]\ns_memtime s[70:71]\ns_memrealtime s[%d:%d]\ns_memtime s[%d:%d]\ns_waitcnt lgkmcnt(0)' % (72 + 4 * nst, 73 + 4 * nst, 74 + 4 * nst, 75 + 4 * nst))
    a('s_mov_b64 s[72:73], s[64:65]\ns_mov_b64 s[74:75], s[68:69]')
    a('''s_add_u32 s96, s18, 0x%x
s_addc_u32 s97, s19, 0
s_mov_b32 s98, 0x1000000
s_mov_b32 s99, 0x00020000
s_cmp_lg_u32 s40, 0
s_cbranch_scc1 %s
s_mul_i32 s52, s2, 128
v_mov_b32 v11, s52
s_mov_b64 exec, 1''' % (STAMP_OFF, label))
    regs = [64, 66, 68, 70] + [72 + 2 * i for i in range(2 * nst + 2)]
    for i, r in enumerate(regs):
        a('v_mov_b32 v14, s%d\nv_mov_b32 v15, s%d\nbuffer_store_dwordx2 v[14:15], v11, s[96:99], 0 offen offset:%d\ns_nop 1' % (r, r + 1, 8 * i))
    a('s_waitcnt vmcnt(0)\n%s:' % label)
    return L

def k1_fallback(opt):
    L = []
    a = lambda t: L.extend(I(x) for x in t.strip().split('\n'))
    MX = 12
    a('K1_fb:\ns_waitcnt vmcnt(0) lgkmcnt(0)\ns_barrier')
    kb, vb = opt['endbase']
    for r in (1, 2): a('v_add_u32 v%d, %d, v%d' % (r, (0 - kb) & 0xffffffff, r))
    for r in (3, 4, 5, 6): a('v_add_u32 v%d, %d, v%d' % (r, (TS - vb) & 0xffffffff, r))
    for qt in range(4):
        a('v_mov_b32 v%d, 0xff7fffff' % (MX + qt))
        for r in range(4): a('v_mov_b32 v%d, 0' % (NEGM[qt] + r))
    a('s_mov_b32 s52, 0\nK1_fb_pass:\ns_mov_b32 s53, 0')
    for i in range(208): a('v_accvgpr_write_b32 a%d, 0' % i)
    a('K1_fb_loop:')
    for srd, so in (('s[28:31]', 0), ('s[32:35]', TS)):
        for half in range(2):
            a('s_add_u32 m0, s41, %d\ns_add_u32 s43, s53, %d' % (so + half * 3072, half * 3072))
            for t in range(3): a('buffer_load_dwordx4 v%d, %s, s43 offen offset:%d lds' % (7 + t, srd, 1024 * t))
    a('s_waitcnt vmcnt(0)\ns_barrier')
    for kt in range(4):
        for s in range(6): a('ds_read_b128 %s, v%d offset:%d' % (ar(RING + 4 * s), 1 + (s & 1), 128 * (s >> 1) + 6144 * kt))
        a('s_waitcnt lgkmcnt(0)')
        for qt in range(4):
            for s in range(6):
                d = vr(SBLK[kt, qt])
                a('v_mfma_f32_16x16x32_bf16 %s, %s, %s, %s' % (d, ar(RING + 4 * s), vr(qfrag(s, qt)), vr(NEGM[qt]) if s == 0 else d))
    a('s_nop 7\ns_cmp_lg_u32 s52, 0\ns_cbranch_scc1 K1_fb_pv')
    for kt in range(4):
        for qt in range(4):
            sb = SBLK[kt, qt]
            a('v_max3_f32 v%d, v%d, v%d, v%d\nv_max3_f32 v%d, v%d, v%d, v%d' % (MX + qt, MX + qt, sb, sb + 1, MX + qt, MX + qt, sb + 2, sb + 3))
    a('s_branch K1_fb_next\nK1_fb_pv:')
    for kt in range(4):
        for qt in range(4):
            sb = SBLK[kt, qt]
            for r in range(4): a('v_exp_f32 v%d, v%d' % (sb + r, sb + r))
    a('s_nop 0')
    for kt in range(4):
        for qt in range(4):
            sb = SBLK[kt, qt]; pb = PBLK[0, kt >> 1, qt] + 2 * (kt & 1)
            for h in range(2): a('v_cvt_pk_bf16_f32 v%d, v%d, v%d' % (pb + h, sb + 2 * h, sb + 2 * h + 1))
    a('s_nop 1')
    for qt in range(4):
        for kp in range(2): a('v_mfma_f32_16x16x32_bf16 %s, %s, %s, %s' % (ar(LACC + 4 * qt), ar(ONES), vr(PBLK[0, kp, qt]), ar(LACC + 4 * qt)))
    for dt in range(12):
        for kp in range(2):
            for hh in range(2): a('ds_read_b64_tr_b16 %s, v%d offset:%d' % (ar(RING + 4 * kp + 2 * hh, 2), 3 + (dt & 3), 128 * (dt >> 2) + 6144 * hh + 12288 * kp))
        a('s_waitcnt lgkmcnt(0)')
        for qt in range(4):
            for kp in range(2): a('v_mfma_f32_16x16x32_bf16 %s, %s, %s, %s' % (ar(oacc(dt, qt)), ar(RING + 4 * kp), vr(PBLK[0, kp, qt]), ar(oacc(dt, qt))))
    a('''K1_fb_next:
s_nop 7
s_barrier
s_add_u32 s53, s53, %d
s_cmp_lt_u32 s53, %d
s_cbranch_scc1 K1_fb_loop
s_cmp_lg_u32 s52, 0
s_cbranch_scc1 K1_fb_out''' % (TS, 16 * TS))
    for qt in range(4):
        t = MX + qt; u = PBLK[0, 0, 0]
        a('''v_mov_b32 v%d, v%d
s_nop 1
v_permlane32_swap_b32 v%d, v%d
v_max_f32 v%d, v%d, v%d
v_mov_b32 v%d, v%d
s_nop 1
v_permlane16_swap_b32 v%d, v%d
v_max_f32 v%d, v%d, v%d''' % (u, t, t, u, t, t, u, u, t, t, u, t, t, u))
        for r in range(4): a('v_sub_f32 v%d, 0, v%d' % (NEGM[qt] + r, t))
    a('s_mov_b32 s52, 1\ns_branch K1_fb_pass\nK1_fb_out:')
    for qt in range(4):
        if qt == 3: a('s_cmp_eq_u32 s40, 3\ns_cbranch_scc1 K1_done')
        a('v_accvgpr_read_b32 v11, a%d\ns_nop 0\nv_rcp_f32 v11, v11\ns_nop 0' % (LACC + 4 * qt))
        for s in range(6):
            t = 32 + 8 * (s & 1)
            for e in range(2):
                for r in range(4): a('v_accvgpr_read_b32 v%d, a%d' % (t + 4 * e + r, oacc(2 * s + e, qt) + r))
            for r in range(8): a('v_mul_f32 v%d, v%d, v11' % (t + r, t + r))
            for h in range(4): a('v_cvt_pk_bf16_f32 v%d, v%d, v%d' % (t + h, t + 2 * h, t + 2 * h + 1))
            a('buffer_store_dwordx4 %s, v10, s[36:39], s%d offen offset:%d%s' % (vr(t), 56 + 2 * qt + (s >> 2), (s & 3) * 1024, opt.get('opol', '')))
    a('s_branch K1_done')
    return L

def end_bases():
    base = {'K': slot_of(10) * TS, 'V': slot_of(12) * TS}
    for n, (kind, j) in enumerate(TILES):
        if kind in 'KV':
            so = slot_of(n) * TS
            if not (0 <= so - base[kind] <= TS): base[kind] = so
    return base['K'], base['V']

def finish(seq, name, verbose=False):
    resolve_waits(seq)
    seq, nn = fix_hazards(seq, verbose)
    errs, info = check(seq, name)
    for e in errs[:20]: print('ERR', e)
    assert not errs, '%d errors' % len(errs)
    return seq, info, nn

def gen_k1(opt):
    pro, mid = k1_prologue(opt)
    opt = dict(opt); opt['mid'] = mid; opt['endbase'] = end_bases()
    out = []; infos = []
    pro, _ = fix_hazards(pro)
    for NQ in (4, 3):
        seq, over = k1_body(NQ, opt)
        seq += [I('s_cmp_lg_u32 s48, 0'), I('s_cbranch_scc1 K1_fb')]
        full, info, nn = finish(pro + seq, 'K1/NQ%d' % NQ, opt.get('verbose'))
        assert full[:len(pro)] == pro
        drop = str(opt.get('drop', '')).split(',')
        def keep(i, x):
            if i < len(pro) + 150: return True
            if opt.get('drop') and 'K1_fb' in x.txt: return False
            if 'dma' in drop and x.kind == 'vmem' and 'lds' in x.mods: return False
            if 'exp' in drop and x.op == 'v_exp_f32': return False
            if 'cvt' in drop and x.op == 'v_cvt_pk_bf16_f32': return False
            if 'ds' in drop and x.op.startswith('ds_read') and 'a[' in x.txt: return False
            if 'bar' in drop and x.kind == 'bar': return False
            return True
        full = [x for i, x in enumerate(full) if keep(i, x)]
        print('K1 NQ=%d: %d instrs, overflow %d, nops %d, est cycles %d' % (NQ, len(full), over, nn, est_cycles(full)))
        infos.append(info)
        if NQ == 4: out += full + [I('s_branch K1_done'), I('K1_w3:')]
        else: out += full[len(pro):]
    ce = cross_check(infos)
    for e in ce: print('ERR', e)
    assert not ce
    out.append(I('K1_done:'))
    if opt.get('stamps'): out += stamp_code('K1_st', 5)
    out += [I('s_endpgm')]
    fb, _, _ = finish(k1_fallback(opt), 'fb')
    out += fb
    return out

def kdesc(name, vgpr, sgpr, accum):
    return '''.section .rodata,"a"
.p2align 6
.amdhsa_kernel %s
  .amdhsa_next_free_vgpr %d
  .amdhsa_next_free_sgpr %d
  .amdhsa_accum_offset %d
  .amdhsa_group_segment_fixed_size 0
  .amdhsa_kernarg_size 64
  .amdhsa_user_sgpr_count 2
  .amdhsa_user_sgpr_kernarg_segment_ptr 1
  .amdhsa_system_sgpr_workgroup_id_x 1
.end_amdhsa_kernel
''' % (name, vgpr, sgpr, accum)

MACROS = {}
def compact(x):
    t = x.txt
    m = re.fullmatch(r'v_mfma_f32_16x16x32_bf16 ([va])\[(\d+):\d+\], ([va])\[(\d+):\d+\], ([va])\[(\d+):\d+\], (.*)', t)
    if m:
        dc, d, ac, a, bc, b, c = m.groups()
        o = lambda cl, n: '%s[\\%s:\\%s+3]' % (cl, n, n)
        if c == '0': suf, cs, extra = 'Z', '0', ''
        elif c == x.dreg: suf, cs, extra = '', o(dc, 'd'), ''
        else: suf, cs, extra = 'C', o(dc, 'c'), ',' + re.match(r'[va]\[(\d+)', c).group(1)
        nm = 'M' + dc + ac + bc + suf
        MACROS[nm] = '.macro %s d,a,b%s\nv_mfma_f32_16x16x32_bf16 %s, %s, %s, %s\n.endm\n' % (nm, ',c' if extra else '', o(dc, 'd'), o(ac, 'a'), o(bc, 'b'), cs)
        return '%s %s,%s,%s%s' % (nm, d, a, b, extra)
    m = re.fullmatch(r'ds_read_(b64_tr_b16|b128) ([va])\[(\d+):\d+\], v(\d+) offset:(\d+)', t)
    if m:
        k, dc, d, a, off = m.groups()
        nm = ('T' if k != 'b128' else 'R') + dc; w = 1 if k != 'b128' else 3
        MACROS[nm] = '.macro %s d,a,o\nds_read_%s %s[\\d:\\d+%d], v\\a offset:\\o\n.endm\n' % (nm, k, dc, w)
        return '%s %s,%s,%s' % (nm, d, a, off)
    m = re.fullmatch(r'v_exp_f32 v(\d+), v(\d+)', t)
    if m and m.group(1) == m.group(2):
        MACROS['EX'] = '.macro EX d\nv_exp_f32 v\\d, v\\d\n.endm\n'
        return 'EX %s' % m.group(1)
    m = re.fullmatch(r'v_cvt_pk_bf16_f32 v(\d+), v(\d+), v(\d+)', t)
    if m:
        MACROS['CV'] = '.macro CV d,a,b\nv_cvt_pk_bf16_f32 v\\d, v\\a, v\\b\n.endm\n'
        return 'CV %s,%s,%s' % m.groups()
    m = re.fullmatch(r's_waitcnt lgkmcnt\((\d+)\)', t)
    if m:
        MACROS['WL'] = '.macro WL n\ns_waitcnt lgkmcnt(\\n)\n.endm\n'
        return 'WL %s' % m.group(1)
    return t.replace(', ', ',')

def emit(kernels, comp=True):
    s = ''
    for name, grid, lds, seq, vg, acc in kernels:
        s += '; @launch kernel=%s grid=(%d,1,1) block=(256,1,1) lds=%d\n' % (name, grid, lds)
    s += '.amdgcn_target "amdgcn-amd-amdhsa--gfx950"\n'
    body = ''
    for name, grid, lds, seq, vg, acc in kernels:
        body += '.text\n.globl %s\n.p2align 8\n.type %s,@function\n%s:\n' % (name, name, name)
        body += '\n'.join((compact(x) if comp else x.txt) for x in seq) + '\n'
        body += kdesc(name, vg, 102, acc)
    return s + ''.join(MACROS.values()) + body

if __name__ == '__main__':
    import k2 as K2
    opt = {}
    outp = sys.argv[1]
    for a in sys.argv[2:]:
        k, v = a.split('=')
        try: v = int(v)
        except ValueError: v = v.replace('_', ' ')
        opt[k] = v
    ks = []
    if opt.get('k1', 1): ks.append(('standalone__gqa_block_cached__near_ridge_kernel', 256, 163840, gen_k1(opt), 512, 256))
    if opt.get('k2', 1): ks.append(K2.gen_k2(opt, finish))
    txt = emit(ks, opt.get('comp', 1))
    open(outp, 'w').write(txt)
    print(outp, len(txt), 'bytes')
```

```python
from sched import *

def vr(b, n=4): return 'v[%d:%d]' % (b, b + n - 1)
def ar(b, n=4): return 'a[%d:%d]' % (b, b + n - 1)
DEP = 6
WS = DEP * 4096

def gen_k2(opt, finish):
    L = []
    a = lambda t: L.extend(I(x) for x in t.strip().split('\n'))
    opol = opt.get('k2o', ''); wpol = opt.get('k2w', '')
    a('''s_cmp_lt_u32 s2, 240
s_cbranch_scc1 K2_go
s_endpgm
K2_go:
s_load_dwordx4 s[4:7], s[0:1], 32
s_load_dwordx2 s[18:19], s[0:1], 56''')
    if opt.get('stamps2'): a('s_memrealtime s[64:65]\ns_memtime s[68:69]')
    a('''v_lshrrev_b32 v29, 6, v0
v_and_b32 v30, 63, v0
v_readfirstlane_b32 s40, v29
s_and_b32 s46, s2, 7
s_lshr_b32 s47, s2, 3''')
    if opt.get('kmap', 0) == 0:
        a('''s_mul_i32 s52, s47, 26
s_lshr_b32 s52, s52, 8
s_mul_i32 s53, s52, 10
s_sub_u32 s47, s47, s53
s_mov_b32 s49, s47
s_mov_b32 s48, s52
s_mul_i32 s46, s46, 3
s_add_u32 s46, s46, s52''')
        R, C = 3, 10
    else:
        a('''s_mul_i32 s52, s47, 52
s_lshr_b32 s52, s52, 8
s_mul_i32 s53, s52, 5
s_sub_u32 s47, s47, s53
s_mov_b32 s49, s47
s_mov_b32 s48, s52
s_and_b32 s53, s46, 1
s_mul_i32 s53, s53, 5
s_add_u32 s47, s47, s53
s_lshr_b32 s46, s46, 1
s_mul_i32 s46, s46, 6
s_add_u32 s46, s46, s52''')
        R, C = 6, 5
    a('''v_mul_u32_u24 v31, 49152, v29
v_lshl_add_u32 v1, v30, 4, v31
v_add_u32 v2, 196608, v1
v_add_u32 v3, 393216, v1
v_add_u32 v4, 589824, v1
v_add_u32 v5, 786432, v1
v_lshrrev_b32 v31, 3, v30
v_and_b32 v32, 6, v31
v_and_b32 v33, 7, v30
v_xor_b32 v32, v32, v33
v_mul_u32_u24 v33, 1536, v29
v_add_u32 v31, v31, v33
v_mul_u32_u24 v31, 1280, v31
v_lshl_add_u32 v6, v32, 4, v31
v_add_u32 v7, 9216, v6
v_add_u32 v8, 18432, v6
v_add_u32 v9, 27648, v6
s_mul_i32 s41, s40, %d
s_mul_i32 s52, s46, 983040
s_lshl_b32 s53, s47, 7
s_mul_i32 s54, s46, 102400
s_add_u32 s54, s54, s53
s_sub_u32 s22, 23592960, s52
s_mov_b32 s23, 0x00020000
s_sub_u32 s26, 7864320, s53
s_mov_b32 s27, 0x00020000
s_sub_u32 s30, 2457600, s54
s_mov_b32 s31, 0x00020000
s_mov_b32 s42, 0
s_mov_b32 s43, 0
s_mov_b32 s44, 4096
s_waitcnt lgkmcnt(0)
s_add_u32 s20, s18, s52
s_addc_u32 s21, s19, 0
s_add_u32 s24, s4, s53
s_addc_u32 s25, s5, 0
s_add_u32 s28, s6, s54
s_addc_u32 s29, s7, 0''' % WS)
    mid = '''v_lshrrev_b32 v31, 2, v30
v_and_b32 v32, 6, v31
v_bfe_u32 v33, v30, 1, 1
v_xor_b32 v32, v32, v33
v_lshlrev_b32 v32, 4, v32
v_lshl_add_u32 v32, v31, 7, v32
v_and_b32 v33, 1, v30
v_lshl_add_u32 v32, v33, 3, v32
v_add_u32 v10, s41, v32
v_xor_b32 v11, 32, v10
v_xor_b32 v12, 64, v10
v_xor_b32 v13, 96, v10
v_lshlrev_b32 v31, 4, v30
v_add_u32 v14, s41, v31
v_lshl_add_u32 v15, v29, 10, v31
v_and_b32 v31, 15, v30
v_mul_u32_u24 v31, 1280, v31
v_lshrrev_b32 v32, 4, v30
v_lshl_add_u32 v31, v32, 3, v31
v_lshl_add_u32 v16, v29, 5, v31
s_mov_b32 s45, 7'''
    PF = opt.get('pf', -1)
    NO = 240 // C; NW = 192 // R
    pfs = '''s_mul_i32 s52, s49, %d
v_add_u32 v31, s52, v30
v_mul_u32_u24 v32, 1366, v31
v_lshrrev_b32 v32, 16, v32
v_mul_u32_u24 v33, 48, v32
v_sub_u32 v33, v31, v33
v_mul_u32_u24 v32, 196608, v32
v_lshl_add_u32 v32, v33, 7, v32
v_mul_u32_u24 v33, 49152, v29
v_add_u32 v18, v32, v33
v_mov_b32 v31, 0x7ffffff0
v_cmp_gt_u32 vcc, %d, v30
v_cndmask_b32 v18, v31, v18, vcc
s_mul_i32 s52, s48, %d
v_add_u32 v32, s52, v30
v_mul_u32_u24 v33, 1536, v29
v_add_u32 v32, v32, v33
v_mul_u32_u24 v19, 1280, v32
v_cmp_gt_u32 vcc, %d, v30
v_cndmask_b32 v19, v31, v19, vcc
s_mov_b32 s50, 6144
s_mov_b32 s51, 245760''' % (NO, NO, NW, NW)
    def pf():
        return [I('buffer_load_dword v20, v18, s[20:23], s50 offen%s' % opol), I('buffer_load_dword v21, v19, s[24:27], s51 offen%s' % wpol),
                I('s_add_u32 s50, s50, 6144'), I('s_add_u32 s51, s51, 245760')]
    OB = 128
    AF = 32
    def ofrag(u, qt): return OB + u * 20 + qt * 4
    def afrag(p, nt): return AF + p * 16 + nt * 4
    acc = lambda qt, nt: (qt * 4 + nt) * 4
    cnt = [0]
    W = {}; O = {}; T = {}
    ROT = opt.get('rot', 0)
    def adv(k):
        if not ROT: return [I('s_add_u32 s42, s42, 40960')]
        t = ['s_add_u32 s56, s56, 1', 's_cmp_eq_u32 s56, 12', 's_cselect_b32 s56, 0, s56']
        if (k + 1) % DEP == 0: t += ['s_add_u32 s57, s57, s58', 's_xor_b32 s58, s58, 12']
        t += ['s_add_u32 s59, s56, s57', 's_mul_i32 s42, s59, 40960', 's_lshl_b32 s43, s59, 10']
        return [I(x) for x in t]
    def ld_w(k):
        u = k % DEP
        reg = (u * 4096, u * 4096 + 4096, False, 'w%d' % k, 0)
        pre = [I('s_add_u32 m0, s41, %d' % (u * 4096))]
        W[k] = [I('buffer_load_dwordx4 v%d, s[24:27], s42 offen offset:%d%s lds' % (6 + t, 1024 * t, wpol), lds=reg) for t in range(4)]
        post = [] if ROT else adv(k)
        return pre, W[k], post
    def ld_o(k, qt):
        u = k % DEP
        x = I('buffer_load_dwordx4 %s, v%d, s[20:23], s%d offen offset:%d%s' % (vr(ofrag(u, qt)), 1 + qt, 43 if ROT else 43 + (u >> 2), 0 if ROT else (u & 3) * 1024, opol))
        O.setdefault(k, []).append(x)
        return x
    def rd_t(k):
        u = k % DEP
        reg = (u * 4096, u * 4096 + 4096, False, 'w%d' % k, 0)
        T[k] = [I('ds_read_b64_tr_b16 %s, v%d offset:%d' % (vr(afrag(k & 1, nt) + 2 * hh, 2), 10 + nt, u * 4096 + 2048 * hh), lds=reg) for nt in range(4) for hh in range(2)]
        return T[k]
    NK = 48
    if ROT:
        ra, rc = (4, 1) if R == 3 else (2, 5)
        a('''s_mul_i32 s56, s48, %d
s_mul_i32 s57, s49, %d
s_add_u32 s56, s56, s57
s_mul_i32 s57, s56, 43
s_lshr_b32 s57, s57, 9
s_mul_i32 s57, s57, 12
s_sub_u32 s56, s56, s57
s_mov_b32 s57, 0
s_mov_b32 s58, 0
s_mul_i32 s42, s56, 40960
s_lshl_b32 s43, s56, 10''' % (ra, rc))
    for k in range(DEP):
        p, w, q = ld_w(k); L += p
        for qt in range(5):
            if qt < 4: L.append(w[qt])
            L.append(ld_o(k, qt))
        L += q
        if ROT: L += adv(k)
        if k == 0: a(mid)
        if k == 0 and PF >= 0: a(pfs)
        if k == PF: L += pf()
    if not ROT: a('s_add_u32 s43, s43, 6144\ns_add_u32 s44, s44, 6144')
    L.append(WAIT(W[0])); L += rd_t(0)
    iters = []
    for it in range(NK // DEP):
        B = []
        for u in range(DEP):
            k = it * DEP + u
            nxt = k + DEP < NK
            B.append(WAIT(O[k] + (W[k + 1] if k + 1 < NK else []) + T[k]))
            fill = []
            if nxt:
                p, w, q = ld_w(k + DEP)
                fill = [p + [w[0]], [w[1]], [w[2]], [w[3]] + q]
            tr = rd_t(k + 1) if k + 1 < NK else []
            m = 0
            for qt in range(5):
                for nt in range(4):
                    d = ar(acc(qt, nt))
                    B.append(I('v_mfma_f32_16x16x32_bf16 %s, %s, %s, %s' % (d, vr(afrag(k & 1, nt)), vr(ofrag(u, qt)), d)))
                    if nt == 0 and qt < 4 and fill: B += fill[qt]
                    if nt in (1, 2) and qt < 4 and tr: B.append(tr[2 * qt + nt - 1])
                    if nt == 3 and nxt: B.append(ld_o(k + DEP, qt))
            if u == PF and nxt: B += pf()
            if ROT and nxt: B += adv(k + DEP)
            if u == DEP - 1 and nxt and not ROT:
                if opt.get('fix2'): B += [I('s_sub_u32 s42, s42, %d' % (40960 * DEP))]
                else: B += [I('s_add_u32 s43, s43, 6144'), I('s_add_u32 s44, s44, 6144')]
        iters.append(B)
    zero = [I('v_accvgpr_write_b32 a%d, 0' % i) for i in range(80)]
    wi = [i for i, x in enumerate(L) if x.op == 'WAIT'][0]
    L[wi:wi] = zero
    E = []
    e = lambda t: E.extend(I(x) for x in t.strip().split('\n'))
    wr = [I('ds_write_b128 v14, %s offset:%d' % (ar(4 * t), 1024 * t), lds=(0, 4 * WS, True, 'red', None)) for t in range(20)]
    E.append(I('s_nop 7'))
    E += wr
    E.append(WAIT(wr)); e('s_barrier')
    rd = {}
    for qt in range(5):
        for p in range(4):
            rd[qt, p] = I('ds_read_b128 %s, v%d offset:%d' % (vr(OB + qt * 16 + p * 4), 15 if p < 2 else 17, (p & 1) * WS + qt * 4096), lds=(0, 4 * WS, True, 'red', None))
    E.insert(0, I('v_add_u32 v17, %d, v15' % (2 * WS)))
    for qt in range(3):
        for p in range(4): E.append(rd[qt, p])
    for qt in range(5):
        b = OB + qt * 16
        E.append(WAIT([rd[qt, p] for p in range(4)]))
        if qt + 3 < 5:
            for p in range(4): E.append(rd[qt + 3, p])
        for r in range(4): e('v_add_f32 v%d, v%d, v%d\nv_add_f32 v%d, v%d, v%d' % (b + r, b + r, b + 4 + r, b + 8 + r, b + 8 + r, b + 12 + r))
        for r in range(4): e('v_add_f32 v%d, v%d, v%d' % (b + r, b + r, b + 8 + r))
        for h in range(2): e('v_cvt_pk_bf16_f32 v%d, v%d, v%d' % (b + h, b + 2 * h, b + 2 * h + 1))
        e('s_mov_b32 s52, %d' % (qt * 20480))
        e('buffer_store_dwordx2 %s, v16, s[28:31], s52 offen' % vr(b, 2))
    marks = [I('; it%d' % i) for i in range(len(iters) + 1)]
    lin = list(L)
    for i, B in enumerate(iters): lin += [marks[i]] + B
    lin += [marks[-1]] + E
    for x in wr: x.lds = None
    for x in rd.values(): x.lds = None
    lin, info, nn = finish(lin, 'K2')
    pos = [lin.index(m) for m in marks]
    seg = [lin[pos[i] + 1:pos[i + 1]] for i in range(len(iters))]
    for i in range(1, 7): assert [x.txt for x in seg[i]] == [x.txt for x in seg[0]], i
    out = lin[:pos[0]] + [I('K2_loop:')] + seg[0] + [I('s_sub_u32 s45, s45, 1'), I('s_cmp_lg_u32 s45, 0'), I('s_cbranch_scc1 K2_loop')] + seg[7] + lin[pos[-1] + 1:]
    d2 = str(opt.get('drop2', '')).split(',')
    if 'w' in d2: out = [x for x in out if not (x.kind == 'vmem' and 'lds' in x.mods)]
    if 'o' in d2: out = [x for x in out if not (x.op == 'buffer_load_dwordx4' and 'lds' not in x.mods)]
    if 'w' in d2 or 'o' in d2:
        import re
        f = (4.0 if 'o' in d2 else 5.0) / 9
        for x in out:
            m = re.search(r'vmcnt\((\d+)\)', x.txt)
            if m: x.txt = x.txt.replace(m.group(0), 'vmcnt(%d)' % int(int(m.group(1)) * f))
    if opt.get('stamps2'):
        import gen2 as gen
        out += gen.stamp_code('K2_st', 0)
    out.append(I('s_endpgm'))
    print('K2: %d instrs, nops %d' % (len(out), nn))
    return ('gqa_outproj_kernel', 240, 4 * WS, out, 512, 256)
```

```python
import re

TRANS = ('v_exp_f32', 'v_rcp_f32', 'v_log_f32', 'v_rsq_f32', 'v_sqrt_f32')
NODST_S = ('s_cmp', 's_waitcnt', 's_barrier', 's_nop', 's_branch', 's_cbranch', 's_endpgm', 's_setprio', 's_sleep', 's_bitcmp')

def regs_of(op):
    op = op.strip()
    if op.startswith('-'): op = op[1:]
    if op.startswith('|'): op = op.strip('|')
    m = re.fullmatch(r'([vas])(\d+)', op)
    if m: return [(m.group(1), int(m.group(2)))]
    m = re.fullmatch(r'([vas])\[(\d+):(\d+)\]', op)
    if m: return [(m.group(1), i) for i in range(int(m.group(2)), int(m.group(3)) + 1)]
    if op == 'vcc': return [('s', 106), ('s', 107)]
    if op == 'exec': return [('s', 126), ('s', 127)]
    if op == 'm0': return [('s', 124)]
    return []

class I:
    def __init__(self, txt, **kw):
        self.txt = txt.strip()
        self.lds = kw.get('lds')
        self.cover = kw.get('cover')
        self.note = kw.get('note')
        self.parse()
    def parse(self):
        t = self.txt
        self.rd = set(); self.wr = set(); self.cr = None; self.dreg = None
        if t.endswith(':') or t.startswith('.') or t.startswith(';'):
            self.kind = 'label'; self.op = ''; return
        t = re.sub(r'\s+op_sel\S*', '', t)
        sp = t.split(None, 1)
        op = self.op = sp[0]
        ops = []
        if len(sp) > 1:
            ops = [o.strip() for o in sp[1].split(',')]
            last = ops[-1].split()
            mods = last[1:]; ops[-1] = last[0]
        else:
            mods = []
        self.mods = mods
        R = lambda lst: set(r for o in lst for r in regs_of(o))
        if op == 'WAIT':
            self.kind = 'wait'
        elif op.startswith('v_mfma'):
            self.kind = 'mfma'; self.wr = R(ops[:1]); self.rd = R(ops[1:]); self.cr = R(ops[3:4]); self.ab = R(ops[1:3])
            self.dreg = ops[0]; self.creg = ops[3]
        elif op.startswith('ds_read'):
            self.kind = 'ds'; self.wr = R(ops[:1]); self.rd = R(ops[1:])
        elif op.startswith('ds_'):
            self.kind = 'ds'; self.rd = R(ops)
        elif op.startswith('buffer_load') or op.startswith('global_load'):
            self.kind = 'vmem'
            if 'lds' in mods: self.rd = R(ops) | {('s', 124)}
            else: self.wr = R(ops[:1]); self.rd = R(ops[1:])
        elif op.startswith('buffer_atomic') :
            self.kind = 'vmem'; self.rd = R(ops)
            if 'sc0' in mods: self.wr = R(ops[:1])
        elif op.startswith('buffer_store') or op.startswith('global_store'):
            self.kind = 'vmem'; self.rd = R(ops); self.sdata = R(ops[:1])
        elif op.startswith('buffer_'):
            self.kind = 'vmem'
        elif op.startswith('v_'):
            self.kind = 'trans' if op in TRANS else 'valu'
            if 'swap' in op: self.wr = R(ops); self.rd = R(ops)
            else:
                self.wr = R(ops[:1]); self.rd = R(ops[1:])
                if op.startswith('v_fmac') or op.startswith('v_mac'): self.rd |= self.wr
                if op.startswith('v_cndmask') and len(ops) == 3: self.rd |= {('s', 106), ('s', 107)}
                if op in ('v_add_co_u32', 'v_addc_co_u32'): self.wr = R(ops[:2]); self.rd = R(ops[2:])
        elif op.startswith('s_'):
            if op.startswith('s_waitcnt'): self.kind = 'wait'
            elif op == 's_barrier': self.kind = 'bar'
            elif op == 's_nop': self.kind = 'nop'; self.n = int(ops[0]) + 1
            elif op.startswith('s_load') or op.startswith('s_mem') or op.startswith('s_buffer_load'):
                self.kind = 'smem'; self.wr = R(ops[:1]); self.rd = R(ops[1:])
            elif op.startswith(NODST_S): self.kind = 'salu'; self.rd = R(ops)
            else:
                self.kind = 'salu'; self.wr = R(ops[:1]); self.rd = R(ops[1:])
                if 'saveexec' in op: self.wr |= {('s', 126), ('s', 127)}
        else:
            raise ValueError('unknown op: ' + t)
    def __repr__(self): return self.txt

def WAIT(cover): return I('WAIT', cover=list(cover))

class Job:
    seq = 0
    def __init__(self, ins, lo, hi, deps=(), first=False, name=''):
        self.ins = ins if isinstance(ins, I) else I(ins)
        self.lo = lo; self.hi = hi
        self.deps = [(d if isinstance(d, tuple) else (d, 1)) for d in deps if d is not None]
        self.gap = None; self.first = first; self.name = name
        self.hard = 10 ** 9; self.lo0 = 0; self.ord = -1; self.dummy = False; self.pin = None; self.key = None
        Job.seq += 1; self.seq = Job.seq
        k = self.ins.kind
        self.cls = 's' if k in ('salu', 'wait', 'bar', 'nop') else k

def verify(jobs):
    errs = []
    for j in jobs:
        if j.gap == -10: continue
        if j.gap > j.hard: errs.append('late %s gap %d hard %d' % (j.ins.txt, j.gap, j.hard))
        if j.gap < j.lo0: errs.append('early %s gap %d lo %d' % (j.ins.txt, j.gap, j.lo0))
        for d, dist in j.deps:
            if d.gap == -10: continue
            if d.ord >= j.ord: errs.append('dep %s (gap %d) <- %s (gap %d) dist %d' % (j.ins.txt, j.gap, d.ins.txt, d.gap, dist))
    return errs

def schedule(mf, jobs, verbose=False, urgent=6, slots_fn=None, regions=()):
    n = len(mf)
    for _ in range(50):
        ch = False
        for j in jobs:
            for d, dist in j.deps:
                if d.gap is None and d.hi > j.hi - dist:
                    d.hi = j.hi - dist; ch = True
        if not ch: break
    out = []
    pinned = {}
    for j in jobs:
        if j.pin is not None: pinned.setdefault(j.pin[0], []).append(j)
    pend = sorted([j for j in jobs if j.gap is None and j.pin is None], key=lambda j: (j.lo, j.seq))
    act = []; pi = 0; cyc = 0; over = 0
    ordc = [0]
    for g in range(n):
        while pi < len(pend) and pend[pi].lo <= g:
            act.append(pend[pi]); pi += 1
        out.append(mf[g])
        placed = []
        if any(a <= g < b for a, b in regions):
            for j in sorted(pinned.get(g, []), key=lambda j: j.pin[1]):
                j.gap = g; j.ord = ordc[0]; ordc[0] += 1; out.append(j.ins)
            continue
        def ready(j):
            for d, dist in j.deps:
                if d.gap is None or d.gap > g - dist: return False
            return True
        def take(j):
            j.gap = g; act.remove(j); placed.append(j); j.ord = ordc[0]; ordc[0] += 1
        def pick(pred):
            c = [j for j in act if pred(j) and ready(j)]
            return min(c, key=lambda j: (j.hi, j.seq)) if c else None
        j = pick(lambda j: j.cls == 's' and j.first) or pick(lambda j: j.cls == 's')
        if j: take(j)
        slots = slots_fn(g) if slots_fn else 2
        while True:
            j = pick(lambda j: j.cls == 's' and j.hi <= g)
            if not j: break
            take(j); slots -= 1
        vec_started = False
        if slots >= 1:
            cand = {c: pick(lambda j, c=c: j.cls == c) for c in ('ds', 'vmem', 'trans', 'valu')}
            if slots < 2: cand['trans'] = None
            ch = None
            urg = [c for c in ('vmem', 'trans') if cand[c] and cand[c].hi - g <= 1 and not (cand['ds'] and cand['ds'].hi <= cand[c].hi)]
            if urg: ch = min(urg, key=lambda c: cand[c].hi)
            elif cand['ds']: ch = 'ds'
            elif cand['vmem']: ch = 'vmem'
            elif cand['trans'] and not (cand['valu'] and cand['valu'].hi < cand['trans'].hi and cand['valu'].hi - g <= urgent): ch = 'trans'
            elif cand['valu']: ch = 'valu'
            if ch:
                take(cand[ch])
                slots -= 2 if ch in ('trans', 'vmem') else 1
                while slots >= 1:
                    j = pick(lambda j: j.cls == 'valu')
                    if not j: break
                    take(j); slots -= 1
        while slots >= 1:
            j = pick(lambda j: j.cls == 's')
            if not j: break
            take(j); slots -= 1
        while True:
            j = pick(lambda j: j.hi <= g)
            if not j: break
            take(j); over += 1
        late = [j for j in act if j.hi <= g]
        if late and verbose: print('gap', g, 'late (deps not ready):', [(j.ins.txt, j.hi) for j in late][:4])
        out.extend(j.ins for j in placed)
    left = sorted(act + pend[pi:], key=lambda j: (j.hi, j.seq))
    res = []
    g = n
    while left:
        for j in left:
            if all(d.gap is not None for d, _ in j.deps):
                j.gap = g + 100; g += 1; res.append(j.ins); left.remove(j); j.ord = ordc[0]; ordc[0] += 1; break
        else:
            raise RuntimeError('cyclic deps')
    return out, res, over

def est_cycles(seq):
    t = 0; lastm = -16; prev = None
    for x in seq:
        k = x.kind
        if k == 'label': continue
        if k == 'mfma':
            t = max(t, lastm + 16); lastm = t; t += 4
        elif k in ('valu', 'trans', 'ds', 'vmem'):
            t = max(t, lastm + 8)
            if k == 'ds' and prev in ('valu', 'trans'): t += 8
            if k == 'ds' and prev == 'ds': t += 4
            t += 8 if k in ('trans', 'vmem') else 4
        elif k == 'nop': t += 4 * x.n
        else: t += 4
        prev = k
    return t

def resolve_waits(seq):
    vm = []; lg = []
    for x in seq:
        if x.kind == 'vmem': vm.append(x)
        elif x.kind == 'ds': lg.append(x)
        elif x.op == 'WAIT':
            parts = []
            for q, nm, mx in ((vm, 'vmcnt', 63), (lg, 'lgkmcnt', 15)):
                ids = {id(y): i for i, y in enumerate(q)}
                idx = [ids[id(c)] for c in x.cover if id(c) in ids]
                if idx:
                    cnt = min(len(q) - 1 - max(idx), mx)
                    parts.append('%s(%d)' % (nm, cnt))
            for c in x.cover:
                assert any(c is y for y in vm) or any(c is y for y in lg), ('wait covers unissued op', c.txt)
            x.txt = 's_waitcnt ' + ' '.join(parts) if parts else 's_nop 0'
            x.parse()
        if len(vm) > 200: vm = vm[-100:]
        if len(lg) > 200: lg = lg[-100:]

def hazard(seq, i, x):
    k = x.kind
    isv = k in ('valu', 'trans')
    vr = lambda s: {r for r in s if r[0] in 'va'}
    sr = lambda s: {r for r in s if r[0] == 's'}
    st = 0; worst = 0; msg = ''
    for b in range(i - 1, -1, -1):
        y = seq[b]
        if y.kind == 'label': continue
        need = 0; why = ''
        yv = y.kind in ('valu', 'trans')
        def N(n_, w):
            nonlocal need, why
            if n_ > need: need = n_; why = w
        if yv and k == 'mfma' and vr(y.wr) & x.rd: N(2, 'valu->mfma')
        if y.kind == 'mfma':
            if k == 'mfma':
                if y.wr & x.ab: N(8, 'mfmaD->AB')
                if y.wr & x.cr and y.dreg != x.creg: N(6, 'mfmaD->C partial')
                if y.wr & x.wr and y.dreg != x.creg: N(8, 'mfma WAW')
            elif k in ('valu', 'trans', 'ds', 'vmem'):
                if y.wr & (x.rd | x.wr): N(8, 'mfmaD->use')
                if isv and y.cr & x.wr: N(3, 'mfmaC WAR')
        if y.kind == 'trans' and k == 'valu' and y.wr & x.rd: N(1, 'trans->valu')
        if yv and isv and vr(y.wr) & x.rd:
            if 'permlane' in x.op or 'dpp' in x.op: N(2, 'valu->permlane')
            if x.op in ('v_readfirstlane_b32', 'v_readlane_b32'): N(1, 'valu->readlane')
        if yv and sr(y.wr):
            if isv and sr(y.wr) & x.rd: N(2, 'valu sgpr->valu')
            if k == 'vmem' and sr(y.wr) & x.rd: N(5, 'valu sgpr->vmem')
            if k == 'salu' and sr(y.wr) & x.rd: N(1, 'valu sgpr->salu (conservative)')
        if y.kind == 'salu' and ('s', 124) in y.wr and k == 'vmem' and ('s', 124) in x.rd: N(1, 'm0->dma')
        if y.kind == 'vmem' and hasattr(y, 'sdata') and len(y.sdata) >= 3 and y.sdata & x.wr: N(2, 'store data WAR')
        if need - st > worst:
            worst = need - st; msg = '%s  <- %s : %s needs %d has %d' % (x.txt, y.txt, why, need, st)
        st += y.n if y.kind == 'nop' else 1
        if st >= 10: break
    return worst, msg

def fix_hazards(seq, verbose=False):
    out = []; tot = 0
    for x in seq:
        if x.kind != 'label':
            miss, msg = hazard(out, len(out), x)
            if miss > 0:
                out.append(I('s_nop %d' % (miss - 1))); tot += miss
                if verbose: print('  nop', miss, msg)
        out.append(x)
    return out, tot

def check(seq, name=''):
    errs = []
    seq = [x for x in seq if x.kind != 'label']
    vmq = []; lgq = []; smem = []
    nbar = 0
    done_bar = {}
    info = dict(fill_done={}, first_read={}, read_done={}, first_fill={}, region={})
    reads = []; fills = []
    def complete(y):
        y.done_bar = nbar
    for i, x in enumerate(seq):
        x.done_bar = None
        k = x.kind
        isv = k in ('valu', 'trans')
        vr = lambda s: {r for r in s if r[0] in 'va'}
        sr = lambda s: {r for r in s if r[0] == 's'}
        touch = x.rd | x.wr
        for q in (vmq, lgq, smem):
            for y in q:
                if y.wr & touch and not (y.op == 'buffer_load_dword' and x.op == y.op): errs.append('%s: [%d] %s touches pending dest of %s' % (name, i, x.txt, y.txt))
        if k == 'wait':
            m = re.search(r'vmcnt\((\d+)\)', x.txt)
            if m:
                c = int(m.group(1))
                while len(vmq) > c: complete(vmq.pop(0))
            m = re.search(r'lgkmcnt\((\d+)\)', x.txt)
            if m:
                c = int(m.group(1))
                if smem and c > 0: errs.append('%s: [%d] counted lgkm wait with smem outstanding' % (name, i))
                if c == 0: smem.clear()
                while len(lgq) > c: complete(lgq.pop(0))
        if k == 'bar': nbar += 1
        if k == 'vmem':
            vmq.append(x)
            if len(vmq) > 63: errs.append('%s: [%d] vmcnt overflow' % (name, i))
        if k == 'ds': lgq.append(x)
        if k == 'smem': smem.append(x)
        if x.lds is not None:
            lo, hi, shared, tag, part = x.lds
            x.at_bar = nbar
            isfill = (k == 'vmem') or x.op.startswith('ds_write')
            if not isfill:
                fl = [f for f in fills if f.lds[3] == tag]
                if not fl: errs.append('%s: [%d] read of unfilled tag %s' % (name, i, tag))
                for f in fl:
                    if f.done_bar is None: errs.append('%s: [%d] %s reads tag %s before fill complete' % (name, i, x.txt, tag))
                    elif shared and f.done_bar >= nbar: errs.append('%s: [%d] %s reads shared tag %s w/o barrier' % (name, i, x.txt, tag))
                for f in fills:
                    if f.lds[3] != tag and f.lds[0] < hi and lo < f.lds[1] and (shared or f.lds[2] or f.lds[4] == part) and fl and f.ord > fl[0].ord:
                        errs.append('%s: [%d] %s reads tag %s after overwritten by %s' % (name, i, x.txt, tag, f.lds[3]))
                info['first_read'].setdefault(tag, nbar)
                reads.append(x)
            else:
                for r_ in reads:
                    if r_.lds[3] != tag and r_.lds[0] < hi and lo < r_.lds[1] and (shared or r_.lds[2] or r_.lds[4] == part):
                        if r_.done_bar is None: errs.append('%s: [%d] fill %s over pending read of %s' % (name, i, tag, r_.lds[3]))
                        elif (shared or r_.lds[2]) and r_.done_bar >= nbar: errs.append('%s: [%d] fill %s over read of %s w/o barrier' % (name, i, tag, r_.lds[3]))
                info['first_fill'].setdefault(tag, nbar)
                info['region'][tag] = (lo, hi, shared)
                x.ord = len(fills)
                fills.append(x)
        miss, msg = hazard(seq, i, x)
        if miss > 0: errs.append('%s: [%d] %s' % (name, i, msg))
    for f in fills:
        t = f.lds[3]
        d = f.done_bar if f.done_bar is not None else 10 ** 9
        info['fill_done'][t] = max(info['fill_done'].get(t, -1), d)
    for r_ in reads:
        t = r_.lds[3]
        d = r_.done_bar if r_.done_bar is not None else 10 ** 9
        info['read_done'][t] = max(info['read_done'].get(t, -1), d)
    info['nbar'] = nbar
    return errs, info

def cross_check(infos):
    errs = []
    a = infos[0]
    if len(set(i['nbar'] for i in infos)) != 1: errs.append('barrier counts differ: %s' % [i['nbar'] for i in infos])
    tags = list(a['region'].keys())
    for t in tags:
        lo, hi, sh = a['region'][t]
        if sh:
            fd = max(i['fill_done'].get(t, -1) for i in infos)
            fr = min(i['first_read'].get(t, 10 ** 9) for i in infos)
            if fr < 10 ** 9 and fd >= fr: errs.append('cross RAW %s fill_done %d first_read %d' % (t, fd, fr))
        for u in tags:
            if u == t: continue
            lo2, hi2, sh2 = a['region'][u]
            if lo < hi2 and lo2 < hi and (sh or sh2) and tags.index(u) < tags.index(t):
                rd = max(i['read_done'].get(u, -1) for i in infos)
                ff = min(i['first_fill'].get(t, 10 ** 9) for i in infos)
                if rd >= ff: errs.append('cross WAR %s over %s read_done %d first_fill %d' % (t, u, rd, ff))
    return errs
```

```python
import sys, math, struct
from sched import *

INF = 10 ** 6
TS = 24576
XB0 = 98304
FLAG = 147456
STAMP_OFF = 0x10000000
def f2u(f): return struct.unpack('<I', struct.pack('<f', f))[0]
def vr(b, n=4): return 'v[%d:%d]' % (b, b + n - 1)
def ar(b, n=4): return 'a[%d:%d]' % (b, b + n - 1)

class Prog:
    def __init__(self, dlat=8):
        self.mf = []; self.jobs = []; self.lastw = {}; self.rds = {}; self.dlat = dlat
        self.pre = []; self.phase = -1; self.occ = {}
    def _conf(self, ins):
        c = []
        for r in ins.rd:
            if r in self.lastw: c.append((self.lastw[r], 'raw', r))
        for r in ins.wr:
            if r in self.lastw: c.append((self.lastw[r], 'waw', r))
            for x in self.rds.get(r, ()): c.append((x, 'war', r))
        return c
    def _rec(self, ins, who):
        for r in ins.rd: self.rds.setdefault(r, []).append(who)
        for r in ins.wr: self.lastw[r] = who; self.rds[r] = []
    def mfma(self, d, a, b, c):
        ins = I('v_mfma_f32_16x16x32_bf16 %s, %s, %s, %s' % (d, a, b, c))
        m = len(self.mf)
        for x, ty, r in self._conf(ins):
            if isinstance(x, Job):
                lim = m - 1
                if ty == 'raw' and x.cls in ('valu', 'trans'): lim = m - 3
                x.hi = min(x.hi, lim); x.hard = min(x.hard, m - 1)
        self.mf.append(ins); self._rec(ins, m)
        return m
    def job(self, ins, lo=0, hi=INF, deps=(), first=False, pre=False, dlat=None, name=None, phase=None, dummy=False, **kw):
        ins = ins if isinstance(ins, I) else I(ins, **kw)
        j = Job(ins, lo, hi, deps, first)
        ph = self.phase if phase is None else phase
        nm = name or ins.txt
        c = self.occ.get((ph, nm), 0); self.occ[ph, nm] = c + 1
        j.key = (ph, nm, c); j.dummy = dummy
        seen = set(id(d) for d, _ in j.deps)
        for x, ty, r in self._conf(ins):
            if isinstance(x, Job):
                if id(x) in seen: continue
                seen.add(id(x))
                dist = 1
                if x.cls == 'valu' and j.cls == 'valu': dist = 0
                if 'permlane' in ins.op and ty == 'raw': dist = 2
                if x.cls == 's' and j.cls == 's': dist = 0
                if ty == 'war' and hasattr(x.ins, 'sdata'): dist = 2
                j.deps.append((x, dist))
            else:
                y = self.mf[x]
                j.lo0 = max(j.lo0, x)
                if ty in ('raw', 'waw'): j.lo = max(j.lo, x + (dlat if dlat is not None else self.dlat))
                elif r in y.cr and j.cls in ('valu', 'trans'): j.lo = max(j.lo, x + 3)
                else: j.lo = max(j.lo, x)
        self._rec(ins, j)
        if pre:
            j.gap = -10; self.pre.append(ins)
        self.jobs.append(j)
        return j
    def n(self): return len(self.mf)

RING = 208; ONES = 240; LACC = 192
def qacc(T, qt): return 64 + ((T >> 1) * 4 + qt) * 8 + 4 * (T & 1)
def qfrag(s, qt): return 64 + (s * 4 + qt) * 8
_lows = [32 + 4 * k for k in range(8)] + [16 + 4 * k for k in range(4)]
_ups = [64 + 8 * k + 4 for k in range(24)]
SBLK = {}; PBLK = {}; NEGM = {}
for kt in range(4):
    for qt in range(4): SBLK[kt, qt] = _lows[kt * 4 + qt] if kt < 2 else _ups[4 + (kt - 2) * 4 + qt]
for qt in range(4): NEGM[qt] = _ups[qt]
_rest = _ups[12:] + _lows[8:]
for i, key in enumerate([(bf, kp, qt) for bf in range(2) for kp in range(2) for qt in range(4)]): PBLK[key] = _rest[i]
def oacc(dt, qt): return dt * 16 + qt * 4

TILES = [('W', n) for n in range(10)] + [('K', 0)]
for j in range(15): TILES += [('K', j + 1), ('V', j)]
TILES += [('V', 15)]
def slot_of(kind, j):
    if kind == 'W': return j % 4
    if kind == 'K': return 2 if j == 0 else (2 * j + 1) % 6
    return (2 * j + 4) % 6
WSTEP = 64 * 12288
LOOPS = [(1, 2, 7, 1), (13, 4, 40, 3)]

def wrap(reg, step, n):
    return ['s_add_u32 s10, %s, %d' % (reg, step), 's_sub_u32 s11, s10, %d' % (n * step), 's_min_u32 %s, s10, s11' % reg]

def k1_build(NQ, opt):
    P = Prog()
    nt = ' nt' if opt.get('nt', 1) else ''
    wpol = opt.get('wpol', '')
    GL = 2 * NQ
    dmas = {}; plan = []
    def dma_group(tag, region, sc, lst, at, spc, deps, dummy=False):
        ins = [I(t, lds=region) for t in lst]
        dmas.setdefault(tag, []).extend(ins)
        if at is None:
            for t in sc: P.job(t, pre=True)
            for x in ins: P.job(x, pre=True)
        else: plan.append((at, len(plan), sc, ins, spc, deps, P.phase, dummy))
    def flush_plan():
        for at, _, sc, ins, spc, deps, ph, dummy in sorted(plan, key=lambda e: e[:2]):
            for t in sc: P.job(t, lo=max(at - 6, 0), phase=ph, dummy=dummy)
            for i, x in enumerate(ins):
                t = int(at + i * spc)
                P.job(x, lo=t, hi=t + 2, deps=deps, phase=ph, dummy=dummy)
        plan.clear()
    def dma_tile(tile, at, spc=0, deps=(), dyn=True):
        kind, j = tile; so = slot_of(kind, j) * TS
        reg = (so, so + TS, True, tile, None)
        for half in range(2):
            if kind == 'W':
                lst = ['buffer_load_dwordx4 v%d, s[24:27], s43 offen offset:%d%s lds' % (22 + t, 1024 * t, wpol) for t in range(3)]
                m0 = 's_add_u32 m0, s12, %d' % ((j & 1) * TS + half * 3072) if dyn else 's_add_u32 m0, s41, %d' % (so + half * 3072)
                sc = [m0, 's_add_u32 s43, s13, %d' % (half * 8 * 12288)]
                if half:
                    sc += wrap('s13', WSTEP, 10)
                    if dyn and (j & 1): sc += ['s_sub_u32 s12, s15, s12']
            else:
                srd = 's[28:31]' if kind == 'K' else 's[32:35]'
                lst = ['buffer_load_dwordx4 v%d, %s, s43 offen offset:%d%s lds' % (7 + t, srd, 1024 * t, nt) for t in range(3)]
                if dyn:
                    dst, off = ('s16', 's4') if kind == 'K' else ('s17', 's5')
                    sc = ['s_add_u32 m0, %s, %d' % (dst, half * 3072), 's_add_u32 s43, %s, %d' % (off, half * 3072)]
                    if half: sc += ['s_add_u32 %s, %s, %d' % (off, off, TS)]
                else:
                    sc = ['s_add_u32 m0, s41, %d' % (so + half * 3072), 's_mov_b32 s43, %d' % (j * TS + half * 3072)]
            dma_group(tile, reg, sc, lst, None if at is None else int(at + half * 3 * spc), spc, deps, dummy=(j > 15))
    def xreg(n, qt): return (XB0 + (n & 1) * 32768, XB0 + (n & 1) * 32768 + 32768, False, 'X%d_%d' % (n, qt), qt)
    def dma_x(n, qt, at, spc=0, deps=(), last=NQ - 1):
        half = qt >> 1
        lst = ['buffer_load_dwordx4 v%d, s[20:23], s43 offen offset:%d%s lds' % (25 + t, 1024 * t, wpol) for t in (2 * (qt & 1), 2 * (qt & 1) + 1)]
        sc = ['s_add_u32 m0, s42, %d' % ((n & 1) * 32768 + half * 4096), 's_add_u32 s43, s14, %d' % (half * 40960)]
        if qt == last: sc += wrap('s14', 128, 10)
        dma_group('X%d_%d' % (n, qt), xreg(n, qt), sc, lst, at, spc, deps)
    def xfrag(n, u, qt): return (n & 1) * 32 + (u * 4 + qt) * 4
    def x_reads(n, qt, lo, hi, deps, pre=False):
        return [P.job(I('ds_read_b128 %s, v%d offset:%d' % (ar(xfrag(n, u, qt)), 20 + u, (n & 1) * 32768 + qt * 2048), lds=xreg(n, qt)), lo=lo, hi=hi, deps=deps, pre=pre) for u in range(2)]
    def reads_txt(n, g):
        kind, j = TILES[n]; so = slot_of(kind, j) * TS; rb = RING + (g % 4) * 8
        reg = (so, so + TS, True, TILES[n], None); out = []
        if kind == 'W':
            s, e = g >> 1, g & 1
            areg = 16 + (s & 1); o = (j & 1) * TS + 128 * (s >> 1) + 8 * e
            for u in range(2):
                for hh in range(2):
                    out.append(I('ds_read_b64_tr_b16 %s, v%d offset:%d' % (ar(rb + 4 * u + 2 * hh, 2), areg, o + 1536 * hh + 12288 * u), lds=reg))
        elif kind == 'K':
            kt, sp = g // 3, g % 3
            for e in range(2):
                out.append(I('ds_read_b128 %s, v%d offset:%d' % (ar(rb + 4 * e), 1 + e, 128 * sp + 6144 * kt), lds=reg))
        else:
            for kp in range(2):
                for hh in range(2):
                    out.append(I('ds_read_b64_tr_b16 %s, v%d offset:%d' % (ar(rb + 4 * kp + 2 * hh, 2), 3 + (g & 3), 128 * (g >> 2) + 6144 * hh + 12288 * kp), lds=reg))
        return out

    start = {}; pos = 0
    for n, (kind, j) in enumerate(TILES):
        start[n] = pos
        if kind == 'V': pos += GL
        for g in range(12): start[n, g] = pos; pos += GL
    total = pos; start[42] = pos
    def prev_end(n, g, back):
        k = n * 12 + g - back
        if k < 0: return -1
        return start[k // 12, k % 12] + GL - 1

    def pstamp(k):
        if opt.get('sstamp'):
            for t in ('s_memrealtime s[%d:%d]' % (72 + 4 * k, 73 + 4 * k), 's_memtime s[%d:%d]' % (74 + 4 * k, 75 + 4 * k), 's_waitcnt lgkmcnt(0)'): P.job(t, pre=True)
    pstamp(1)
    for qt in range(4): dma_x(0, qt, None, last=3)
    dma_tile(('W', 0), None, dyn=False)
    for t in opt['mid']: P.job(t, pre=True)
    pstamp(2)
    P.job('; touch', pre=True)
    pstamp(3)
    for qt in range(NQ): dma_x(1, qt, None)
    PW1 = opt.get('pw1', 1)
    if PW1: dma_tile(('W', 1), None, dyn=False)
    P.job(WAIT(sum((dmas['X0_%d' % qt] for qt in range(NQ)), [])), pre=True)
    xr = {(0, qt): x_reads(0, qt, 0, 0, [], pre=True) for qt in range(NQ)}
    P.job(WAIT(dmas['W', 0]), pre=True)
    bar = {0: P.job('s_barrier', pre=True)}
    after_bar = {n: [('W', n + 2)] for n in range(1, 8)}
    after_bar[8] = [('K', 0), ('V', 0)]; after_bar[9] = [('K', 1), ('K', 2)]; after_bar[10] = [('V', 1)]; after_bar[11] = [('K', 3)]
    for n in range(12, 42):
        kind, j = TILES[n - 1]
        after_bar[n] = [('V', j + 1) if kind == 'K' else ('K', j + 4)]
    after_bar[41] = []
    waitjob = {}
    stamps = opt.get('stamps')
    def stamp(k, at):
        if stamps:
            a = P.job('s_memrealtime s[%d:%d]' % (72 + 4 * k, 73 + 4 * k), lo=at, hi=at); a.cls = 's'
            b = P.job('s_memtime s[%d:%d]' % (74 + 4 * k, 75 + 4 * k), lo=at, hi=at, deps=[(a, 0)]); b.cls = 's'
            P.job('s_waitcnt lgkmcnt(0)', lo=at, hi=at, deps=[(b, 0)])

    def softmax(j, sub_kt=0):
        for kt in range(4):
            for qt in range(NQ):
                sb = SBLK[kt, qt]; pb = PBLK[j & 1, kt >> 1, qt] + 2 * (kt & 1)
                if kt < sub_kt:
                    for r in range(4): P.job('v_add_f32 v%d, v%d, v%d' % (sb + r, sb + r, NEGM[qt]))
                for r in range(4): P.job('v_exp_f32 v%d, v%d' % (sb + r, sb + r))
                for h in range(2): P.job('v_cvt_pk_bf16_f32 v%d, v%d, v%d' % (pb + h, sb + 2 * h, sb + 2 * h + 1))
    def advance(ring, lo, dummy):
        pos, dst, dl, regs = ('s6', 's16', 's8', (1, 2)) if ring == 'K' else ('s7', 's17', 's9', (3, 4, 5, 6))
        for t in ['s_add_u32 %s, s41, %s' % (dst, pos), 's_add_u32 s10, %s, %d' % (pos, 2 * TS), 's_sub_u32 s11, s10, %d' % (6 * TS),
                  's_min_u32 s10, s10, s11', 's_sub_u32 %s, s10, %s' % (dl, pos), 's_mov_b32 %s, s10' % pos]:
            P.job(t, lo=lo, dummy=dummy)
        for r in regs: P.job('v_add_u32 v%d, %s, v%d' % (r, dl, r), lo=lo, dummy=dummy)
    SUBKT = opt.get('subkt', 3)
    tmpblk = []
    for n, (kind, j) in enumerate(TILES):
        P.phase = n
        if kind == 'W' and n > 0 and n % 2 == 0:
            for r in (16, 17): P.job('v_xor_b32 v%d, 0xc000, v%d' % (r, r))
        if n == 11:
            for r in (1, 2): P.job('v_add_u32 v%d, %d, v%d' % (r, TS, r))
        if n == 41: advance('V', 0, False)
        if kind == 'V':
            for qt in range(NQ):
                for kp in range(2):
                    P.mfma(ar(LACC + 4 * qt), ar(ONES), vr(PBLK[j & 1, kp, qt]), '0' if (j == 0 and kp == 0) else ar(LACC + 4 * qt))
            if j == 15:
                RL = NEGM[0]
                for qt in range(NQ):
                    P.job('v_accvgpr_read_b32 v%d, a%d' % (RL + qt, LACC + 4 * qt), dlat=4)
                    P.job('v_cmp_nge_f32 s[%d:%d], s45, v%d' % (48 + 2 * qt, 49 + 2 * qt, RL + qt))
                    P.job('v_rcp_f32 v%d, v%d' % (RL + qt, RL + qt))
                for qt in range(1, NQ): P.job('s_or_b64 s[48:49], s[48:49], s[%d:%d]' % (48 + 2 * qt, 49 + 2 * qt))
                P.job('s_or_b32 s48, s48, s49')
                P.job('v_mov_b32 v11, s48')
                freg = (FLAG, FLAG + 16, True, 'flag', None)
                fw = P.job(I('ds_write_b32 v12, v11', lds=freg), hi=start[n, 4])
                w1 = P.job(WAIT([fw.ins]), lo=start[n, 6] - 1, hi=start[n, 6] - 1, deps=[fw])
                b1 = P.job('s_barrier', lo=start[n, 6] - 1, hi=start[n, 6] - 1, deps=[(w1, 0)])
                fr = P.job(I('ds_read_b128 v[12:15], v13', lds=freg), deps=[b1], hi=start[n, 7])
                w2 = P.job(WAIT([fr.ins]), lo=start[n, 9], deps=[(fr, 8)])
                P.job('v_or_b32 v12, v12, v13', deps=[w2])
                P.job('v_or3_b32 v12, v12, v14, v15', deps=[w2])
                P.job('v_readfirstlane_b32 s48, v12')
                tmpblk = [SBLK[a, b] for a in range(4) for b in range(4)] + [PBLK[0, a, b] for a in range(2) for b in range(4)]
        for g in range(12):
            k = n * 12 + g
            st = start[n, g]
            pre = k < 3
            deps = [(bar[n], 0)]
            lo = max(prev_end(n, g, 4), 0)
            rj = [P.job(x, lo=lo, hi=lo + GL + 2, deps=deps, pre=pre) for x in reads_txt(n, g)]
            cover = [x.ins for x in rj]
            wd = list(rj)
            xq = g // 2 if (kind == 'W' and g % 2 == 0 and g // 2 < NQ and n + 1 <= 9) else None
            xd = g // 2 - 1 if (kind == 'W' and g % 2 == 0 and 0 <= g // 2 - 1 < NQ and n + 1 <= 9) else None
            if k == 0:
                for qt in range(NQ): cover += [x.ins for x in xr[0, qt]]
            if xd is not None: cover += [x.ins for x in xr[n + 1, xd]]; wd += xr[n + 1, xd]
            if g == 9 and n + 1 < 42: cover += dmas[TILES[n + 1]]
            if xq is not None and k > 0: cover += dmas['X%d_%d' % (n + 1, xq)]
            wj = P.job(WAIT(cover), lo=st - 1, hi=st - 1, deps=wd, first=True, pre=(k == 0), name='W%d' % g)
            waitjob[n, g] = wj
            if g == 1 and 11 <= n <= 40: advance('V' if kind == 'K' else 'K', st, n >= 40)
            if g == 9 and n + 1 < 42:
                bar[n + 1] = P.job('s_barrier', lo=st - 1, hi=st - 1, deps=[(wj, 0)])
                tl = after_bar[n + 1]
                span = opt.get('spw', 5) if n + 1 < 8 else opt.get('spa', 11)
                for i, t in enumerate(tl):
                    spc = span * GL / (6.0 * len(tl))
                    dma_tile(t, st + 4 + i * 6 * spc, spc, [bar[n + 1]], dyn=(n < 7 or n >= 11))
                if n >= 9: flush_plan()
            if xq is not None:
                wx = wj
                if k == 0: wx = P.job(WAIT(dmas['X1_0']), lo=GL - 3, hi=GL - 3, name='WX')
                xr[n + 1, xq] = x_reads(n + 1, xq, st - 1, st + GL + 2, [(wx, 0)])
            if k == 0:
                sp0 = GL / 2.0; at = 1; P.phase = -5
                if not PW1: sp0 = GL / 3.0; dma_tile(('W', 1), at, sp0, dyn=False); at += 6 * sp0
                for qt in range(NQ): dma_x(2, qt, at, sp0); at += 2 * sp0
                dma_tile(('W', 2), at, sp0, dyn=False); x3at = at + 6 * sp0; P.phase = 0
            if xd is not None and n + 3 <= 9:
                if n == 0:
                    x3at = max(x3at, st + 4); dma_x(3, xd, x3at, 2, [wj]); x3at += 4
                else: dma_x(n + 3, xd, st + 4, GL if xd < 3 else GL // 2, [wj])
            if opt.get('pfv') and 1 <= n <= 6 and g in ((3,), (3, 7), (1, 3, 7))[opt['pfv'] - 1]:
                P.job('buffer_load_dword v18, v19, s[32:35], s100 offen%s' % opt.get('pfpol', ''), lo=st + 2, hi=st + GL)
                P.job('s_add_u32 s100, s100, %d' % opt.get('pfs', 57344), lo=st + 2)
            sl = [int(z) for z in str(opt.get('sl', '0,10,12,41')).split(',')]
            if g == 0 and n in sl: stamp(1 + sl.index(n), st)
            rb = RING + (g % 4) * 8
            for qt in range(NQ):
                for e in range(2):
                    A = ar(rb + 4 * e)
                    if kind == 'W':
                        d = vr(qacc(g, qt)); P.mfma(d, A, ar(xfrag(n, e, qt)), '0' if (n == 0 and e == 0) else d)
                    elif kind == 'K':
                        kt, sp = g // 3, g % 3
                        d = vr(SBLK[kt, qt]); c = d
                        if sp == 0 and e == 0: c = '0' if (j == 0 and kt < SUBKT) else vr(NEGM[qt])
                        P.mfma(d, A, vr(qfrag(2 * sp + e, qt)), c)
                    else:
                        d = ar(oacc(g, qt)); P.mfma(d, A, vr(PBLK[j & 1, e, qt]), '0' if (j == 0 and e == 0) else d)
            if n == 9:
                for qt in range(NQ):
                    b = qacc(g, qt)
                    for r in range(4): P.job('v_mul_f32 v%d, s44, v%d' % (b + r, b + r), dlat=5)
                    for h in range(2): P.job('v_cvt_pk_bf16_f32 v%d, v%d, v%d' % (qfrag(g >> 1, qt) + 2 * (g & 1) + h, b + 2 * h, b + 2 * h + 1))
            if n == 10 and g == 2:
                for qt in range(NQ):
                    sb = SBLK[0, qt]; t = PBLK[1, 0, qt]
                    P.job('v_max3_f32 v%d, v%d, v%d, v%d' % (t, sb, sb + 1, sb + 2), dlat=5)
                    P.job('v_max_f32 v%d, v%d, v%d' % (t, t, sb + 3), dlat=5)
                    P.job('v_mov_b32 v%d, v%d' % (t + 1, t))
                    P.job('v_permlane32_swap_b32 v%d, v%d' % (t, t + 1))
                    P.job('v_max_f32 v%d, v%d, v%d' % (t, t, t + 1))
                    P.job('v_mov_b32 v%d, v%d' % (t + 1, t))
                    P.job('v_permlane16_swap_b32 v%d, v%d' % (t, t + 1))
                    P.job('v_max_f32 v%d, v%d, v%d' % (t, t, t + 1))
                    for r in range(4): P.job('v_sub_f32 v%d, 0, v%d' % (NEGM[qt] + r, t))
            if n == 41:
                for qt in range(NQ):
                    key = (g >> 1) * NQ + qt
                    t0 = tmpblk[(2 * key) % len(tmpblk)]; t = t0 if (g & 1) == 0 else tmpblk[(2 * key + 1) % len(tmpblk)]
                    for r in range(4): P.job('v_accvgpr_read_b32 v%d, a%d' % (t + r, oacc(g, qt) + r), dlat=5)
                    for r in range(4): P.job('v_mul_f32 v%d, v%d, v%d' % (t + r, t + r, NEGM[0] + qt))
                    for h in range(2): P.job('v_cvt_pk_bf16_f32 v%d, v%d, v%d' % (t0 + 2 * (g & 1) + h, t + 2 * h, t + 2 * h + 1))
                    if g & 1:
                        s = g >> 1
                        P.job('buffer_store_dwordx4 %s, v10, s[36:39], s%d offen offset:%d%s' % (vr(t0), 56 + 2 * qt + (s >> 2), (s & 3) * 1024, opt.get('opol', '')))
        if kind == 'K': softmax(j, SUBKT if j == 0 else 0)
    assert P.n() == total
    w0i = waitjob[0, 0].ins
    P.pre.remove(w0i); P.pre.append(w0i)
    P.start = start
    return P

def k1_body(NQ, opt):
    dense = opt.get('dense', 5)
    def run(P, regions):
        slots_fn = lambda g: dense if g >= P.start[41, 1] else 2
        return schedule(P.mf, P.jobs, verbose=opt.get('verbose'), slots_fn=slots_fn, regions=regions)
    P1 = k1_build(NQ, opt); run(P1, ())
    st = P1.start
    P = k1_build(NQ, opt)
    regions = []
    for n0, pn, n1, ref in LOOPS:
        L0 = st[n0]; T = st[n0 + pn] - L0; L1 = st[n1]
        regions.append((L0, L1))
        cls = {}
        for j in P1.jobs:
            if L0 + ref * T <= j.gap < L0 + (ref + 1) * T:
                ph, nm, c = j.key
                k = ((ph - n0) % pn, nm, c)
                assert k not in cls, ('duplicate class', k)
                cls[k] = (j.gap - L0 - ((ph - n0) // pn) * T, j.ord)
        for j in P.jobs:
            if j.gap is not None: continue
            ph, nm, c = j.key
            if not (n0 - pn <= ph < n1 + pn): continue
            k = ((ph - n0) % pn, nm, c)
            if k in cls:
                p = L0 + ((ph - n0) // pn) * T + cls[k][0]
                if L0 <= p < L1: j.pin = (p, cls[k][1]); j.lo = j.hi = p
                elif p < L0: j.hi = min(j.hi, L0 - 1)
                else: j.lo = max(j.lo, L1)
            else:
                assert not (n0 <= ph < n1), ('no class for', j.key)
        for j in P.jobs:
            if j.gap is None and j.pin is None:
                if j.key[0] < n0: j.hi = min(j.hi, L0 - 1) if j.lo < L1 else j.hi
                elif j.key[0] >= n1: j.lo = max(j.lo, L1)
    for j in P.jobs:
        if j.dummy and j.pin is None: j.gap = -10
    body, left, over = run(P, regions)
    errs = verify(P.jobs)
    for e in errs[:20]: print('ERR', e)
    assert not errs
    marks = []
    idx = {id(m): i for i, m in enumerate(P.mf)}
    seq = []
    want = {}
    for li, (n0, pn, n1, ref) in enumerate(LOOPS):
        L0 = st[n0]; T = st[n0 + pn] - L0; L1 = st[n1]
        ex = (L1 - L0) % T
        for p in range(L0, L1 + 1, T):
            want.setdefault(p, []).append((li, 'it'))
            if ex and p + ex <= L1: want.setdefault(p + ex, []).append((li, 'ex'))
    for x in body:
        i = idx.get(id(x))
        if i is not None and i in want:
            for li, w in want[i]:
                m = I('; L%d %s' % (li, w)); m.mark = (li, w); seq.append(m)
        seq.append(x)
    return P.pre + seq + left, over

def fold(seq, tag):
    out = list(seq)
    for li, (n0, pn, n1, ref) in enumerate(LOOPS):
        pos = [i for i, x in enumerate(out) if getattr(x, 'mark', None) == (li, 'it')]
        exs = [i for i, x in enumerate(out) if getattr(x, 'mark', None) == (li, 'ex')]
        segs = [out[pos[i]:pos[i + 1]] for i in range(len(pos) - 1)]
        end = pos[-1]
        if exs: segs.append(out[pos[-1]:exs[-1]]); end = exs[-1]
        for s in segs[1:]:
            for a, b in zip(segs[0], s): assert a.txt == b.txt, (tag, li, a.txt, b.txt)
            assert len(s) == len(segs[0]) or (exs and s is segs[-1])
        nit = len(pos) - 1
        lab = '%s_L%d' % (tag, li)
        body = segs[0][1:]
        if exs:
            e = exs[0] - pos[0] - 1
            body = body[:e] + [I('s_cmp_eq_u32 s3, %d' % nit), I('s_cbranch_scc1 %s_x' % lab), I('s_add_u32 s3, s3, 1')] + body[e + 1:] + [I('s_branch %s' % lab), I('%s_x:' % lab)]
        else:
            body = body + [I('s_add_u32 s3, s3, 1'), I('s_cmp_lg_u32 s3, %d' % nit), I('s_cbranch_scc1 %s' % lab)]
        out = out[:pos[0]] + [I('s_mov_b32 s3, 0'), I('%s:' % lab)] + body + out[end + 1:]
    return out

def unify(seq):
    for li in range(len(LOOPS)):
        pos = [i for i, x in enumerate(seq) if getattr(x, 'mark', None) == (li, 'it')]
        exs = [i for i, x in enumerate(seq) if getattr(x, 'mark', None) == (li, 'ex')]
        ends = pos[1:] + ([exs[-1]] if exs else [])
        segs = [seq[a:b] for a, b in zip(pos, ends)]
        for k in range(len(segs[0])):
            col = [s[k] for s in segs if k < len(s)]
            if getattr(col[0], 'cover', None) is None: continue
            c = {}
            for x in col:
                for nm, v in re.findall(r'(vmcnt|lgkmcnt)\((\d+)\)', x.txt): c[nm] = min(c.get(nm, 99), int(v))
            t = 's_waitcnt ' + ' '.join('%s(%d)' % (nm, c[nm]) for nm in ('vmcnt', 'lgkmcnt') if nm in c) if c else 's_nop 0'
            if len(set(x.txt for x in col)) > 1: print('   unified', sorted(set(x.txt for x in col)), '->', t)
            for x in col: x.txt = t; x.parse()

def k1_prologue(opt):
    L = []
    a = lambda t: L.extend(I(x) for x in t.strip().split('\n'))
    a('''s_cmp_lt_u32 s2, 256
s_cbranch_scc1 K1_go
s_endpgm
K1_go:
s_load_dwordx8 s[4:11], s[0:1], 0
s_load_dwordx2 s[18:19], s[0:1], 56''')
    if opt.get('stamps'): a('s_memrealtime s[64:65]\ns_memtime s[68:69]')
    a('''v_lshrrev_b32 v29, 6, v0
v_and_b32 v30, 63, v0
v_readfirstlane_b32 s40, v29''')
    if opt.get('map', 0) == 0:
        a('s_and_b32 s46, s2, 7\ns_lshr_b32 s47, s2, 3')
    else:
        a('''s_and_b32 s46, s2, 1
s_lshl_b32 s46, s46, 2
s_bfe_u32 s52, s2, 0x20003
s_or_b32 s46, s46, s52
s_bfe_u32 s47, s2, 0x20001
s_lshl_b32 s47, s47, 3
s_lshr_b32 s52, s2, 5
s_or_b32 s47, s47, s52''')
    if not opt.get('qrot', 1): a('s_mov_b32 s13, 0')
    elif opt.get('map', 0) == 0: a('s_mul_i32 s52, s47, 26\ns_lshr_b32 s52, s52, 8\ns_mul_i32 s52, s52, 10\ns_sub_u32 s13, s47, s52')
    else: a('''s_bfe_u32 s53, s2, 0x10003
s_mul_i32 s53, s53, 5
s_add_u32 s52, s52, s53
s_bfe_u32 s53, s2, 0x10004
s_lshl_b32 s53, s53, 1
s_add_u32 s52, s52, s53
s_sub_u32 s53, s52, 10
s_min_u32 s13, s52, s53''')
    a('s_lshl_b32 s14, s13, 7\ns_mul_i32 s13, s13, %d' % WSTEP)
    a('''v_lshrrev_b32 v31, 3, v30
v_and_b32 v32, 6, v31
v_and_b32 v33, 7, v30
v_xor_b32 v32, v32, v33
v_lshl_add_u32 v31, v29, 6, v31
v_mul_u32_u24 v31, 1280, v31
v_lshl_add_u32 v25, v32, 4, v31
v_add_u32 v26, 9216, v25
v_add_u32 v27, 18432, v25
v_add_u32 v28, 27648, v25''')
    a('v_mul_u32_u24 v34, 6144, v29\nv_lshlrev_b32 v35, 4, v29')
    for t in range(3):
        a('''v_add_u32 v31, %d, v30
v_mul_u32_u24 v32, 171, v31
v_lshrrev_b32 v32, 12, v32
v_mul_u32_u24 v33, 24, v32
v_sub_u32 v33, v31, v33
v_lshlrev_b32 v36, 1, v32
v_and_b32 v36, 4, v36
v_xor_b32 v33, v33, v36
v_add_u32 v36, v35, v32
v_mul_u32_u24 v36, 12288, v36
v_lshl_add_u32 v33, v33, 4, v36
v_subrev_u32 v%d, %d, v33
v_and_b32 v32, 6, v32
v_xor_b32 v32, v32, v30
v_lshl_add_u32 v%d, v32, 4, v34''' % (64 * t, 22 + t, 1024 * t, 7 + t))
    a('''s_mul_i32 s41, s40, 6144
s_lshl_b32 s42, s40, 13
s_add_u32 s42, s42, %d
s_mul_i32 s52, s46, 307200
s_mul_i32 s53, s47, 384
s_lshl_b32 s54, s46, 5
s_add_u32 s54, s54, s47
s_mul_i32 s54, s54, 393216
s_mul_i32 s55, s46, 2880
s_mul_i32 s56, s47, 6
s_add_u32 s55, s55, s56
s_lshl_b32 s55, s55, 10
s_mov_b32 s22, 307200
s_mov_b32 s23, 0x00020000
s_sub_u32 s26, 7864320, s53
s_mov_b32 s27, 0x00020000
s_mov_b32 s30, 393216
s_mov_b32 s31, 0x00020000
s_mov_b32 s34, 393216
s_mov_b32 s35, 0x00020000
s_sub_u32 s38, 23592960, s55
s_mov_b32 s39, 0x00020000
s_waitcnt lgkmcnt(0)
s_add_u32 s20, s4, s52
s_addc_u32 s21, s5, 0
s_add_u32 s24, s10, s53
s_addc_u32 s25, s11, 0
s_add_u32 s28, s6, s54
s_addc_u32 s29, s7, 0
s_add_u32 s32, s8, s54
s_addc_u32 s33, s9, 0
s_add_u32 s36, s18, s55
s_addc_u32 s37, s19, 0''' % XB0)
    mid = '''v_lshrrev_b32 v31, 4, v30
v_and_b32 v32, 15, v30
v_and_b32 v33, 6, v32
v_xor_b32 v33, v33, v31
v_lshlrev_b32 v33, 4, v33
v_lshl_add_u32 v20, v32, 7, v33
v_add_u32 v20, s42, v20
v_xor_b32 v21, 64, v20
v_mul_u32_u24 v1, 384, v32
v_add_u32 v1, v1, v33
v_add_u32 v1, %d, v1
v_xor_b32 v2, 64, v1
v_bfe_u32 v32, v30, 2, 2
v_lshl_add_u32 v33, v31, 3, v32
v_mul_u32_u24 v33, 384, v33
v_lshlrev_b32 v32, 1, v32
v_and_b32 v32, 4, v32
v_and_b32 v34, 3, v30
v_xor_b32 v32, v32, v34
v_lshl_add_u32 v16, v32, 4, v33
v_xor_b32 v17, 64, v16
v_lshrrev_b32 v31, 2, v30
v_and_b32 v32, 6, v31
v_lshrrev_b32 v33, 1, v34
v_xor_b32 v32, v32, v33
v_lshlrev_b32 v32, 4, v32
v_and_b32 v33, 1, v30
v_lshl_add_u32 v32, v33, 3, v32
v_mul_u32_u24 v31, 384, v31
v_add_u32 v3, v31, v32
v_add_u32 v3, %d, v3
v_xor_b32 v4, 32, v3
v_xor_b32 v5, 64, v3
v_xor_b32 v6, 96, v3
v_mul_u32_u24 v10, 786432, v29
v_lshl_add_u32 v10, v30, 4, v10
v_lshlrev_b32 v12, 2, v29
v_add_u32 v12, %d, v12
v_mov_b32 v13, %d
v_mov_b32 v31, 0x3f803f80
v_accvgpr_write_b32 a240, v31
v_accvgpr_write_b32 a241, v31
v_accvgpr_write_b32 a242, v31
v_accvgpr_write_b32 a243, v31
s_mov_b32 s44, 0x%08x
s_mov_b32 s45, 0x%08x
s_mov_b32 s4, 98304
s_mov_b32 s5, 49152
s_mov_b32 s6, 73728
s_mov_b32 s7, 49152
s_add_u32 s12, s41, 49152
s_add_u32 s15, s41, s12
s_mov_b32 s100, 49152
v_lshlrev_b32 v19, 7, v0''' % (2 * TS, 2 * TS, FLAG, FLAG, f2u(math.log2(math.e) / math.sqrt(192.0)), f2u(opt.get('limit', 2.0 ** 30)))
    mid = mid.split('\n')
    for qt in range(4):
        for hh in range(2): mid.append('s_mov_b32 s%d, %d' % (56 + 2 * qt + hh, qt * 196608 + hh * 4096))
    return L, mid

def stamp_code(label, nst, tmp=96):
    L = []
    a = lambda t: L.extend(I(x) for x in t.strip().split('\n'))
    a('s_waitcnt vmcnt(0)\ns_memrealtime s[66:67]\ns_memtime s[70:71]\ns_memrealtime s[%d:%d]\ns_memtime s[%d:%d]\ns_waitcnt lgkmcnt(0)' % (72 + 4 * nst, 73 + 4 * nst, 74 + 4 * nst, 75 + 4 * nst))
    a('s_mov_b64 s[72:73], s[64:65]\ns_mov_b64 s[74:75], s[68:69]')
    a('''s_add_u32 s96, s18, 0x%x
s_addc_u32 s97, s19, 0
s_mov_b32 s98, 0x1000000
s_mov_b32 s99, 0x00020000
s_cmp_lg_u32 s40, 0
s_cbranch_scc1 %s
s_mul_i32 s52, s2, 128
v_mov_b32 v11, s52
s_mov_b64 exec, 1''' % (STAMP_OFF, label))
    regs = [64, 66, 68, 70] + [72 + 2 * i for i in range(2 * nst + 2)]
    for i, r in enumerate(regs):
        a('v_mov_b32 v14, s%d\nv_mov_b32 v15, s%d\nbuffer_store_dwordx2 v[14:15], v11, s[96:99], 0 offen offset:%d\ns_nop 1' % (r, r + 1, 8 * i))
    a('s_waitcnt vmcnt(0)\n%s:' % label)
    return L

def k1_fallback(opt):
    L = []
    a = lambda t: L.extend(I(x) for x in t.strip().split('\n'))
    MX = 12
    a('K1_fb:\ns_waitcnt vmcnt(0) lgkmcnt(0)\ns_barrier')
    a('s_sub_u32 s7, s7, %d' % TS)
    for r in (1, 2): a('v_subrev_u32 v%d, s6, v%d' % (r, r))
    for r in (3, 4, 5, 6): a('v_subrev_u32 v%d, s7, v%d' % (r, r))
    for qt in range(4):
        a('v_mov_b32 v%d, 0xff7fffff' % (MX + qt))
        for r in range(4): a('v_mov_b32 v%d, 0' % (NEGM[qt] + r))
    a('s_mov_b32 s52, 0\nK1_fb_pass:\ns_mov_b32 s53, 0')
    for i in range(208): a('v_accvgpr_write_b32 a%d, 0' % i)
    a('K1_fb_loop:')
    for srd, so in (('s[28:31]', 0), ('s[32:35]', TS)):
        for half in range(2):
            a('s_add_u32 m0, s41, %d\ns_add_u32 s43, s53, %d' % (so + half * 3072, half * 3072))
            for t in range(3): a('buffer_load_dwordx4 v%d, %s, s43 offen offset:%d lds' % (7 + t, srd, 1024 * t))
    a('s_waitcnt vmcnt(0)\ns_barrier')
    for kt in range(4):
        for s in range(6): a('ds_read_b128 %s, v%d offset:%d' % (ar(RING + 4 * s), 1 + (s & 1), 128 * (s >> 1) + 6144 * kt))
        a('s_waitcnt lgkmcnt(0)')
        for qt in range(4):
            for s in range(6):
                d = vr(SBLK[kt, qt])
                a('v_mfma_f32_16x16x32_bf16 %s, %s, %s, %s' % (d, ar(RING + 4 * s), vr(qfrag(s, qt)), vr(NEGM[qt]) if s == 0 else d))
    a('s_nop 7\ns_cmp_lg_u32 s52, 0\ns_cbranch_scc1 K1_fb_pv')
    for kt in range(4):
        for qt in range(4):
            sb = SBLK[kt, qt]
            a('v_max3_f32 v%d, v%d, v%d, v%d\nv_max3_f32 v%d, v%d, v%d, v%d' % (MX + qt, MX + qt, sb, sb + 1, MX + qt, MX + qt, sb + 2, sb + 3))
    a('s_branch K1_fb_next\nK1_fb_pv:')
    for kt in range(4):
        for qt in range(4):
            sb = SBLK[kt, qt]
            for r in range(4): a('v_exp_f32 v%d, v%d' % (sb + r, sb + r))
    a('s_nop 0')
    for kt in range(4):
        for qt in range(4):
            sb = SBLK[kt, qt]; pb = PBLK[0, kt >> 1, qt] + 2 * (kt & 1)
            for h in range(2): a('v_cvt_pk_bf16_f32 v%d, v%d, v%d' % (pb + h, sb + 2 * h, sb + 2 * h + 1))
    a('s_nop 1')
    for qt in range(4):
        for kp in range(2): a('v_mfma_f32_16x16x32_bf16 %s, %s, %s, %s' % (ar(LACC + 4 * qt), ar(ONES), vr(PBLK[0, kp, qt]), ar(LACC + 4 * qt)))
    for dt in range(12):
        for kp in range(2):
            for hh in range(2): a('ds_read_b64_tr_b16 %s, v%d offset:%d' % (ar(RING + 4 * kp + 2 * hh, 2), 3 + (dt & 3), 128 * (dt >> 2) + 6144 * hh + 12288 * kp))
        a('s_waitcnt lgkmcnt(0)')
        for qt in range(4):
            for kp in range(2): a('v_mfma_f32_16x16x32_bf16 %s, %s, %s, %s' % (ar(oacc(dt, qt)), ar(RING + 4 * kp), vr(PBLK[0, kp, qt]), ar(oacc(dt, qt))))
    a('''K1_fb_next:
s_nop 7
s_barrier
s_add_u32 s53, s53, %d
s_cmp_lt_u32 s53, %d
s_cbranch_scc1 K1_fb_loop
s_cmp_lg_u32 s52, 0
s_cbranch_scc1 K1_fb_out''' % (TS, 16 * TS))
    for qt in range(4):
        t = MX + qt; u = PBLK[0, 0, 0]
        a('''v_mov_b32 v%d, v%d
s_nop 1
v_permlane32_swap_b32 v%d, v%d
v_max_f32 v%d, v%d, v%d
v_mov_b32 v%d, v%d
s_nop 1
v_permlane16_swap_b32 v%d, v%d
v_max_f32 v%d, v%d, v%d''' % (u, t, t, u, t, t, u, u, t, t, u, t, t, u))
        for r in range(4): a('v_sub_f32 v%d, 0, v%d' % (NEGM[qt] + r, t))
    a('s_mov_b32 s52, 1\ns_branch K1_fb_pass\nK1_fb_out:')
    for qt in range(4):
        if qt == 3: a('s_cmp_eq_u32 s40, 3\ns_cbranch_scc1 K1_done')
        a('v_accvgpr_read_b32 v11, a%d\ns_nop 0\nv_rcp_f32 v11, v11\ns_nop 0' % (LACC + 4 * qt))
        for s in range(6):
            t = 32 + 8 * (s & 1)
            for e in range(2):
                for r in range(4): a('v_accvgpr_read_b32 v%d, a%d' % (t + 4 * e + r, oacc(2 * s + e, qt) + r))
            for r in range(8): a('v_mul_f32 v%d, v%d, v11' % (t + r, t + r))
            for h in range(4): a('v_cvt_pk_bf16_f32 v%d, v%d, v%d' % (t + h, t + 2 * h, t + 2 * h + 1))
            a('buffer_store_dwordx4 %s, v10, s[36:39], s%d offen offset:%d%s' % (vr(t), 56 + 2 * qt + (s >> 2), (s & 3) * 1024, opt.get('opol', '')))
    a('s_branch K1_done')
    return L

def finish(seq, name, verbose=False):
    resolve_waits(seq)
    if any(hasattr(x, 'mark') for x in seq): unify(seq)
    seq, nn = fix_hazards(seq, verbose)
    errs, info = check(seq, name)
    for e in errs[:20]: print('ERR', e)
    assert not errs, '%d errors' % len(errs)
    return seq, info, nn

def sizes(seq):
    import subprocess, tempfile, os
    ins = [x for x in seq if x.kind != 'label']
    d = tempfile.mkdtemp()
    open(d + '/a.s', 'w').write('.amdgcn_target "amdgcn-amd-amdhsa--gfx950"\n.text\n' + '\n'.join(x.txt for x in seq) + '\ns_endpgm\n')
    subprocess.check_call(['clang', '-x', 'assembler', '-target', 'amdgcn-amd-amdhsa', '-mcpu=gfx950', '-c', d + '/a.s', '-o', d + '/a.o'])
    o = subprocess.check_output(['llvm-objdump', '-d', d + '/a.o'], text=True)
    offs = [int(m.group(1), 16) for m in re.finditer(r'// ([0-9A-F]{12}):', o)]
    assert len(offs) == len(ins) + 1, (len(offs), len(ins))
    for x, a, b in zip(ins, offs, offs[1:]): x.size = b - a

def add_touch(seq, tag):
    t = [x.txt for x in seq].index('; touch')
    chain = [I('s_mov_b64 vcc, 1')]
    for w in range(4): chain += [I('s_cmp_eq_u32 s40, %d' % w), I('s_cbranch_scc1 %s_tr' % tag)]
    chain += [I('%s_tr:' % tag), I('s_mov_b64 vcc, 0')]
    seq = seq[:t] + chain + seq[t + 1:]
    sizes(seq)
    out = []; off = 0; nxt = 4096; pads = []; cold = False
    def pad():
        nonlocal off
        b = I('s_cbranch_vccnz X'); pads.append((off, b)); out.append(I('%s_p%d:' % (tag, len(pads) - 1))); out.append(b); off += 4
    for x in seq:
        if x.txt == '; cold': cold = True; print('   hot code bytes', off)
        if x.txt == '; pad':
            if off % 4096 > 64: pad()
            continue
        if x.kind != 'label':
            if off >= nxt and not cold: pad(); nxt += 4096
            off += x.size
        out.append(x)
    w3 = [o for o, b in pads if True]
    split = next(i for i, x in enumerate(out) if x.txt == 'K1_w3:')
    first = [i for i, (o, b) in enumerate(pads) if out.index(b) < split]
    second = [i for i in range(len(pads)) if i not in first]
    order = []
    for k in range(max(len(first), len(second))):
        if k < len(second): order.append(second[k])
        if k < len(first): order.append(first[k])
    br = [x for x in chain if x.op == 's_cbranch_scc1']
    for w in range(4):
        mine = order[w::4]
        br[w].txt = 's_cbranch_scc1 %s_p%d' % (tag, mine[0])
        for a, b in zip(mine, mine[1:] + [None]):
            pads[a][1].txt = 's_cbranch_vccnz ' + ('%s_p%d' % (tag, b) if b is not None else '%s_tr' % tag)
    print('   pads', len(pads), [o for o, b in pads])
    return out

def gen_k1(opt):
    pro, mid = k1_prologue(opt)
    opt = dict(opt); opt['mid'] = mid
    out = []; infos = []
    pro, _ = fix_hazards(pro)
    for NQ in (4, 3):
        seq, over = k1_body(NQ, opt)
        seq += [I('s_cmp_lg_u32 s48, 0'), I('s_cbranch_scc1 K1_fb')]
        full, info, nn = finish(pro + seq, 'K1/NQ%d' % NQ, opt.get('verbose'))
        assert full[:len(pro)] == pro
        drop = str(opt.get('drop', '')).split(',')
        def keep(i, x):
            if i < len(pro) + 150: return True
            if opt.get('drop') and 'K1_fb' in x.txt: return False
            if 'dma' in drop and x.kind == 'vmem' and 'lds' in x.mods: return False
            if 'exp' in drop and x.op == 'v_exp_f32': return False
            if 'cvt' in drop and x.op == 'v_cvt_pk_bf16_f32': return False
            if 'ds' in drop and x.op.startswith('ds_read') and 'a[' in x.txt: return False
            if 'bar' in drop and x.kind == 'bar': return False
            return True
        full = [x for i, x in enumerate(full) if keep(i, x)]
        print('K1 NQ=%d: %d instrs, overflow %d, nops %d, est cycles %d' % (NQ, len(full), over, nn, est_cycles(full)))
        infos.append(info)
        if opt.get('fold', 1): full = fold(full, 'K1q%d' % NQ)
        print('   folded: %d instrs' % len(full))
        t = [x.txt for x in full].index('; touch')
        if NQ == 4:
            common = [x.txt for x in full[:t]]
            out += full[:t + 1] + [I('s_cmp_eq_u32 s40, 3'), I('s_cbranch_scc1 K1_w3')] + full[t + 1:] + [I('s_branch K1_done'), I('K1_w3:'), I('; pad')]
        else:
            assert common == [x.txt for x in full[:t]]
            out += full[t + 1:]
    ce = cross_check(infos)
    for e in ce: print('ERR', e)
    assert not ce
    out.append(I('K1_done:'))
    if opt.get('stamps'): out += stamp_code('K1_st', 5)
    out += [I('s_endpgm')]
    fb, _, _ = finish(k1_fallback(opt), 'fb')
    out += [I('; cold')] + fb
    if opt.get('touch', 1): out = add_touch(out, 'K1')
    return out

def kdesc(name, vgpr, sgpr, accum):
    return '''.section .rodata,"a"
.p2align 6
.amdhsa_kernel %s
  .amdhsa_next_free_vgpr %d
  .amdhsa_next_free_sgpr %d
  .amdhsa_accum_offset %d
  .amdhsa_group_segment_fixed_size 0
  .amdhsa_kernarg_size 64
  .amdhsa_user_sgpr_count 2
  .amdhsa_user_sgpr_kernarg_segment_ptr 1
  .amdhsa_system_sgpr_workgroup_id_x 1
.end_amdhsa_kernel
''' % (name, vgpr, sgpr, accum)

MACROS = {}
def compact(x):
    t = x.txt
    m = re.fullmatch(r'v_mfma_f32_16x16x32_bf16 ([va])\[(\d+):\d+\], ([va])\[(\d+):\d+\], ([va])\[(\d+):\d+\], (.*)', t)
    if m:
        dc, d, ac, a, bc, b, c = m.groups()
        o = lambda cl, n: '%s[\\%s:\\%s+3]' % (cl, n, n)
        if c == '0': suf, cs, extra = 'Z', '0', ''
        elif c == x.dreg: suf, cs, extra = '', o(dc, 'd'), ''
        else: suf, cs, extra = 'C', o(dc, 'c'), ',' + re.match(r'[va]\[(\d+)', c).group(1)
        nm = 'M' + dc + ac + bc + suf
        MACROS[nm] = '.macro %s d,a,b%s\nv_mfma_f32_16x16x32_bf16 %s, %s, %s, %s\n.endm\n' % (nm, ',c' if extra else '', o(dc, 'd'), o(ac, 'a'), o(bc, 'b'), cs)
        return '%s %s,%s,%s%s' % (nm, d, a, b, extra)
    m = re.fullmatch(r'ds_read_(b64_tr_b16|b128) ([va])\[(\d+):\d+\], v(\d+) offset:(\d+)', t)
    if m:
        k, dc, d, a, off = m.groups()
        nm = ('T' if k != 'b128' else 'R') + dc; w = 1 if k != 'b128' else 3
        MACROS[nm] = '.macro %s d,a,o\nds_read_%s %s[\\d:\\d+%d], v\\a offset:\\o\n.endm\n' % (nm, k, dc, w)
        return '%s %s,%s,%s' % (nm, d, a, off)
    m = re.fullmatch(r'v_exp_f32 v(\d+), v(\d+)', t)
    if m and m.group(1) == m.group(2):
        MACROS['EX'] = '.macro EX d\nv_exp_f32 v\\d, v\\d\n.endm\n'
        return 'EX %s' % m.group(1)
    m = re.fullmatch(r'v_cvt_pk_bf16_f32 v(\d+), v(\d+), v(\d+)', t)
    if m:
        MACROS['CV'] = '.macro CV d,a,b\nv_cvt_pk_bf16_f32 v\\d, v\\a, v\\b\n.endm\n'
        return 'CV %s,%s,%s' % m.groups()
    m = re.fullmatch(r's_waitcnt lgkmcnt\((\d+)\)', t)
    if m:
        MACROS['WL'] = '.macro WL n\ns_waitcnt lgkmcnt(\\n)\n.endm\n'
        return 'WL %s' % m.group(1)
    return t.replace(', ', ',')

def emit(kernels, comp=True):
    s = ''
    for name, grid, lds, seq, vg, acc in kernels:
        s += '; @launch kernel=%s grid=(%d,1,1) block=(256,1,1) lds=%d\n' % (name, grid, lds)
    s += '.amdgcn_target "amdgcn-amd-amdhsa--gfx950"\n'
    body = ''
    for name, grid, lds, seq, vg, acc in kernels:
        body += '.text\n.globl %s\n.p2align 12\n.p2align 8\n.type %s,@function\n%s:\n' % (name, name, name)
        body += '\n'.join((compact(x) if comp else x.txt) for x in seq) + '\n'
        body += kdesc(name, vg, 102, acc)
    return s + ''.join(MACROS.values()) + body

if __name__ == '__main__':
    import k2 as K2
    opt = {}
    outp = sys.argv[1]
    for a in sys.argv[2:]:
        k, v = a.split('=')
        try: v = int(v)
        except ValueError: v = v.replace('_', ' ')
        opt[k] = v
    ks = []
    if opt.get('k1', 1): ks.append(('standalone__gqa_block_cached__near_ridge_kernel', 256, 163840, gen_k1(opt), 512, 256))
    if opt.get('k2', 1): ks.append(K2.gen_k2(opt, finish))
    txt = emit(ks, opt.get('comp', 1))
    open(outp, 'w').write(txt)
    print(outp, len(txt), 'bytes')
```

```python
from sched import *

TS = 24576
SLOTORD = [3, 5, 0, 1, 2, 4]
OBYTES = 23592960
WSTEP = 40960
def vr(b, n=4): return 'v[%d:%d]' % (b, b + n - 1)
def ar(b, n=4): return 'a[%d:%d]' % (b, b + n - 1)
def haddr(h): return SLOTORD[h // 3] * TS + (h % 3) * 2048
def hreg(m, h):
    s = SLOTORD[h // 3]
    return (s * TS, (s + 1) * TS, False, ('WO', m), 100 + h)

def inner(opt, ri, ci, tmp):
    C = 5 if opt.get('kmap', 1) else 10
    return '''s_lshr_b32 %(ci)s, s2, 3
s_mul_i32 %(ri)s, %(ci)s, %(m)d
s_lshr_b32 %(ri)s, %(ri)s, 8
s_mul_i32 %(t)s, %(ri)s, %(C)d
s_sub_u32 %(ci)s, %(ci)s, %(t)s''' % dict(ri=ri, ci=ci, t=tmp, C=C, m=260 // C)

def outer(opt, rb, cb, tmp):
    if opt.get('kmap', 1):
        t = '''s_and_b32 %(t)s, s2, 1
s_mul_i32 %(t)s, %(t)s, 5
s_add_u32 %(cb)s, %(cb)s, %(t)s
s_and_b32 %(t)s, s2, 6
'''
    else: t = 's_and_b32 %(t)s, s2, 7\n'
    return (t + 's_mul_i32 %(t)s, %(t)s, 3\ns_add_u32 %(rb)s, %(rb)s, %(t)s') % dict(rb=rb, cb=cb, t=tmp)

def rotation(opt, ri, ci):
    km = opt.get('kmap', 1)
    W = opt.get('win', 12); ra = opt.get('ra', 2 if km else 4); rc = opt.get('rc', 5 if km else 1)
    n = (ra * (6 if km else 3) + rc * (4 if km else 9)) // W
    t = 's_mul_i32 %(d)s, %(d)s, %(ra)d\ns_mul_i32 %(t)s, %(t)s, %(rc)d\ns_add_u32 %(d)s, %(d)s, %(t)s\n'
    t += 's_sub_u32 %(t)s, %(d)s, %(W)d\ns_min_u32 %(d)s, %(d)s, %(t)s\n' * n
    return t.strip() % dict(d=ri, t=ci, ra=ra, rc=rc, W=W)

def tail(opt, W0, stamp):
    L = []
    a = lambda t: L.extend(I(x) for x in t.strip().split('\n'))
    NR = opt.get('nr', 20); D = opt.get('dep', 4); NPRE = opt.get('npre', 8); PQ = opt.get('pq', 4)
    WIN = opt.get('win', 12); wpol = opt.get('k2w', '')
    ACC = 24; OB = ACC + 80; AV = OB + 20 * D; AV += (-AV) % 4
    assert NR <= 16 + (256 - AV) // 16
    def afrag(k, nt, n=4, o=0):
        s = k % NR
        return ar(16 * s + 4 * nt + o, n) if s < 16 else vr(AV + 16 * (s - 16) + 4 * nt + o, n)
    ofrag = lambda k, qt: OB + (k % D) * 20 + qt * 4
    acc = lambda qt, nt: ACC + (qt * 4 + nt) * 4
    W = dict(W0); half = {m: m for m in W0}; T = {}; O = {}
    nm = [len(W0)]; free = []
    def step(reg, k, unit):
        if k + 1 >= 48: return []
        if opt.get('fixo') and reg == 's15': unit = 0
        w = (k + 1) // WIN
        inc = unit + (WIN * unit if (k + 1) % WIN == 0 else 0)
        return [I('s_add_u32 %s, %s, %d' % (reg, reg, inc)), I('s_cmp_eq_u32 %s, %d' % (reg, (w + 1) * WIN * unit)),
                I('s_cselect_b32 %s, %d, %s' % (reg, w * WIN * unit, reg))]
    def dma():
        m = nm[0]; nm[0] += 1
        h = free.pop(0); half[m] = h; hh = m & 1
        W[m] = [I('buffer_load_dwordx4 v%d, s[48:51], s14 offen offset:%d%s lds' % (6 + 2 * hh + t, 1024 * t, wpol), lds=hreg(m, h)) for t in range(2)]
        return [I('s_add_u32 m0, s41, %d' % haddr(h))], W[m], (step('s14', m // 2, WSTEP) if hh else [])
    def dma_flat():
        p, w, q = dma(); return p + w + q
    def tr(k):
        T[k] = []
        for nt in range(4):
            for hh in range(2):
                h = half[2 * k + hh]; ad = haddr(h); st = ad // (3 * TS)
                T[k].append(I('ds_read_b64_tr_b16 %s, v%d offset:%d' % (afrag(k, nt, 2, 2 * hh), 10 + 4 * st + nt, ad - st * 3 * TS), lds=hreg(2 * k + hh, h)))
        return T[k]
    def release(k): free.extend([half[2 * k], half[2 * k + 1]])
    def ld_o(k, qt):
        x = I('buffer_load_dwordx4 %s, v%d, s[36:39], s15 offen sc1' % (vr(ofrag(k, qt)), 1 + qt))
        O[k, qt] = x
        return x
    a('K1_done:')
    L += stamp('j')
    a('''v_and_b32 v30, 63, v0
v_lshrrev_b32 v31, 2, v30
v_and_b32 v32, 6, v31
v_bfe_u32 v33, v30, 1, 1
v_xor_b32 v32, v32, v33
v_lshlrev_b32 v32, 4, v32
v_lshl_add_u32 v32, v31, 7, v32
v_and_b32 v33, 1, v30
v_lshl_add_u32 v32, v33, 3, v32
v_add_u32 v10, s41, v32
v_add_u32 v14, %d, v10
v_xor_b32 v15, 32, v14
v_xor_b32 v16, 64, v14
v_xor_b32 v17, 96, v14''' % (3 * TS))
    L += tr(0)
    a('''v_xor_b32 v11, 32, v10
v_xor_b32 v12, 64, v10
v_xor_b32 v13, 96, v10
v_lshrrev_b32 v31, 3, v30
v_and_b32 v32, 6, v31
v_and_b32 v33, 7, v30
v_xor_b32 v32, v32, v33
s_mul_i32 s4, s40, 1536
v_add_u32 v31, s4, v31
v_mul_u32_u24 v31, 1280, v31
v_lshl_add_u32 v6, v32, 4, v31
v_add_u32 v7, 9216, v6
v_add_u32 v8, 20480, v6
v_add_u32 v9, 29696, v6''')
    setup = ('''s_mul_i32 s4, s40, 49152
v_lshl_add_u32 v1, v30, 4, s4
v_add_u32 v2, 196608, v1
v_add_u32 v3, 393216, v1
v_add_u32 v4, 589824, v1
v_add_u32 v5, 786432, v1
s_lshl_b32 s4, s46, 7
s_lshl_b32 s5, s47, 2
s_add_u32 s4, s4, s5
v_mov_b32 v20, s4
v_mov_b32 v21, s45
''' + inner(opt, 's46', 's47', 's4') + '\n' + outer(opt, 's46', 's47', 's4') + '''
s_mul_i32 s4, s46, 983040
s_sub_u32 s38, %d, s4
s_add_u32 s36, s18, s4
s_addc_u32 s37, s19, 0
s_lshl_b32 s5, s47, 7
s_mul_i32 s6, s46, 102400
s_add_u32 s6, s6, s5
s_sub_u32 s30, 2457600, s6
s_mul_i32 s4, s46, 43
s_and_b32 s4, s4, 0x380
s_lshl_b32 s5, s40, 5
s_add_u32 s4, s4, s5
v_and_b32 v22, 7, v30
v_lshl_add_u32 v22, v22, 2, s4
s_mov_b32 s7, %d''' % (OBYTES, opt.get('spin', 40000)))
    npre = NPRE
    for k in range(1, 7):
        if k < 6: L += tr(k)
        if k == 2: a(setup)
        L.append(WAIT(T[k - 1])); release(k - 1)
        while npre > 0 and free: L += dma_flat(); npre -= 1
    a('''s_load_dwordx2 s[28:29], s[0:1], 40
s_waitcnt vmcnt(0) lgkmcnt(0)
s_barrier
s_add_u32 s28, s28, s6
s_addc_u32 s29, s29, 0
s_cmp_lg_u32 s40, 0
s_cbranch_scc1 K2_pub
s_mov_b64 exec, 1
; flagstore
s_mov_b64 exec, -1
K2_pub:
s_cmp_ge_u32 s2, 240
s_cbranch_scc1 K2_rest''')
    L += stamp('p')
    free.extend(h for h in range(len(W0), 18))
    L += tr(6)
    while free: L += dma_flat()
    a('; touch2')
    tail_dma = []
    for k in range(7, NR + 1):
        if k < NR: L += [WAIT(W[2 * k] + W[2 * k + 1])] + tr(k)
        L.append(WAIT(T[k - 1])); release(k - 1)
        while free:
            if 2 * (NR + 9) - nm[0] == PQ:
                poll = I('buffer_load_dword v23, v22, s[52:55], 0 offen sc1'); L.append(poll)
            L += dma_flat()
    assert nm[0] == 2 * (NR + 9)
    L.append(WAIT([poll]))
    L += stamp('e')
    a('; spin')
    L += stamp('f')
    for k in range(D):
        L += [ld_o(k, qt) for qt in range(5)] + step('s15', k, 1024)
    issued = {m: -100 for m in W}
    m0 = nm[0]; rho = opt.get('rho', 0) / 10.0 or max((96 - m0) / (42.0 - D), 0.1)
    jn = NR; last_tr = None
    for k in range(48):
        cover = [O[k, 0]]
        if last_tr is not None: cover += T[last_tr]; release(last_tr); last_tr = None
        trs = []
        if jn < 48 and jn - k <= NR - 1 and 2 * jn + 1 in issued and issued[2 * jn + 1] <= k - D - 1:
            cover += W[2 * jn] + W[2 * jn + 1]
            trs = list(tr(jn)); last_tr = jn; jn += 1
        assert jn > k + 1 or jn == 48, (k, jn)
        ds = []
        while free and nm[0] < 96 and nm[0] - m0 < (k - 1) * rho and len(ds) < 4:
            issued[nm[0]] = k
            p, w, q = dma(); ds += [p + [w[0]], [w[1]] + q]
        for qt in range(5):
            L.append(WAIT(cover if qt == 0 else [O[k, qt]]))
            for nt in range(4):
                d = vr(acc(qt, nt))
                L.append(I('v_mfma_f32_16x16x32_bf16 %s, %s, %s, %s' % (d, afrag(k, nt), vr(ofrag(k, qt)), d if k else '0')))
                if nt == 0 and ds: L += ds.pop(0)
                if nt in (1, 2) and trs: L.append(trs.pop(0))
                if nt == 3 and k + D < 48: L.append(ld_o(k + D, qt))
        assert not ds and not trs
        if k + D < 48: L += step('s15', k + D, 1024)
        if k == 40:
            a('''v_lshlrev_b32 v31, 4, v30
v_add_u32 v18, s41, v31
v_add_u32 v19, %d, v18
s_mul_i32 s4, s40, %d
v_add_u32 v20, s4, v31
v_and_b32 v31, 15, v30
v_mul_u32_u24 v31, 1280, v31
v_lshrrev_b32 v21, 4, v30
v_lshl_add_u32 v31, v21, 3, v31
s_lshl_b32 s4, s40, 5
v_add_u32 v21, s4, v31'''.replace('v31', 'v23').replace('v30', 'v22').replace('v_lshlrev_b32 v23, 4, v22', 'v_and_b32 v22, 63, v0\nv_lshlrev_b32 v23, 4, v22') % (2 * TS, TS))
    assert nm[0] == 96 and jn == 48
    L += stamp('m')
    wr = [I('ds_write_b128 v%d, %s offset:%d' % (18 + (nt >> 1), vr(acc(qt, nt)), (nt & 1) * TS + qt * 1024)) for qt in range(5) for nt in range(4)]
    L += wr
    L.append(WAIT(wr)); a('s_barrier')
    rd = {(qt, p): I('ds_read_b128 %s, v20 offset:%d' % (vr(OB + qt * 16 + p * 4), p * 6144 + qt * 1024)) for qt in range(5) for p in range(4)}
    for qt in range(3): L += [rd[qt, p] for p in range(4)]
    for qt in range(5):
        b = OB + qt * 16
        L.append(WAIT([rd[qt, p] for p in range(4)]))
        if qt + 3 < 5: L += [rd[qt + 3, p] for p in range(4)]
        for r in range(4): a('v_add_f32 v%d, v%d, v%d\nv_add_f32 v%d, v%d, v%d' % (b + r, b + r, b + 4 + r, b + 8 + r, b + 8 + r, b + 12 + r))
        for r in range(4): a('v_add_f32 v%d, v%d, v%d' % (b + r, b + r, b + 8 + r))
        for h in range(2): a('v_cvt_pk_bf16_f32 v%d, v%d, v%d' % (b + h, b + 2 * h, b + 2 * h + 1))
        a('s_mov_b32 s4, %d' % (qt * 20480))
        a('buffer_store_dwordx2 %s, v21, s[28:31], s4 offen' % vr(b, 2))
    a('K2_end:')
    return L

def patch(seq):
    out = []
    for x in seq:
        if x.txt == '; flagstore': out.append(I('buffer_store_dword v21, v20, s[52:55], 0 offen sc1'))
        elif x.txt == '; spin':
            out += [I(t) for t in '''K2_chk:
v_cmp_ne_u32 s[100:101], s45, v23
s_nop 0
s_cmp_eq_u64 s[100:101], 0
s_cbranch_scc1 K2_go
s_sub_u32 s7, s7, 1
s_cbranch_scc1 K2_go
buffer_load_dword v23, v22, s[52:55], 0 offen sc1
s_waitcnt vmcnt(0)
s_branch K2_chk
K2_go:'''.split('\n')]
        else: out.append(x)
    return out

def rest(opt):
    return [I(t) for t in '''K2_rest:
s_cmp_lg_u32 s2, 240
s_cbranch_scc1 K2_end
s_cmp_lg_u32 s40, 0
s_cbranch_scc1 K2_end
v_lshlrev_b32 v22, 4, v0
K2_all:
buffer_load_dwordx4 v[24:27], v22, s[52:55], 0 offen sc1
s_waitcnt vmcnt(0)
v_xor_b32 v24, s45, v24
v_xor_b32 v25, s45, v25
v_xor_b32 v26, s45, v26
v_xor_b32 v27, s45, v27
v_or_b32 v24, v24, v25
v_or3_b32 v24, v24, v26, v27
v_cmp_ne_u32 s[100:101], 0, v24
s_nop 0
s_cmp_eq_u64 s[100:101], 0
s_cbranch_scc1 K2_ret
s_sub_u32 s7, s7, 1
s_cbranch_scc0 K2_all
K2_ret:
s_mov_b64 exec, 1
buffer_store_dword v21, v22, s[52:55], 0 offen offset:1024 sc1
s_mov_b64 exec, -1
s_branch K2_end'''.split('\n')]
```

```python
import sys, math, struct
from sched import *
import k2f

INF = 10 ** 6
TS = 24576
XB0 = 98304
FLAG = 147456
STAMP_OFF = 0x10000000
def f2u(f): return struct.unpack('<I', struct.pack('<f', f))[0]
def vr(b, n=4): return 'v[%d:%d]' % (b, b + n - 1)
def ar(b, n=4): return 'a[%d:%d]' % (b, b + n - 1)

class Prog:
    def __init__(self, dlat=8):
        self.mf = []; self.jobs = []; self.lastw = {}; self.rds = {}; self.dlat = dlat
        self.pre = []; self.phase = -1; self.occ = {}
    def _conf(self, ins):
        c = []
        for r in ins.rd:
            if r in self.lastw: c.append((self.lastw[r], 'raw', r))
        for r in ins.wr:
            if r in self.lastw: c.append((self.lastw[r], 'waw', r))
            for x in self.rds.get(r, ()): c.append((x, 'war', r))
        return c
    def _rec(self, ins, who):
        for r in ins.rd: self.rds.setdefault(r, []).append(who)
        for r in ins.wr: self.lastw[r] = who; self.rds[r] = []
    def mfma(self, d, a, b, c):
        ins = I('v_mfma_f32_16x16x32_bf16 %s, %s, %s, %s' % (d, a, b, c))
        m = len(self.mf)
        for x, ty, r in self._conf(ins):
            if isinstance(x, Job):
                lim = m - 1
                if ty == 'raw' and x.cls in ('valu', 'trans'): lim = m - 3
                x.hi = min(x.hi, lim); x.hard = min(x.hard, m - 1)
        self.mf.append(ins); self._rec(ins, m)
        return m
    def job(self, ins, lo=0, hi=INF, deps=(), first=False, pre=False, dlat=None, name=None, phase=None, dummy=False, **kw):
        ins = ins if isinstance(ins, I) else I(ins, **kw)
        j = Job(ins, lo, hi, deps, first)
        ph = self.phase if phase is None else phase
        nm = name or ins.txt
        c = self.occ.get((ph, nm), 0); self.occ[ph, nm] = c + 1
        j.key = (ph, nm, c); j.dummy = dummy
        seen = set(id(d) for d, _ in j.deps)
        for x, ty, r in self._conf(ins):
            if isinstance(x, Job):
                if id(x) in seen: continue
                seen.add(id(x))
                dist = 1
                if x.cls == 'valu' and j.cls == 'valu': dist = 0
                if 'permlane' in ins.op and ty == 'raw': dist = 2
                if x.cls == 's' and j.cls == 's': dist = 0
                if ty == 'war' and hasattr(x.ins, 'sdata'): dist = 2
                j.deps.append((x, dist))
            else:
                y = self.mf[x]
                j.lo0 = max(j.lo0, x)
                if ty in ('raw', 'waw'): j.lo = max(j.lo, x + (dlat if dlat is not None else self.dlat))
                elif r in y.cr and j.cls in ('valu', 'trans'): j.lo = max(j.lo, x + 3)
                else: j.lo = max(j.lo, x)
        self._rec(ins, j)
        if pre:
            j.gap = -10; self.pre.append(ins)
        self.jobs.append(j)
        return j
    def n(self): return len(self.mf)

RING = 208; ONES = 240; LACC = 192
def qacc(T, qt): return 64 + ((T >> 1) * 4 + qt) * 8 + 4 * (T & 1)
def qfrag(s, qt): return 64 + (s * 4 + qt) * 8
_lows = [32 + 4 * k for k in range(8)] + [16 + 4 * k for k in range(4)]
_ups = [64 + 8 * k + 4 for k in range(24)]
SBLK = {}; PBLK = {}; NEGM = {}
for kt in range(4):
    for qt in range(4): SBLK[kt, qt] = _lows[kt * 4 + qt] if kt < 2 else _ups[4 + (kt - 2) * 4 + qt]
for qt in range(4): NEGM[qt] = _ups[qt]
_rest = _ups[12:] + _lows[8:]
for i, key in enumerate([(bf, kp, qt) for bf in range(2) for kp in range(2) for qt in range(4)]): PBLK[key] = _rest[i]
def oacc(dt, qt): return dt * 16 + qt * 4

TILES = [('W', n) for n in range(10)] + [('K', 0)]
for j in range(15): TILES += [('K', j + 1), ('V', j)]
TILES += [('V', 15)]
def slot_of(kind, j):
    if kind == 'W': return j % 4
    if kind == 'K': return 2 if j == 0 else (2 * j + 1) % 6
    return (2 * j + 4) % 6
WSTEP = 64 * 12288
LOOPS = [(1, 2, 7, 1), (13, 4, 40, 3)]

def wrap(reg, step, n):
    return ['s_add_u32 s10, %s, %d' % (reg, step), 's_sub_u32 s11, s10, %d' % (n * step), 's_min_u32 %s, s10, s11' % reg]

def k1_build(NQ, opt):
    P = Prog()
    nt = ' nt' if opt.get('nt', 1) else ''
    wpol = opt.get('wpol', '')
    GL = 2 * NQ
    dmas = {}; plan = []
    def dma_group(tag, region, sc, lst, at, spc, deps, dummy=False):
        ins = [I(t, lds=region) for t in lst]
        dmas.setdefault(tag, []).extend(ins)
        if at is None:
            for t in sc: P.job(t, pre=True)
            for x in ins: P.job(x, pre=True)
        else: plan.append((at, len(plan), sc, ins, spc, deps, P.phase, dummy))
    def flush_plan():
        for at, _, sc, ins, spc, deps, ph, dummy in sorted(plan, key=lambda e: e[:2]):
            for t in sc: P.job(t, lo=max(at - 6, 0), phase=ph, dummy=dummy)
            for i, x in enumerate(ins):
                t = int(at + i * spc)
                P.job(x, lo=t, hi=t + 2, deps=deps, phase=ph, dummy=dummy)
        plan.clear()
    def dma_tile(tile, at, spc=0, deps=(), dyn=True):
        kind, j = tile; so = slot_of(kind, j) * TS
        reg = (so, so + TS, True, tile, None)
        for half in range(2):
            if kind == 'W':
                lst = ['buffer_load_dwordx4 v%d, s[24:27], s43 offen offset:%d%s lds' % (22 + t, 1024 * t, wpol) for t in range(3)]
                m0 = 's_add_u32 m0, s12, %d' % ((j & 1) * TS + half * 3072) if dyn else 's_add_u32 m0, s41, %d' % (so + half * 3072)
                sc = [m0, 's_add_u32 s43, s13, %d' % (half * 8 * 12288)]
                if half:
                    sc += wrap('s13', WSTEP, 10)
                    if dyn and (j & 1): sc += ['s_sub_u32 s12, s15, s12']
            else:
                srd = 's[28:31]' if kind == 'K' else 's[32:35]'
                lst = ['buffer_load_dwordx4 v%d, %s, s43 offen offset:%d%s lds' % (7 + t, srd, 1024 * t, nt) for t in range(3)]
                if dyn:
                    dst, off = ('s16', 's4') if kind == 'K' else ('s17', 's5')
                    sc = ['s_add_u32 m0, %s, %d' % (dst, half * 3072), 's_add_u32 s43, %s, %d' % (off, half * 3072)]
                    if half: sc += ['s_add_u32 %s, %s, %d' % (off, off, TS)]
                else:
                    sc = ['s_add_u32 m0, s41, %d' % (so + half * 3072), 's_mov_b32 s43, %d' % (j * TS + half * 3072)]
            dma_group(tile, reg, sc, lst, None if at is None else int(at + half * 3 * spc), spc, deps, dummy=(j > 15))
    def dma_wo(m, at, spc, deps=()):
        hh = m & 1
        lst = ['buffer_load_dwordx4 v%d, s[48:51], s43 offen offset:%d%s lds' % (14 + t, 1024 * t, opt.get('k2w', '')) for t in range(2)]
        sc = ['s_add_u32 m0, s41, %d' % k2f.haddr(m), 's_add_u32 s43, s14, %d' % (hh * 20480)]
        if hh: sc += wrap('s14', k2f.WSTEP, opt.get('win', 12))
        dma_group(('WO', m), k2f.hreg(m, m), sc, lst, at, spc, deps)
    def xreg(n, qt): return (XB0 + (n & 1) * 32768, XB0 + (n & 1) * 32768 + 32768, False, 'X%d_%d' % (n, qt), qt)
    def dma_x(n, qt, at, spc=0, deps=(), last=NQ - 1):
        half = qt >> 1
        lst = ['buffer_load_dwordx4 v%d, s[20:23], s43 offen offset:%d%s lds' % (25 + t, 1024 * t, wpol) for t in (2 * (qt & 1), 2 * (qt & 1) + 1)]
        sc = ['s_add_u32 m0, s42, %d' % ((n & 1) * 32768 + half * 4096), 's_add_u32 s43, s14, %d' % (half * 40960)]
        if qt == last: sc += wrap('s14', 128, 10)
        dma_group('X%d_%d' % (n, qt), xreg(n, qt), sc, lst, at, spc, deps)
    def xfrag(n, u, qt): return (n & 1) * 32 + (u * 4 + qt) * 4
    def x_reads(n, qt, lo, hi, deps, pre=False):
        return [P.job(I('ds_read_b128 %s, v%d offset:%d' % (ar(xfrag(n, u, qt)), 20 + u, (n & 1) * 32768 + qt * 2048), lds=xreg(n, qt)), lo=lo, hi=hi, deps=deps, pre=pre) for u in range(2)]
    def reads_txt(n, g):
        kind, j = TILES[n]; so = slot_of(kind, j) * TS; rb = RING + (g % 4) * 8
        reg = (so, so + TS, True, TILES[n], None); out = []
        if kind == 'W':
            s, e = g >> 1, g & 1
            areg = 16 + (s & 1); o = (j & 1) * TS + 128 * (s >> 1) + 8 * e
            for u in range(2):
                for hh in range(2):
                    out.append(I('ds_read_b64_tr_b16 %s, v%d offset:%d' % (ar(rb + 4 * u + 2 * hh, 2), areg, o + 1536 * hh + 12288 * u), lds=reg))
        elif kind == 'K':
            kt, sp = g // 3, g % 3
            for e in range(2):
                out.append(I('ds_read_b128 %s, v%d offset:%d' % (ar(rb + 4 * e), 1 + e, 128 * sp + 6144 * kt), lds=reg))
        else:
            for kp in range(2):
                for hh in range(2):
                    out.append(I('ds_read_b64_tr_b16 %s, v%d offset:%d' % (ar(rb + 4 * kp + 2 * hh, 2), 3 + (g & 3), 128 * (g >> 2) + 6144 * hh + 12288 * kp), lds=reg))
        return out

    start = {}; pos = 0
    for n, (kind, j) in enumerate(TILES):
        start[n] = pos
        if kind == 'V': pos += GL
        for g in range(12): start[n, g] = pos; pos += GL
    total = pos; start[42] = pos
    def prev_end(n, g, back):
        k = n * 12 + g - back
        if k < 0: return -1
        return start[k // 12, k % 12] + GL - 1

    def pstamp(k):
        if opt.get('sstamp'):
            for t in ('s_memrealtime s[%d:%d]' % (72 + 4 * k, 73 + 4 * k), 's_memtime s[%d:%d]' % (74 + 4 * k, 75 + 4 * k), 's_waitcnt lgkmcnt(0)'): P.job(t, pre=True)
    pstamp(1)
    for qt in range(4): dma_x(0, qt, None, last=3)
    dma_tile(('W', 0), None, dyn=False)
    for t in opt['mid']: P.job(t, pre=True)
    pstamp(2)
    P.job('; touch', pre=True)
    for t in ('s_waitcnt lgkmcnt(0)', 's_mul_i32 s45, s45, 0x9e3779b1', 's_add_u32 s45, s45, 0x7f4a7c15'): P.job(t, pre=True)
    pstamp(3)
    for qt in range(NQ): dma_x(1, qt, None)
    PW1 = opt.get('pw1', 1)
    if PW1: dma_tile(('W', 1), None, dyn=False)
    P.job(WAIT(sum((dmas['X0_%d' % qt] for qt in range(NQ)), [])), pre=True)
    xr = {(0, qt): x_reads(0, qt, 0, 0, [], pre=True) for qt in range(NQ)}
    P.job(WAIT(dmas['W', 0]), pre=True)
    bar = {0: P.job('s_barrier', pre=True)}
    after_bar = {n: [('W', n + 2)] for n in range(1, 8)}
    after_bar[8] = [('K', 0), ('V', 0)]; after_bar[9] = [('K', 1), ('K', 2)]; after_bar[10] = [('V', 1)]; after_bar[11] = [('K', 3)]
    for n in range(12, 42):
        kind, j = TILES[n - 1]
        after_bar[n] = [('V', j + 1) if kind == 'K' else ('K', j + 4)]
    after_bar[41] = []
    waitjob = {}
    stamps = opt.get('stamps')
    def stamp(k, at):
        if stamps:
            a = P.job('s_memrealtime s[%d:%d]' % (72 + 4 * k, 73 + 4 * k), lo=at, hi=at); a.cls = 's'
            b = P.job('s_memtime s[%d:%d]' % (74 + 4 * k, 75 + 4 * k), lo=at, hi=at, deps=[(a, 0)]); b.cls = 's'
            P.job('s_waitcnt lgkmcnt(0)', lo=at, hi=at, deps=[(b, 0)])

    def softmax(j, sub_kt=0):
        for kt in range(4):
            for qt in range(NQ):
                sb = SBLK[kt, qt]; pb = PBLK[j & 1, kt >> 1, qt] + 2 * (kt & 1)
                if kt < sub_kt:
                    for r in range(4): P.job('v_add_f32 v%d, v%d, v%d' % (sb + r, sb + r, NEGM[qt]))
                for r in range(4): P.job('v_exp_f32 v%d, v%d' % (sb + r, sb + r))
                for h in range(2): P.job('v_cvt_pk_bf16_f32 v%d, v%d, v%d' % (pb + h, sb + 2 * h, sb + 2 * h + 1))
    def advance(ring, lo, dummy):
        pos, dst, dl, regs = ('s6', 's16', 's8', (1, 2)) if ring == 'K' else ('s7', 's17', 's9', (3, 4, 5, 6))
        for t in ['s_add_u32 %s, s41, %s' % (dst, pos), 's_add_u32 s10, %s, %d' % (pos, 2 * TS), 's_sub_u32 s11, s10, %d' % (6 * TS),
                  's_min_u32 s10, s10, s11', 's_sub_u32 %s, s10, %s' % (dl, pos), 's_mov_b32 %s, s10' % pos]:
            P.job(t, lo=lo, dummy=dummy)
        for r in regs: P.job('v_add_u32 v%d, %s, v%d' % (r, dl, r), lo=lo, dummy=dummy)
    SUBKT = opt.get('subkt', 3)
    WROWS = 384 if opt.get('kmap', 1) else 192
    tmpblk = []
    for n, (kind, j) in enumerate(TILES):
        P.phase = n
        if kind == 'W' and n > 0 and n % 2 == 0:
            for r in (16, 17): P.job('v_xor_b32 v%d, 0xc000, v%d' % (r, r))
        if n == 11:
            for r in (1, 2): P.job('v_add_u32 v%d, %d, v%d' % (r, TS, r))
        if n == 10:
            for t in (k2f.inner(opt, 's15', 's12', 's13') + '\n' + k2f.rotation(opt, 's15', 's12')).split('\n') + ['s_mul_i32 s14, s15, %d' % k2f.WSTEP, 's_lshl_b32 s15, s15, 10']:
                P.job(t, lo=start[10], hi=start[10, 8])
        if n == 40:
            for m in range(9): dma_wo(m, start[40] + 2 + m * GL, GL / 2.0)
            flush_plan()
        if n == 41: advance('V', 0, False)
        if kind == 'V':
            for qt in range(NQ):
                for kp in range(2):
                    P.mfma(ar(LACC + 4 * qt), ar(ONES), vr(PBLK[j & 1, kp, qt]), '0' if (j == 0 and kp == 0) else ar(LACC + 4 * qt))
            if j == 15:
                RL = NEGM[0]
                for qt in range(NQ): P.job('v_accvgpr_read_b32 v%d, a%d' % (RL + qt, LACC + 4 * qt), dlat=4)
                for qt in range(1, NQ): P.job('v_add_f32 v11, v%d, v%d' % (RL if qt == 1 else 11, RL + qt))
                for qt in range(NQ): P.job('v_rcp_f32 v%d, v%d' % (RL + qt, RL + qt))
                P.job('s_mov_b32 s100, 0x%08x' % f2u(opt.get('limit', 2.0 ** 30)))
                P.job('v_cmp_nge_f32 s[100:101], s100, v11')
                P.job('s_or_b32 s100, s100, s101')
                P.job('v_mov_b32 v11, s100')
                freg = (FLAG, FLAG + 16, True, 'flag', None)
                fw = P.job(I('ds_write_b32 v12, v11', lds=freg), hi=start[n, 4])
                w1 = P.job(WAIT([fw.ins]), lo=start[n, 6] - 1, hi=start[n, 6] - 1, deps=[fw])
                b1 = P.job('s_barrier', lo=start[n, 6] - 1, hi=start[n, 6] - 1, deps=[(w1, 0)])
                F = NEGM[1]
                fr = P.job(I('ds_read_b128 %s, v13' % vr(F), lds=freg), deps=[b1], hi=start[n, 7])
                w2 = P.job(WAIT([fr.ins]), lo=start[n, 9], deps=[(fr, 8)])
                P.job('v_or_b32 v%d, v%d, v%d' % (F, F, F + 1), deps=[w2])
                P.job('v_or3_b32 v%d, v%d, v%d, v%d' % (F, F, F + 2, F + 3), deps=[w2])
                P.job('v_readfirstlane_b32 s100, v%d' % F)
                for m in range(12, 15): dma_wo(m, start[n, 6] + 2 + (m - 12) * GL, GL / 2.0, [b1])
                flush_plan()
                tmpblk = [SBLK[a, b] for a in range(4) for b in range(4)] + [PBLK[0, a, b] for a in range(2) for b in range(4)]
        for g in range(12):
            k = n * 12 + g
            st = start[n, g]
            pre = k < 3
            deps = [(bar[n], 0)]
            lo = max(prev_end(n, g, 4), 0)
            rj = [P.job(x, lo=lo, hi=lo + GL + 2, deps=deps, pre=pre) for x in reads_txt(n, g)]
            cover = [x.ins for x in rj]
            wd = list(rj)
            xq = g // 2 if (kind == 'W' and g % 2 == 0 and g // 2 < NQ and n + 1 <= 9) else None
            xd = g // 2 - 1 if (kind == 'W' and g % 2 == 0 and 0 <= g // 2 - 1 < NQ and n + 1 <= 9) else None
            if k == 0:
                for qt in range(NQ): cover += [x.ins for x in xr[0, qt]]
            if xd is not None: cover += [x.ins for x in xr[n + 1, xd]]; wd += xr[n + 1, xd]
            if g == 9 and n + 1 < 42: cover += dmas[TILES[n + 1]]
            if xq is not None and k > 0: cover += dmas['X%d_%d' % (n + 1, xq)]
            wj = P.job(WAIT(cover), lo=st - 1, hi=st - 1, deps=wd, first=True, pre=(k == 0), name='W%d' % g)
            waitjob[n, g] = wj
            if g == 1 and 11 <= n <= 40: advance('V' if kind == 'K' else 'K', st, n >= 40)
            if g == 9 and n + 1 < 42:
                bar[n + 1] = P.job('s_barrier', lo=st - 1, hi=st - 1, deps=[(wj, 0)])
                tl = after_bar[n + 1]
                span = opt.get('spw', 5) if n + 1 < 8 else opt.get('spa', 11)
                for i, t in enumerate(tl):
                    spc = span * GL / (6.0 * len(tl))
                    dma_tile(t, st + 4 + i * 6 * spc, spc, [bar[n + 1]], dyn=(n < 7 or n >= 11))
                if str(n) in str(opt.get('wp', '')).split(','):
                    if n >= 9: dma_group('warm', None, ['s_mov_b32 m0, %d' % (FLAG + 1024), 's_add_u32 s101, s101, %d' % (WROWS * 1280)],
                                         ['buffer_load_dword v11, s[48:51], s101 offen%s lds' % opt.get('wmpol', '')], st + 1, 1, [])
                    else: dma_group('warm', None, ['s_add_u32 s101, s101, %d' % (WROWS * 1280)],
                                    ['buffer_load_dword v18, v11, s[48:51], s101 offen%s' % opt.get('wmpol', '')], st + 1, 1, [])
                if n == 40:
                    for m in range(9, 12): dma_wo(m, st + 2 + (m - 9) * GL, GL / 2.0, [bar[n + 1]])
                if n >= 9: flush_plan()
            if xq is not None:
                wx = wj
                if k == 0: wx = P.job(WAIT(dmas['X1_0']), lo=GL - 3, hi=GL - 3, name='WX')
                xr[n + 1, xq] = x_reads(n + 1, xq, st - 1, st + GL + 2, [(wx, 0)])
            if k == 0:
                sp0 = GL / 2.0; at = 1; P.phase = -5
                if not PW1: sp0 = GL / 3.0; dma_tile(('W', 1), at, sp0, dyn=False); at += 6 * sp0
                for qt in range(NQ): dma_x(2, qt, at, sp0); at += 2 * sp0
                dma_tile(('W', 2), at, sp0, dyn=False); x3at = at + 6 * sp0; P.phase = 0
            if xd is not None and n + 3 <= 9:
                if n == 0:
                    x3at = max(x3at, st + 4); dma_x(3, xd, x3at, 2, [wj]); x3at += 4
                else: dma_x(n + 3, xd, st + 4, GL if xd < 3 else GL // 2, [wj])
            sl = str(opt.get('sl', '0,10,12,41')).split(',')
            if g == 0 and str(n) in sl: stamp(1 + sl.index(str(n)), st)
            rb = RING + (g % 4) * 8
            for qt in range(NQ):
                for e in range(2):
                    A = ar(rb + 4 * e)
                    if kind == 'W':
                        d = vr(qacc(g, qt)); P.mfma(d, A, ar(xfrag(n, e, qt)), '0' if (n == 0 and e == 0) else d)
                    elif kind == 'K':
                        kt, sp = g // 3, g % 3
                        d = vr(SBLK[kt, qt]); c = d
                        if sp == 0 and e == 0: c = '0' if (j == 0 and kt < SUBKT) else vr(NEGM[qt])
                        P.mfma(d, A, vr(qfrag(2 * sp + e, qt)), c)
                    else:
                        d = ar(oacc(g, qt)); P.mfma(d, A, vr(PBLK[j & 1, e, qt]), '0' if (j == 0 and e == 0) else d)
            if n == 9:
                for qt in range(NQ):
                    b = qacc(g, qt)
                    for r in range(4): P.job('v_mul_f32 v%d, s44, v%d' % (b + r, b + r), dlat=5)
                    for h in range(2): P.job('v_cvt_pk_bf16_f32 v%d, v%d, v%d' % (qfrag(g >> 1, qt) + 2 * (g & 1) + h, b + 2 * h, b + 2 * h + 1))
            if n == 10 and g == 2:
                for qt in range(NQ):
                    sb = SBLK[0, qt]; t = PBLK[1, 0, qt]
                    P.job('v_max3_f32 v%d, v%d, v%d, v%d' % (t, sb, sb + 1, sb + 2), dlat=5)
                    P.job('v_max_f32 v%d, v%d, v%d' % (t, t, sb + 3), dlat=5)
                    P.job('v_mov_b32 v%d, v%d' % (t + 1, t))
                    P.job('v_permlane32_swap_b32 v%d, v%d' % (t, t + 1))
                    P.job('v_max_f32 v%d, v%d, v%d' % (t, t, t + 1))
                    P.job('v_mov_b32 v%d, v%d' % (t + 1, t))
                    P.job('v_permlane16_swap_b32 v%d, v%d' % (t, t + 1))
                    P.job('v_max_f32 v%d, v%d, v%d' % (t, t, t + 1))
                    for r in range(4): P.job('v_sub_f32 v%d, 0, v%d' % (NEGM[qt] + r, t))
            if n == 41:
                for qt in range(NQ):
                    key = (g >> 1) * NQ + qt
                    t0 = tmpblk[(2 * key) % len(tmpblk)]; t = t0 if (g & 1) == 0 else tmpblk[(2 * key + 1) % len(tmpblk)]
                    for r in range(4): P.job('v_accvgpr_read_b32 v%d, a%d' % (t + r, oacc(g, qt) + r), dlat=5)
                    for r in range(4): P.job('v_mul_f32 v%d, v%d, v%d' % (t + r, t + r, NEGM[0] + qt))
                    for h in range(2): P.job('v_cvt_pk_bf16_f32 v%d, v%d, v%d' % (t0 + 2 * (g & 1) + h, t + 2 * h, t + 2 * h + 1))
                    if g & 1:
                        s = g >> 1
                        P.job('buffer_store_dwordx4 %s, v10, s[36:39], s%d offen offset:%d%s' % (vr(t0), 56 + 2 * qt + (s >> 2), (s & 3) * 1024, opt.get('opol', ' sc1')))
        if kind == 'K': softmax(j, SUBKT if j == 0 else 0)
    assert P.n() == total
    w0i = waitjob[0, 0].ins
    P.pre.remove(w0i); P.pre.append(w0i)
    P.start = start
    P.wo = {m: dmas['WO', m] for m in range(15)}
    return P

def k1_body(NQ, opt):
    dense = opt.get('dense', 5)
    def run(P, regions):
        slots_fn = lambda g: dense if g >= P.start[41, 1] else 2
        return schedule(P.mf, P.jobs, verbose=opt.get('verbose'), slots_fn=slots_fn, regions=regions)
    P1 = k1_build(NQ, opt); run(P1, ())
    st = P1.start
    P = k1_build(NQ, opt)
    regions = []
    for n0, pn, n1, ref in LOOPS:
        L0 = st[n0]; T = st[n0 + pn] - L0; L1 = st[n1]
        regions.append((L0, L1))
        cls = {}
        for j in P1.jobs:
            if L0 + ref * T <= j.gap < L0 + (ref + 1) * T:
                ph, nm, c = j.key
                k = ((ph - n0) % pn, nm, c)
                assert k not in cls, ('duplicate class', k)
                cls[k] = (j.gap - L0 - ((ph - n0) // pn) * T, j.ord)
        for j in P.jobs:
            if j.gap is not None: continue
            ph, nm, c = j.key
            if not (n0 - pn <= ph < n1 + pn): continue
            k = ((ph - n0) % pn, nm, c)
            if k in cls:
                p = L0 + ((ph - n0) // pn) * T + cls[k][0]
                if L0 <= p < L1: j.pin = (p, cls[k][1]); j.lo = j.hi = p
                elif p < L0: j.hi = min(j.hi, L0 - 1)
                else: j.lo = max(j.lo, L1)
            else:
                assert not (n0 <= ph < n1), ('no class for', j.key)
        for j in P.jobs:
            if j.gap is None and j.pin is None:
                if j.key[0] < n0: j.hi = min(j.hi, L0 - 1) if j.lo < L1 else j.hi
                elif j.key[0] >= n1: j.lo = max(j.lo, L1)
    for j in P.jobs:
        if j.dummy and j.pin is None: j.gap = -10
    body, left, over = run(P, regions)
    errs = verify(P.jobs)
    for e in errs[:20]: print('ERR', e)
    assert not errs
    marks = []
    idx = {id(m): i for i, m in enumerate(P.mf)}
    seq = []
    want = {}
    for li, (n0, pn, n1, ref) in enumerate(LOOPS):
        L0 = st[n0]; T = st[n0 + pn] - L0; L1 = st[n1]
        ex = (L1 - L0) % T
        for p in range(L0, L1 + 1, T):
            want.setdefault(p, []).append((li, 'it'))
            if ex and p + ex <= L1: want.setdefault(p + ex, []).append((li, 'ex'))
    for x in body:
        i = idx.get(id(x))
        if i is not None and i in want:
            for li, w in want[i]:
                m = I('; L%d %s' % (li, w)); m.mark = (li, w); seq.append(m)
        seq.append(x)
    return P.pre + seq + left, over, P.wo

def fold(seq, tag):
    out = list(seq)
    for li, (n0, pn, n1, ref) in enumerate(LOOPS):
        pos = [i for i, x in enumerate(out) if getattr(x, 'mark', None) == (li, 'it')]
        exs = [i for i, x in enumerate(out) if getattr(x, 'mark', None) == (li, 'ex')]
        segs = [out[pos[i]:pos[i + 1]] for i in range(len(pos) - 1)]
        end = pos[-1]
        if exs: segs.append(out[pos[-1]:exs[-1]]); end = exs[-1]
        for s in segs[1:]:
            for a, b in zip(segs[0], s): assert a.txt == b.txt, (tag, li, a.txt, b.txt)
            assert len(s) == len(segs[0]) or (exs and s is segs[-1])
        nit = len(pos) - 1
        lab = '%s_L%d' % (tag, li)
        body = segs[0][1:]
        if exs:
            e = exs[0] - pos[0] - 1
            body = body[:e] + [I('s_cmp_eq_u32 s3, %d' % nit), I('s_cbranch_scc1 %s_x' % lab), I('s_add_u32 s3, s3, 1')] + body[e + 1:] + [I('s_branch %s' % lab), I('%s_x:' % lab)]
        else:
            body = body + [I('s_add_u32 s3, s3, 1'), I('s_cmp_lg_u32 s3, %d' % nit), I('s_cbranch_scc1 %s' % lab)]
        out = out[:pos[0]] + [I('s_mov_b32 s3, 0'), I('%s:' % lab)] + body + out[end + 1:]
    return out

def unify(seq):
    for li in range(len(LOOPS)):
        pos = [i for i, x in enumerate(seq) if getattr(x, 'mark', None) == (li, 'it')]
        exs = [i for i, x in enumerate(seq) if getattr(x, 'mark', None) == (li, 'ex')]
        ends = pos[1:] + ([exs[-1]] if exs else [])
        segs = [seq[a:b] for a, b in zip(pos, ends)]
        for k in range(len(segs[0])):
            col = [s[k] for s in segs if k < len(s)]
            if getattr(col[0], 'cover', None) is None: continue
            c = {}
            for x in col:
                for nm, v in re.findall(r'(vmcnt|lgkmcnt)\((\d+)\)', x.txt): c[nm] = min(c.get(nm, 99), int(v))
            t = 's_waitcnt ' + ' '.join('%s(%d)' % (nm, c[nm]) for nm in ('vmcnt', 'lgkmcnt') if nm in c) if c else 's_nop 0'
            if len(set(x.txt for x in col)) > 1: print('   unified', sorted(set(x.txt for x in col)), '->', t)
            for x in col: x.txt = t; x.parse()

def k1_prologue(opt):
    L = []
    a = lambda t: L.extend(I(x) for x in t.strip().split('\n'))
    a('''s_cmp_lt_u32 s2, 256
s_cbranch_scc1 K1_go
s_endpgm
K1_go:
s_load_dwordx8 s[4:11], s[0:1], 0
s_load_dwordx2 s[18:19], s[0:1], 56
s_load_dwordx2 s[48:49], s[0:1], 32''')
    if opt.get('stamps'): a('s_memrealtime s[64:65]\ns_memtime s[68:69]')
    a('''v_lshrrev_b32 v29, 6, v0
v_and_b32 v30, 63, v0
v_readfirstlane_b32 s40, v29''')
    if opt.get('map', 0) == 0:
        a('s_and_b32 s46, s2, 7\ns_lshr_b32 s47, s2, 3')
    else:
        a('''s_and_b32 s46, s2, 1
s_lshl_b32 s46, s46, 2
s_bfe_u32 s52, s2, 0x20003
s_or_b32 s46, s46, s52
s_bfe_u32 s47, s2, 0x20001
s_lshl_b32 s47, s47, 3
s_lshr_b32 s52, s2, 5
s_or_b32 s47, s47, s52''')
    if not opt.get('qrot', 1): a('s_mov_b32 s13, 0')
    elif opt.get('map', 0) == 0: a('s_mul_i32 s52, s47, 26\ns_lshr_b32 s52, s52, 8\ns_mul_i32 s52, s52, 10\ns_sub_u32 s13, s47, s52')
    else: a('''s_bfe_u32 s53, s2, 0x10003
s_mul_i32 s53, s53, 5
s_add_u32 s52, s52, s53
s_bfe_u32 s53, s2, 0x10004
s_lshl_b32 s53, s53, 1
s_add_u32 s52, s52, s53
s_sub_u32 s53, s52, 10
s_min_u32 s13, s52, s53''')
    a('s_lshl_b32 s14, s13, 7\ns_mul_i32 s13, s13, %d' % WSTEP)
    a('''v_lshrrev_b32 v31, 3, v30
v_and_b32 v32, 6, v31
v_and_b32 v33, 7, v30
v_xor_b32 v32, v32, v33
v_lshl_add_u32 v31, v29, 6, v31
v_mul_u32_u24 v31, 1280, v31
v_lshl_add_u32 v25, v32, 4, v31
v_add_u32 v26, 9216, v25
v_add_u32 v27, 18432, v25
v_add_u32 v28, 27648, v25''')
    a('v_mul_u32_u24 v34, 6144, v29\nv_lshlrev_b32 v35, 4, v29')
    for t in range(3):
        a('''v_add_u32 v31, %d, v30
v_mul_u32_u24 v32, 171, v31
v_lshrrev_b32 v32, 12, v32
v_mul_u32_u24 v33, 24, v32
v_sub_u32 v33, v31, v33
v_lshlrev_b32 v36, 1, v32
v_and_b32 v36, 4, v36
v_xor_b32 v33, v33, v36
v_add_u32 v36, v35, v32
v_mul_u32_u24 v36, 12288, v36
v_lshl_add_u32 v33, v33, 4, v36
v_subrev_u32 v%d, %d, v33
v_and_b32 v32, 6, v32
v_xor_b32 v32, v32, v30
v_lshl_add_u32 v%d, v32, 4, v34''' % (64 * t, 22 + t, 1024 * t, 7 + t))
    a('''s_mul_i32 s41, s40, 6144
s_lshl_b32 s42, s40, 13
s_add_u32 s42, s42, %d
s_mul_i32 s52, s46, 307200
s_mul_i32 s53, s47, 384
s_lshl_b32 s54, s46, 5
s_add_u32 s54, s54, s47
s_mul_i32 s54, s54, 393216
s_mul_i32 s55, s46, 2880
s_mul_i32 s56, s47, 6
s_add_u32 s55, s55, s56
s_lshl_b32 s55, s55, 10
s_mov_b32 s22, 307200
s_mov_b32 s23, 0x00020000
s_sub_u32 s26, 7864320, s53
s_mov_b32 s27, 0x00020000
s_mov_b32 s30, 393216
s_mov_b32 s31, 0x00020000
s_mov_b32 s34, 393216
s_mov_b32 s35, 0x00020000
s_sub_u32 s38, 23592960, s55
s_mov_b32 s39, 0x00020000
s_waitcnt lgkmcnt(0)
s_add_u32 s20, s4, s52
s_addc_u32 s21, s5, 0
s_add_u32 s24, s10, s53
s_addc_u32 s25, s11, 0
s_add_u32 s28, s6, s54
s_addc_u32 s29, s7, 0
s_add_u32 s32, s8, s54
s_addc_u32 s33, s9, 0
s_add_u32 s36, s18, s55
s_addc_u32 s37, s19, 0''' % XB0)
    mid = '''s_add_u32 s52, s18, %d
s_addc_u32 s53, s19, 0
s_load_dword s45, s[52:53], 1024
s_mov_b32 s54, 2048
s_mov_b32 s55, 0x00020000
''' % k2f.OBYTES + k2f.inner(opt, 's56', 's57', 's58') + '''
s_lshl_b32 s59, s56, 6
''' + k2f.outer(opt, 's56', 's57', 's58') + '''
s_lshl_b32 s57, s57, 7
s_add_u32 s48, s48, s57
s_addc_u32 s49, s49, 0
s_sub_u32 s50, 7864320, s57
s_mov_b32 s51, 0x00020000
s_mov_b32 s101, %d
''' % (-(384 if opt.get('kmap', 1) else 192) * 1280) + '''v_lshrrev_b32 v31, 3, v30
v_and_b32 v32, 6, v31
v_and_b32 v33, 7, v30
v_xor_b32 v32, v32, v33
v_mul_u32_u24 v33, 1536, v29
v_add_u32 v31, v33, v31
v_mul_u32_u24 v31, 1280, v31
v_lshl_add_u32 v14, v32, 4, v31
v_add_u32 v15, 9216, v14
v_add3_u32 v11, v33, s59, v30
v_mul_u32_u24 v11, 1280, v11
'''
    mid += '''v_lshrrev_b32 v31, 4, v30
v_and_b32 v32, 15, v30
v_and_b32 v33, 6, v32
v_xor_b32 v33, v33, v31
v_lshlrev_b32 v33, 4, v33
v_lshl_add_u32 v20, v32, 7, v33
v_add_u32 v20, s42, v20
v_xor_b32 v21, 64, v20
v_mul_u32_u24 v1, 384, v32
v_add_u32 v1, v1, v33
v_add_u32 v1, %d, v1
v_xor_b32 v2, 64, v1
v_bfe_u32 v32, v30, 2, 2
v_lshl_add_u32 v33, v31, 3, v32
v_mul_u32_u24 v33, 384, v33
v_lshlrev_b32 v32, 1, v32
v_and_b32 v32, 4, v32
v_and_b32 v34, 3, v30
v_xor_b32 v32, v32, v34
v_lshl_add_u32 v16, v32, 4, v33
v_xor_b32 v17, 64, v16
v_lshrrev_b32 v31, 2, v30
v_and_b32 v32, 6, v31
v_lshrrev_b32 v33, 1, v34
v_xor_b32 v32, v32, v33
v_lshlrev_b32 v32, 4, v32
v_and_b32 v33, 1, v30
v_lshl_add_u32 v32, v33, 3, v32
v_mul_u32_u24 v31, 384, v31
v_add_u32 v3, v31, v32
v_add_u32 v3, %d, v3
v_xor_b32 v4, 32, v3
v_xor_b32 v5, 64, v3
v_xor_b32 v6, 96, v3
v_mul_u32_u24 v10, 786432, v29
v_lshl_add_u32 v10, v30, 4, v10
v_lshlrev_b32 v12, 2, v29
v_add_u32 v12, %d, v12
v_mov_b32 v13, %d
v_mov_b32 v31, 0x3f803f80
v_accvgpr_write_b32 a240, v31
v_accvgpr_write_b32 a241, v31
v_accvgpr_write_b32 a242, v31
v_accvgpr_write_b32 a243, v31
s_mov_b32 s44, 0x%08x
s_mov_b32 s4, 98304
s_mov_b32 s5, 49152
s_mov_b32 s6, 73728
s_mov_b32 s7, 49152
s_add_u32 s12, s41, 49152
s_add_u32 s15, s41, s12''' % (2 * TS, 2 * TS, FLAG, FLAG, f2u(math.log2(math.e) / math.sqrt(192.0)))
    mid = mid.split('\n')
    for qt in range(4):
        for hh in range(2): mid.append('s_mov_b32 s%d, %d' % (56 + 2 * qt + hh, qt * 196608 + hh * 4096))
    return L, mid

def stamp_code(label, nst, tmp=96):
    L = []
    a = lambda t: L.extend(I(x) for x in t.strip().split('\n'))
    a('s_waitcnt vmcnt(0)\ns_memrealtime s[66:67]\ns_memtime s[70:71]\ns_memrealtime s[%d:%d]\ns_memtime s[%d:%d]\ns_waitcnt lgkmcnt(0)' % (72 + 4 * nst, 73 + 4 * nst, 74 + 4 * nst, 75 + 4 * nst))
    a('s_mov_b64 s[72:73], s[64:65]\ns_mov_b64 s[74:75], s[68:69]')
    a('''s_add_u32 s96, s18, 0x%x
s_addc_u32 s97, s19, 0
s_mov_b32 s98, 0x1000000
s_mov_b32 s99, 0x00020000
s_cmp_lg_u32 s40, 0
s_cbranch_scc1 %s
s_mul_i32 s4, s2, 128
v_mov_b32 v11, s4
s_mov_b64 exec, 1''' % (STAMP_OFF, label))
    regs = [64, 66, 68, 70] + [72 + 2 * i for i in range(2 * nst + 2)]
    for i, r in enumerate(regs):
        a('v_mov_b32 v14, s%d\nv_mov_b32 v15, s%d\nbuffer_store_dwordx2 v[14:15], v11, s[96:99], 0 offen offset:%d\ns_nop 1' % (r, r + 1, 8 * i))
    a('s_waitcnt vmcnt(0)\n%s:' % label)
    return L

def k1_fallback(opt):
    L = []
    a = lambda t: L.extend(I(x) for x in t.strip().split('\n'))
    MX = 12
    a('K1_fb:\ns_waitcnt vmcnt(0) lgkmcnt(0)\ns_barrier')
    a('s_sub_u32 s6, s6, %d\ns_sub_u32 s7, s7, %d' % (4 * TS, 4 * TS))
    for r in (1, 2): a('v_subrev_u32 v%d, s6, v%d' % (r, r))
    for r in (3, 4, 5, 6): a('v_subrev_u32 v%d, s7, v%d' % (r, r))
    for qt in range(4):
        a('v_mov_b32 v%d, 0xff7fffff' % (MX + qt))
        for r in range(4): a('v_mov_b32 v%d, 0' % (NEGM[qt] + r))
    a('s_mov_b32 s4, 0\nK1_fb_pass:\ns_mov_b32 s5, 0')
    for i in range(208): a('v_accvgpr_write_b32 a%d, 0' % i)
    a('K1_fb_loop:')
    def load(srd):
        for half in range(2):
            a('s_add_u32 m0, s41, %d\ns_add_u32 s43, s5, %d' % (4 * TS + half * 3072, half * 3072))
            for t in range(3): a('buffer_load_dwordx4 v%d, %s, s43 offen offset:%d lds' % (7 + t, srd, 1024 * t))
        a('s_waitcnt vmcnt(0)\ns_barrier')
    load('s[28:31]')
    for kt in range(4):
        for s in range(6): a('ds_read_b128 %s, v%d offset:%d' % (ar(RING + 4 * s), 1 + (s & 1), 128 * (s >> 1) + 6144 * kt))
        a('s_waitcnt lgkmcnt(0)')
        for qt in range(4):
            for s in range(6):
                d = vr(SBLK[kt, qt])
                a('v_mfma_f32_16x16x32_bf16 %s, %s, %s, %s' % (d, ar(RING + 4 * s), vr(qfrag(s, qt)), vr(NEGM[qt]) if s == 0 else d))
    a('s_nop 7\ns_cmp_lg_u32 s4, 0\ns_cbranch_scc1 K1_fb_pv')
    for kt in range(4):
        for qt in range(4):
            sb = SBLK[kt, qt]
            a('v_max3_f32 v%d, v%d, v%d, v%d\nv_max3_f32 v%d, v%d, v%d, v%d' % (MX + qt, MX + qt, sb, sb + 1, MX + qt, MX + qt, sb + 2, sb + 3))
    a('s_branch K1_fb_next\nK1_fb_pv:\ns_barrier')
    load('s[32:35]')
    for kt in range(4):
        for qt in range(4):
            sb = SBLK[kt, qt]
            for r in range(4): a('v_exp_f32 v%d, v%d' % (sb + r, sb + r))
    a('s_nop 0')
    for kt in range(4):
        for qt in range(4):
            sb = SBLK[kt, qt]; pb = PBLK[0, kt >> 1, qt] + 2 * (kt & 1)
            for h in range(2): a('v_cvt_pk_bf16_f32 v%d, v%d, v%d' % (pb + h, sb + 2 * h, sb + 2 * h + 1))
    a('s_nop 1')
    for qt in range(4):
        for kp in range(2): a('v_mfma_f32_16x16x32_bf16 %s, %s, %s, %s' % (ar(LACC + 4 * qt), ar(ONES), vr(PBLK[0, kp, qt]), ar(LACC + 4 * qt)))
    for dt in range(12):
        for kp in range(2):
            for hh in range(2): a('ds_read_b64_tr_b16 %s, v%d offset:%d' % (ar(RING + 4 * kp + 2 * hh, 2), 3 + (dt & 3), 128 * (dt >> 2) + 6144 * hh + 12288 * kp))
        a('s_waitcnt lgkmcnt(0)')
        for qt in range(4):
            for kp in range(2): a('v_mfma_f32_16x16x32_bf16 %s, %s, %s, %s' % (ar(oacc(dt, qt)), ar(RING + 4 * kp), vr(PBLK[0, kp, qt]), ar(oacc(dt, qt))))
    a('''K1_fb_next:
s_nop 7
s_barrier
s_add_u32 s5, s5, %d
s_cmp_lt_u32 s5, %d
s_cbranch_scc1 K1_fb_loop
s_cmp_lg_u32 s4, 0
s_cbranch_scc1 K1_fb_out''' % (TS, 16 * TS))
    for qt in range(4):
        t = MX + qt; u = PBLK[0, 0, 0]
        a('''v_mov_b32 v%d, v%d
s_nop 1
v_permlane32_swap_b32 v%d, v%d
v_max_f32 v%d, v%d, v%d
v_mov_b32 v%d, v%d
s_nop 1
v_permlane16_swap_b32 v%d, v%d
v_max_f32 v%d, v%d, v%d''' % (u, t, t, u, t, t, u, u, t, t, u, t, t, u))
        for r in range(4): a('v_sub_f32 v%d, 0, v%d' % (NEGM[qt] + r, t))
    a('s_mov_b32 s4, 1\ns_branch K1_fb_pass\nK1_fb_out:')
    for qt in range(4):
        if qt == 3: a('s_cmp_eq_u32 s40, 3\ns_cbranch_scc1 K1_done')
        a('v_accvgpr_read_b32 v11, a%d\ns_nop 0\nv_rcp_f32 v11, v11\ns_nop 0' % (LACC + 4 * qt))
        for s in range(6):
            t = 32 + 8 * (s & 1)
            for e in range(2):
                for r in range(4): a('v_accvgpr_read_b32 v%d, a%d' % (t + 4 * e + r, oacc(2 * s + e, qt) + r))
            for r in range(8): a('v_mul_f32 v%d, v%d, v11' % (t + r, t + r))
            for h in range(4): a('v_cvt_pk_bf16_f32 v%d, v%d, v%d' % (t + h, t + 2 * h, t + 2 * h + 1))
            a('buffer_store_dwordx4 %s, v10, s[36:39], s%d offen offset:%d%s' % (vr(t), 56 + 2 * qt + (s >> 2), (s & 3) * 1024, opt.get('opol', ' sc1')))
    a('s_branch K1_done')
    return L

def finish(seq, name, verbose=False):
    resolve_waits(seq)
    if any(hasattr(x, 'mark') for x in seq): unify(seq)
    seq, nn = fix_hazards(seq, verbose)
    errs, info = check(seq, name)
    for e in errs[:20]: print('ERR', e)
    assert not errs, '%d errors' % len(errs)
    return seq, info, nn

def sizes(seq):
    import subprocess, tempfile, os
    ins = [x for x in seq if x.kind != 'label']
    d = tempfile.mkdtemp()
    open(d + '/a.s', 'w').write('.amdgcn_target "amdgcn-amd-amdhsa--gfx950"\n.text\n' + '\n'.join(x.txt for x in seq) + '\ns_endpgm\n')
    subprocess.check_call(['clang', '-x', 'assembler', '-target', 'amdgcn-amd-amdhsa', '-mcpu=gfx950', '-c', d + '/a.s', '-o', d + '/a.o'])
    o = subprocess.check_output(['llvm-objdump', '-d', d + '/a.o'], text=True)
    offs = [int(m.group(1), 16) for m in re.finditer(r'// ([0-9A-F]{12}):', o)]
    assert len(offs) == len(ins) + 1, (len(offs), len(ins))
    for x, a, b in zip(ins, offs, offs[1:]): x.size = b - a

def add_touch(seq, tag):
    chains = []
    for mark, lab in (('; touch', tag + '_tr'), ('; touch2', tag + '_ts')):
        t = [x.txt for x in seq].index(mark)
        chain = [I('s_mov_b64 vcc, 1')]
        for w in range(4): chain += [I('s_cmp_eq_u32 s40, %d' % w), I('s_cbranch_scc1 %s' % lab)]
        chain += [I('%s:' % lab), I('s_mov_b64 vcc, 0')]
        seq = seq[:t] + chain + seq[t + 1:]
        chains.append((chain, lab))
    sizes(seq)
    out = []; off = 0; nxt = 4096; pads = []; cold = False
    def pad():
        nonlocal off
        b = I('s_cbranch_vccnz X'); pads.append((off, b)); out.append(I('%s_p%d:' % (tag, len(pads) - 1))); out.append(b); off += 4
    inchain = set(id(x) for c, _ in chains for x in c[1:])
    for x in seq:
        if x.txt == '; cold': cold = True; print('   hot code bytes', off)
        if x.txt == '; pad':
            if off % 4096 > 64: pad()
            continue
        if x.kind != 'label':
            if off >= nxt and not cold and id(x) not in inchain: pad(); nxt += 4096
            off += x.size
        out.append(x)
    split = next(i for i, x in enumerate(out) if x.txt == 'K1_w3:')
    split2 = out.index(chains[1][0][0])
    first = [i for i, (o, b) in enumerate(pads) if out.index(b) < split]
    second = [i for i, (o, b) in enumerate(pads) if split <= out.index(b) < split2]
    third = [i for i, (o, b) in enumerate(pads) if split2 <= out.index(b)]
    order = []
    for k in range(max(len(first), len(second))):
        if k < len(second): order.append(second[k])
        if k < len(first): order.append(first[k])
    for (chain, lab), order in zip(chains, (order, third)):
        br = [x for x in chain if x.op == 's_cbranch_scc1']
        for w in range(4):
            mine = order[w::4]
            if not mine: continue
            br[w].txt = 's_cbranch_scc1 %s_p%d' % (tag, mine[0])
            for a, b in zip(mine, mine[1:] + [None]):
                pads[a][1].txt = 's_cbranch_vccnz ' + ('%s_p%d' % (tag, b) if b is not None else lab)
    print('   pads', len(pads), [o for o, b in pads], 'second chain', third)
    return out

def gen_k1(opt):
    pro, mid = k1_prologue(opt)
    opt = dict(opt); opt['mid'] = mid
    out = []; infos = []
    pro, _ = fix_hazards(pro)
    sl = str(opt.get('sl', '0,10,12,41')).split(',')
    def stamp(nm):
        if not opt.get('stamps') or nm not in sl: return []
        k = 1 + sl.index(nm)
        return [I('s_memrealtime s[%d:%d]' % (72 + 4 * k, 73 + 4 * k)), I('s_memtime s[%d:%d]' % (74 + 4 * k, 75 + 4 * k)), I('s_waitcnt lgkmcnt(0)')]
    tails = []
    for NQ in (4, 3):
        seq, over, wo = k1_body(NQ, opt)
        seq += [I('s_cmp_lg_u32 s100, 0'), I('s_cbranch_scc1 K1_fb'), WAIT(sum((wo[m] for m in range(12)), []))]
        seq += k2f.tail(opt, wo, stamp)
        full, info, nn = finish(pro + seq, 'K1/NQ%d' % NQ, opt.get('verbose'))
        assert full[:len(pro)] == pro
        print('K1 NQ=%d: %d instrs, overflow %d, nops %d, est cycles %d' % (NQ, len(full), over, nn, est_cycles(full)))
        infos.append(info)
        if opt.get('fold', 1): full = fold(full, 'K1q%d' % NQ)
        print('   folded: %d instrs' % len(full))
        d = [x.txt for x in full].index('K1_done:')
        tails.append(full[d:]); full = full[:d]
        t = [x.txt for x in full].index('; touch')
        if NQ == 4:
            common = [x.txt for x in full[:t]]
            out += full[:t + 1] + [I('s_cmp_eq_u32 s40, 3'), I('s_cbranch_scc1 K1_w3')] + full[t + 1:] + [I('s_branch K1_done'), I('K1_w3:'), I('; pad')]
        else:
            assert common == [x.txt for x in full[:t]]
            out += full[t + 1:]
    ce = cross_check(infos)
    for e in ce: print('ERR', e)
    assert not ce
    assert [x.txt for x in tails[0]] == [x.txt for x in tails[1]]
    out += k2f.patch(tails[0])
    out += [I('; cold')]
    if opt.get('stamps'): out += stamp_code('K1_st', 5)
    out += [I('s_endpgm')]
    fb, _, _ = finish(k1_fallback(opt), 'fb')
    out += k2f.rest(opt) + fb
    if opt.get('touch', 1): out = add_touch(out, 'K1')
    return out

def kdesc(name, vgpr, sgpr, accum):
    return '''.section .rodata,"a"
.p2align 6
.amdhsa_kernel %s
  .amdhsa_next_free_vgpr %d
  .amdhsa_next_free_sgpr %d
  .amdhsa_accum_offset %d
  .amdhsa_group_segment_fixed_size 0
  .amdhsa_kernarg_size 64
  .amdhsa_user_sgpr_count 2
  .amdhsa_user_sgpr_kernarg_segment_ptr 1
  .amdhsa_system_sgpr_workgroup_id_x 1
.end_amdhsa_kernel
''' % (name, vgpr, sgpr, accum)

MACROS = {}
def compact(x):
    t = x.txt
    m = re.fullmatch(r'v_mfma_f32_16x16x32_bf16 ([va])\[(\d+):\d+\], ([va])\[(\d+):\d+\], ([va])\[(\d+):\d+\], (.*)', t)
    if m:
        dc, d, ac, a, bc, b, c = m.groups()
        o = lambda cl, n: '%s[\\%s:\\%s+3]' % (cl, n, n)
        if c == '0': suf, cs, extra = 'Z', '0', ''
        elif c == x.dreg: suf, cs, extra = '', o(dc, 'd'), ''
        else: suf, cs, extra = 'C', o(dc, 'c'), ',' + re.match(r'[va]\[(\d+)', c).group(1)
        nm = 'M' + dc + ac + bc + suf
        MACROS[nm] = '.macro %s d,a,b%s\nv_mfma_f32_16x16x32_bf16 %s, %s, %s, %s\n.endm\n' % (nm, ',c' if extra else '', o(dc, 'd'), o(ac, 'a'), o(bc, 'b'), cs)
        return '%s %s,%s,%s%s' % (nm, d, a, b, extra)
    m = re.fullmatch(r'ds_read_(b64_tr_b16|b128) ([va])\[(\d+):\d+\], v(\d+) offset:(\d+)', t)
    if m:
        k, dc, d, a, off = m.groups()
        nm = ('T' if k != 'b128' else 'R') + dc; w = 1 if k != 'b128' else 3
        MACROS[nm] = '.macro %s d,a,o\nds_read_%s %s[\\d:\\d+%d], v\\a offset:\\o\n.endm\n' % (nm, k, dc, w)
        return '%s %s,%s,%s' % (nm, d, a, off)
    m = re.fullmatch(r'v_exp_f32 v(\d+), v(\d+)', t)
    if m and m.group(1) == m.group(2):
        MACROS['EX'] = '.macro EX d\nv_exp_f32 v\\d, v\\d\n.endm\n'
        return 'EX %s' % m.group(1)
    m = re.fullmatch(r'v_cvt_pk_bf16_f32 v(\d+), v(\d+), v(\d+)', t)
    if m:
        MACROS['CV'] = '.macro CV d,a,b\nv_cvt_pk_bf16_f32 v\\d, v\\a, v\\b\n.endm\n'
        return 'CV %s,%s,%s' % m.groups()
    m = re.fullmatch(r's_waitcnt lgkmcnt\((\d+)\)', t)
    if m:
        MACROS['WL'] = '.macro WL n\ns_waitcnt lgkmcnt(\\n)\n.endm\n'
        return 'WL %s' % m.group(1)
    return t.replace(', ', ',')

def emit(kernels, comp=True):
    s = ''
    for name, grid, lds, seq, vg, acc in kernels:
        s += '; @launch grid=(%d,1,1) block=(256,1,1) lds=%d\n' % (grid, lds)
    s += '.amdgcn_target "amdgcn-amd-amdhsa--gfx950"\n'
    body = ''
    for name, grid, lds, seq, vg, acc in kernels:
        body += '.text\n.globl %s\n.p2align 12\n.p2align 8\n.type %s,@function\n%s:\n' % (name, name, name)
        body += '\n'.join((compact(x) if comp else x.txt) for x in seq) + '\n'
        body += kdesc(name, vg, 102, acc)
    return s + ''.join(MACROS.values()) + body

if __name__ == '__main__':
    opt = {}
    outp = sys.argv[1]
    for a in sys.argv[2:]:
        k, v = a.split('=')
        try: v = int(v)
        except ValueError: v = v.replace('_', ' ')
        opt[k] = v
    ks = []
    if opt.get('fixw'): k2f.WSTEP = 0
    if opt.get('k1', 1): ks.append(('standalone__gqa_block_cached__near_ridge_kernel', 256, 163840, gen_k1(opt), 512, 256))
    txt = emit(ks, opt.get('comp', 1))
    open(outp, 'w').write(txt)
    print(outp, len(txt), 'bytes')
```

```python
from sched import *

TS = 24576
SLOTORD = [3, 5, 0, 1, 2, 4]
OBYTES = 23592960
WSTEP = 40960
def vr(b, n=4): return 'v[%d:%d]' % (b, b + n - 1)
def ar(b, n=4): return 'a[%d:%d]' % (b, b + n - 1)
def haddr(h): return SLOTORD[h // 3] * TS + (h % 3) * 2048
def hreg(m, h):
    s = SLOTORD[h // 3]
    return (s * TS, (s + 1) * TS, False, ('WO', m), 100 + h)

def inner(opt, ri, ci, tmp):
    C = 5 if opt.get('kmap', 1) else 10
    return '''s_lshr_b32 %(ci)s, s2, 3
s_mul_i32 %(ri)s, %(ci)s, %(m)d
s_lshr_b32 %(ri)s, %(ri)s, 8
s_mul_i32 %(t)s, %(ri)s, %(C)d
s_sub_u32 %(ci)s, %(ci)s, %(t)s''' % dict(ri=ri, ci=ci, t=tmp, C=C, m=260 // C)

def outer(opt, rb, cb, tmp):
    if opt.get('kmap', 1):
        t = '''s_and_b32 %(t)s, s2, 1
s_mul_i32 %(t)s, %(t)s, 5
s_add_u32 %(cb)s, %(cb)s, %(t)s
s_and_b32 %(t)s, s2, 6
'''
    else: t = 's_and_b32 %(t)s, s2, 7\n'
    return (t + 's_mul_i32 %(t)s, %(t)s, 3\ns_add_u32 %(rb)s, %(rb)s, %(t)s') % dict(rb=rb, cb=cb, t=tmp)

def rotation(opt, ri, ci):
    km = opt.get('kmap', 1)
    W = opt.get('win', 12); ra = opt.get('ra', 2 if km else 4); rc = opt.get('rc', 5 if km else 1)
    n = (ra * (6 if km else 3) + rc * (4 if km else 9)) // W
    t = 's_mul_i32 %(d)s, %(d)s, %(ra)d\ns_mul_i32 %(t)s, %(t)s, %(rc)d\ns_add_u32 %(d)s, %(d)s, %(t)s\n'
    t += 's_sub_u32 %(t)s, %(d)s, %(W)d\ns_min_u32 %(d)s, %(d)s, %(t)s\n' * n
    return t.strip() % dict(d=ri, t=ci, ra=ra, rc=rc, W=W)

def tail(opt, W0, stamp, late):
    L = []
    a = lambda t: L.extend(I(x) for x in t.strip().split('\n'))
    NR = opt.get('nr', 20); D = opt.get('dep', 4); PQ = opt.get('pq', 4)
    SP = opt.get('sp', 15) / 10.0; PL = opt.get('pl', 4)
    WIN = opt.get('win', 12); wpol = opt.get('k2w', '')
    ACC = 24; OB = ACC + 80; AV = OB + 20 * D; AV += (-AV) % 4
    assert NR <= 16 + (256 - AV) // 16
    def afrag(k, nt, n=4, o=0):
        s = k % NR
        return ar(16 * s + 4 * nt + o, n) if s < 16 else vr(AV + 16 * (s - 16) + 4 * nt + o, n)
    ofrag = lambda k, qt: OB + (k % D) * 20 + qt * 4
    acc = lambda qt, nt: ACC + (qt * 4 + nt) * 4
    W = dict(W0); half = {m: m for m in W0}; T = {}; O = {}
    nm = [len(W0)]; free = []
    def step(reg, k, unit):
        if k + 1 >= 48: return []
        if opt.get('fixo') and reg == 's15': unit = 0
        w = (k + 1) // WIN
        inc = unit + (WIN * unit if (k + 1) % WIN == 0 else 0)
        return [I('s_add_u32 %s, %s, %d' % (reg, reg, inc)), I('s_cmp_eq_u32 %s, %d' % (reg, (w + 1) * WIN * unit)),
                I('s_cselect_b32 %s, %d, %s' % (reg, w * WIN * unit, reg))]
    def dma():
        m = nm[0]; nm[0] += 1
        h = free.pop(0); half[m] = h; hh = m & 1
        W[m] = [I('buffer_load_dwordx4 v%d, s[48:51], s14 offen offset:%d%s lds' % (6 + 2 * hh + t, 1024 * t, wpol), lds=hreg(m, h)) for t in range(2)]
        return [I('s_add_u32 m0, s41, %d' % haddr(h))], W[m], (step('s14', m // 2, WSTEP) if hh else [])
    def tr(k):
        T[k] = []
        for nt in range(4):
            for hh in range(2):
                h = half[2 * k + hh]; ad = haddr(h); st = ad // (3 * TS)
                T[k].append(I('ds_read_b64_tr_b16 %s, v%d offset:%d' % (afrag(k, nt, 2, 2 * hh), 12 + 4 * st + nt, ad - st * 3 * TS), lds=hreg(2 * k + hh, h)))
        return T[k]
    def release(k): free.extend([half[2 * k], half[2 * k + 1]])
    def ld_o(k, qt):
        x = I('buffer_load_dwordx4 %s, v%d, s[20:23], s15 offen sc1' % (vr(ofrag(k, qt)), 1 + qt))
        O[k, qt] = x
        return x
    tn = [0]
    def trace():
        if opt.get('trace') and tn[0] < 64:
            a('s_memrealtime s[90:91]\ns_waitcnt lgkmcnt(0)\nv_writelane_b32 v255, s90, %d' % tn[0]); tn[0] += 1
    a('K1_done:')
    if opt.get('ktrace'): a('v_accvgpr_read_b32 v255, a244\ns_nop 1\nv_lshrrev_b32 v255, 6, v255')
    trace()
    L += stamp('j')
    late = [I(t) for t in late]; stores = list(late)
    a('''s_load_dwordx2 s[28:29], s[0:1], 40
v_and_b32 v24, 63, v0
v_lshrrev_b32 v25, 2, v24
v_and_b32 v26, 6, v25
v_bfe_u32 v27, v24, 1, 1
v_xor_b32 v26, v26, v27
v_lshlrev_b32 v26, 4, v26
v_lshl_add_u32 v26, v25, 7, v26
v_and_b32 v27, 1, v24
v_lshl_add_u32 v26, v27, 3, v26
v_add_u32 v12, s41, v26
v_add_u32 v16, %d, v12
v_xor_b32 v17, 32, v16
v_xor_b32 v18, 64, v16
v_xor_b32 v19, 96, v16''' % (3 * TS))
    L += tr(0)
    a('''v_xor_b32 v13, 32, v12
v_xor_b32 v14, 64, v12
v_xor_b32 v15, 96, v12
v_lshrrev_b32 v25, 3, v24
v_and_b32 v26, 6, v25
v_and_b32 v27, 7, v24
v_xor_b32 v26, v26, v27
s_mul_i32 s4, s40, 1536
v_add_u32 v25, s4, v25
v_mul_u32_u24 v25, 1280, v25
v_lshl_add_u32 v6, v26, 4, v25
v_add_u32 v7, 9216, v6
v_add_u32 v8, 20480, v6
v_add_u32 v9, 29696, v6
s_waitcnt lgkmcnt(0)
s_barrier''')
    free.extend(h for h in range(len(W0), 18))
    setup = ('''s_mul_i32 s4, s40, 49152
v_lshl_add_u32 v1, v24, 4, s4
v_add_u32 v2, 196608, v1
v_add_u32 v3, 393216, v1
v_add_u32 v4, 589824, v1
v_add_u32 v5, 786432, v1
s_lshl_b32 s4, s46, 7
s_lshl_b32 s5, s47, 2
s_add_u32 s4, s4, s5
v_mov_b32 v20, s4
v_mov_b32 v21, s45
''' + inner(opt, 's46', 's47', 's4') + '\n' + outer(opt, 's46', 's47', 's4') + '''
s_mul_i32 s4, s46, 983040
s_sub_u32 s22, %d, s4
s_add_u32 s20, s18, s4
s_addc_u32 s21, s19, 0
s_lshl_b32 s5, s47, 7
s_mul_i32 s6, s46, 102400
s_add_u32 s6, s6, s5
s_sub_u32 s30, 2457600, s6
s_add_u32 s28, s28, s6
s_addc_u32 s29, s29, 0
s_mul_i32 s4, s46, 43
s_and_b32 s4, s4, 0x380
s_lshl_b32 s5, s40, 5
s_add_u32 s4, s4, s5
v_and_b32 v22, 7, v24
v_lshl_add_u32 v22, v22, 2, s4
s_mov_b32 s7, %d''' % (OBYTES, opt.get('spin', 40000)))
    mfirst = nm[0]; pub = [None]; poll = None
    def publish():
        L.append(WAIT(late) if opt.get('cnt') else I('s_waitcnt vmcnt(0)'))
        a('''s_barrier
s_cmp_lg_u32 s40, 0
s_cbranch_scc1 K2_pub
s_mov_b64 exec, 1
; flagstore
s_mov_b64 exec, -1
K2_pub:
s_cmp_ge_u32 s2, 240
s_cbranch_scc1 K2_rest''')
        L.extend(stamp('p'))
    for k in range(1, NR + 1):
        if k < NR: L += ([WAIT(W[2 * k] + W[2 * k + 1])] if k >= 6 else []) + tr(k)
        if k == 2: a(setup)
        if k == opt.get('t2', 5): a('; touch2')
        L.append(WAIT(T[k - 1])); release(k - 1)
        trace()
        while free:
            if pub[0] == nm[0]: publish()
            if 2 * (NR + 9) - nm[0] == PQ:
                assert pub[0] is not None and pub[0] <= nm[0]
                poll = I('buffer_load_dword v23, v22, s[52:55], 0 offen sc1'); L.append(poll)
            p, w, q = dma()
            L += p
            while stores and len(late) - len(stores) < (nm[0] - mfirst) / SP:
                L.append(stores.pop(0))
                if not stores: pub[0] = nm[0] + PL
            L += w + q
    assert nm[0] == 2 * (NR + 9)
    L.append(WAIT([poll]))
    L += stamp('e')
    a('; spin')
    L += stamp('f')
    for k in range(D):
        L += [ld_o(k, qt) for qt in range(5)] + step('s15', k, 1024)
    issued = {m: -100 for m in W}
    m0 = nm[0]; rho = opt.get('rho', 0) / 10.0 or max((96 - m0) / (42.0 - D), 0.1)
    jn = NR; last_tr = None
    for k in range(48):
        if k % 2 == 0: trace()
        cover = [O[k, 0]]
        if last_tr is not None: cover += T[last_tr]; release(last_tr); last_tr = None
        trs = []
        if jn < 48 and jn - k <= NR - 1 and 2 * jn + 1 in issued and issued[2 * jn + 1] <= k - D - 1:
            cover += W[2 * jn] + W[2 * jn + 1]
            trs = list(tr(jn)); last_tr = jn; jn += 1
        assert jn > k + 1 or jn == 48, (k, jn)
        ds = []
        while free and nm[0] < 96 and nm[0] - m0 < (k - 1) * rho and len(ds) < 4:
            issued[nm[0]] = k
            p, w, q = dma(); ds += [p + [w[0]], [w[1]] + q]
        for qt in range(5):
            L.append(WAIT(cover if qt == 0 else [O[k, qt]]))
            for nt in range(4):
                d = vr(acc(qt, nt))
                L.append(I('v_mfma_f32_16x16x32_bf16 %s, %s, %s, %s' % (d, afrag(k, nt), vr(ofrag(k, qt)), d if k else '0')))
                if nt == 0 and ds: L += ds.pop(0)
                if nt in (1, 2) and trs: L.append(trs.pop(0))
                if nt == 3 and k + D < 48: L.append(ld_o(k + D, qt))
        assert not ds and not trs
        if k + D < 48: L += step('s15', k + D, 1024)
        if k == 40:
            a('''v_lshlrev_b32 v31, 4, v30
v_add_u32 v10, s41, v31
v_add_u32 v11, %d, v10
s_mul_i32 s4, s40, %d
v_add_u32 v20, s4, v31
v_and_b32 v31, 15, v30
v_mul_u32_u24 v31, 1280, v31
v_lshrrev_b32 v21, 4, v30
v_lshl_add_u32 v31, v21, 3, v31
s_lshl_b32 s4, s40, 5
v_add_u32 v21, s4, v31'''.replace('v31', 'v23').replace('v30', 'v22').replace('v_lshlrev_b32 v23, 4, v22', 'v_and_b32 v22, 63, v0\nv_lshlrev_b32 v23, 4, v22') % (2 * TS, TS))
    assert nm[0] == 96 and jn == 48
    L += stamp('m')
    trace()
    wr = [I('ds_write_b128 v%d, %s offset:%d' % (10 + (nt >> 1), vr(acc(qt, nt)), (nt & 1) * TS + qt * 1024)) for qt in range(5) for nt in range(4)]
    L += wr
    L.append(WAIT(wr)); a('s_barrier')
    rd = {(qt, p): I('ds_read_b128 %s, v20 offset:%d' % (vr(OB + qt * 16 + p * 4), p * 6144 + qt * 1024)) for qt in range(5) for p in range(4)}
    for qt in range(3): L += [rd[qt, p] for p in range(4)]
    for qt in range(5):
        b = OB + qt * 16
        L.append(WAIT([rd[qt, p] for p in range(4)]))
        if qt + 3 < 5: L += [rd[qt + 3, p] for p in range(4)]
        for r in range(4): a('v_add_f32 v%d, v%d, v%d\nv_add_f32 v%d, v%d, v%d' % (b + r, b + r, b + 4 + r, b + 8 + r, b + 8 + r, b + 12 + r))
        for r in range(4): a('v_add_f32 v%d, v%d, v%d' % (b + r, b + r, b + 8 + r))
        for h in range(2): a('v_cvt_pk_bf16_f32 v%d, v%d, v%d' % (b + h, b + 2 * h, b + 2 * h + 1))
        a('s_mov_b32 s4, %d' % (qt * 20480))
        a('buffer_store_dwordx2 %s, v21, s[28:31], s4 offen' % vr(b, 2))
    trace()
    a('K2_end:')
    return L

def patch(seq):
    out = []
    for x in seq:
        if x.txt == '; flagstore': out.append(I('buffer_store_dword v21, v20, s[52:55], 0 offen sc1'))
        elif x.txt == '; spin':
            out += [I(t) for t in '''K2_chk:
v_cmp_ne_u32 s[100:101], s45, v23
s_nop 0
s_cmp_eq_u64 s[100:101], 0
s_cbranch_scc1 K2_go
s_sub_u32 s7, s7, 1
s_cbranch_scc1 K2_go
buffer_load_dword v23, v22, s[52:55], 0 offen sc1
s_waitcnt vmcnt(0)
s_branch K2_chk
K2_go:'''.split('\n')]
        else: out.append(x)
    return out

def rest(opt):
    return [I(t) for t in '''K2_rest:
s_cmp_lg_u32 s2, 240
s_cbranch_scc1 K2_end
s_cmp_lg_u32 s40, 0
s_cbranch_scc1 K2_end
v_lshlrev_b32 v22, 4, v0
K2_all:
buffer_load_dwordx4 v[24:27], v22, s[52:55], 0 offen sc1
s_waitcnt vmcnt(0)
v_xor_b32 v24, s45, v24
v_xor_b32 v25, s45, v25
v_xor_b32 v26, s45, v26
v_xor_b32 v27, s45, v27
v_or_b32 v24, v24, v25
v_or3_b32 v24, v24, v26, v27
v_cmp_ne_u32 s[100:101], 0, v24
s_nop 0
s_cmp_eq_u64 s[100:101], 0
s_cbranch_scc1 K2_ret
s_sub_u32 s7, s7, 1
s_cbranch_scc0 K2_all
K2_ret:
s_mov_b64 exec, 1
buffer_store_dword v21, v22, s[52:55], 0 offen offset:1024 sc1
s_mov_b64 exec, -1
s_branch K2_end'''.split('\n')]
```

```python
import sys, math, struct
from sched import *
import k2f

INF = 10 ** 6
TS = 24576
XB0 = 98304
FLAG = 147456
STAMP_OFF = 0x10000000
def f2u(f): return struct.unpack('<I', struct.pack('<f', f))[0]
def vr(b, n=4): return 'v[%d:%d]' % (b, b + n - 1)
def ar(b, n=4): return 'a[%d:%d]' % (b, b + n - 1)

class Prog:
    def __init__(self, dlat=8):
        self.mf = []; self.jobs = []; self.lastw = {}; self.rds = {}; self.dlat = dlat
        self.pre = []; self.phase = -1; self.occ = {}
    def _conf(self, ins):
        c = []
        for r in ins.rd:
            if r in self.lastw: c.append((self.lastw[r], 'raw', r))
        for r in ins.wr:
            if r in self.lastw: c.append((self.lastw[r], 'waw', r))
            for x in self.rds.get(r, ()): c.append((x, 'war', r))
        return c
    def _rec(self, ins, who):
        for r in ins.rd: self.rds.setdefault(r, []).append(who)
        for r in ins.wr: self.lastw[r] = who; self.rds[r] = []
    def mfma(self, d, a, b, c):
        ins = I('v_mfma_f32_16x16x32_bf16 %s, %s, %s, %s' % (d, a, b, c))
        m = len(self.mf)
        for x, ty, r in self._conf(ins):
            if isinstance(x, Job):
                lim = m - 1
                if ty == 'raw' and x.cls in ('valu', 'trans'): lim = m - 3
                x.hi = min(x.hi, lim); x.hard = min(x.hard, m - 1)
        self.mf.append(ins); self._rec(ins, m)
        return m
    def job(self, ins, lo=0, hi=INF, deps=(), first=False, pre=False, dlat=None, name=None, phase=None, dummy=False, **kw):
        ins = ins if isinstance(ins, I) else I(ins, **kw)
        j = Job(ins, lo, hi, deps, first)
        ph = self.phase if phase is None else phase
        nm = name or ins.txt
        c = self.occ.get((ph, nm), 0); self.occ[ph, nm] = c + 1
        j.key = (ph, nm, c); j.dummy = dummy
        seen = set(id(d) for d, _ in j.deps)
        for x, ty, r in self._conf(ins):
            if isinstance(x, Job):
                if id(x) in seen: continue
                seen.add(id(x))
                dist = 1
                if x.cls == 'valu' and j.cls == 'valu': dist = 0
                if 'permlane' in ins.op and ty == 'raw': dist = 2
                if x.cls == 's' and j.cls == 's': dist = 0
                if ty == 'war' and hasattr(x.ins, 'sdata'): dist = 2
                j.deps.append((x, dist))
            else:
                y = self.mf[x]
                j.lo0 = max(j.lo0, x)
                if ty in ('raw', 'waw'): j.lo = max(j.lo, x + (dlat if dlat is not None else self.dlat))
                elif r in y.cr and j.cls in ('valu', 'trans'): j.lo = max(j.lo, x + 3)
                else: j.lo = max(j.lo, x)
        self._rec(ins, j)
        if pre:
            j.gap = -10; self.pre.append(ins)
        self.jobs.append(j)
        return j
    def n(self): return len(self.mf)

RING = 208; ONES = 240; LACC = 192
def qacc(T, qt): return 64 + ((T >> 1) * 4 + qt) * 8 + 4 * (T & 1)
def qfrag(s, qt): return 64 + (s * 4 + qt) * 8
_lows = [32 + 4 * k for k in range(8)] + [16 + 4 * k for k in range(4)]
_ups = [64 + 8 * k + 4 for k in range(24)]
SBLK = {}; PBLK = {}; NEGM = {}
for kt in range(4):
    for qt in range(4): SBLK[kt, qt] = _lows[kt * 4 + qt] if kt < 2 else _ups[4 + (kt - 2) * 4 + qt]
for qt in range(4): NEGM[qt] = _ups[qt]
_rest = _ups[12:] + _lows[8:]
for i, key in enumerate([(bf, kp, qt) for bf in range(2) for kp in range(2) for qt in range(4)]): PBLK[key] = _rest[i]
def oacc(dt, qt): return dt * 16 + qt * 4
def late_blk(opt, s, qt):
    se = opt.get('se', 2)
    return SBLK[s - se, qt] if s >= se else None
def late_stores(opt):
    return ['buffer_store_dwordx4 %s, v10, s[36:39], s%d offen offset:%d%s' % (vr(late_blk(opt, s, qt)), 56 + 2 * qt + (s >> 2), (s & 3) * 1024, opt.get('opol', ' sc1'))
            for s in range(opt.get('se', 2), 6) for qt in range(4)]

TILES = [('W', n) for n in range(10)] + [('K', 0)]
for j in range(15): TILES += [('K', j + 1), ('V', j)]
TILES += [('V', 15)]
def slot_of(kind, j):
    if kind == 'W': return j % 4
    if kind == 'K': return 2 if j == 0 else (2 * j + 1) % 6
    return (2 * j + 4) % 6
WSTEP = 64 * 12288
LOOPS = [(1, 2, 7, 1), (13, 4, 40, 3)]

def wrap(reg, step, n):
    return ['s_add_u32 s10, %s, %d' % (reg, step), 's_sub_u32 s11, s10, %d' % (n * step), 's_min_u32 %s, s10, s11' % reg]

def k1_build(NQ, opt):
    P = Prog()
    nt = ' nt' if opt.get('nt', 1) else ''
    wpol = opt.get('wpol', '')
    GL = 2 * NQ
    dmas = {}; plan = []
    def dma_group(tag, region, sc, lst, at, spc, deps, dummy=False):
        ins = [I(t, lds=region) for t in lst]
        dmas.setdefault(tag, []).extend(ins)
        if at is None:
            for t in sc: P.job(t, pre=True)
            for x in ins: P.job(x, pre=True)
        else: plan.append((at, len(plan), sc, ins, spc, deps, P.phase, dummy))
    def flush_plan():
        for at, _, sc, ins, spc, deps, ph, dummy in sorted(plan, key=lambda e: e[:2]):
            for t in sc: P.job(t, lo=max(at - 6, 0), phase=ph, dummy=dummy)
            for i, x in enumerate(ins):
                t = int(at + i * spc)
                P.job(x, lo=t, hi=t + 2, deps=deps, phase=ph, dummy=dummy)
        plan.clear()
    def dma_tile(tile, at, spc=0, deps=(), dyn=True):
        kind, j = tile; so = slot_of(kind, j) * TS
        reg = (so, so + TS, True, tile, None)
        for half in range(2):
            if kind == 'W':
                lst = ['buffer_load_dwordx4 v%d, s[24:27], s43 offen offset:%d%s lds' % (22 + t, 1024 * t, wpol) for t in range(3)]
                m0 = 's_add_u32 m0, s12, %d' % ((j & 1) * TS + half * 3072) if dyn else 's_add_u32 m0, s41, %d' % (so + half * 3072)
                sc = [m0, 's_add_u32 s43, s13, %d' % (half * 8 * 12288)]
                if half:
                    sc += wrap('s13', WSTEP, 10)
                    if dyn and (j & 1): sc += ['s_sub_u32 s12, s15, s12']
            else:
                srd = 's[28:31]' if kind == 'K' else 's[32:35]'
                lst = ['buffer_load_dwordx4 v%d, %s, s43 offen offset:%d%s lds' % (7 + t, srd, 1024 * t, nt) for t in range(3)]
                if dyn:
                    dst, off = ('s16', 's4') if kind == 'K' else ('s17', 's5')
                    sc = ['s_add_u32 m0, %s, %d' % (dst, half * 3072), 's_add_u32 s43, %s, %d' % (off, half * 3072)]
                    if half: sc += ['s_add_u32 %s, %s, %d' % (off, off, TS)]
                else:
                    sc = ['s_add_u32 m0, s41, %d' % (so + half * 3072), 's_mov_b32 s43, %d' % (j * TS + half * 3072)]
            dma_group(tile, reg, sc, lst, None if at is None else int(at + half * 3 * spc), spc, deps, dummy=(j > 15))
    def dma_wo(m, at, spc, deps=()):
        hh = m & 1
        lst = ['buffer_load_dwordx4 v%d, s[48:51], s43 offen offset:%d%s lds' % (14 + t, 1024 * t, opt.get('k2w', '')) for t in range(2)]
        sc = ['s_add_u32 m0, s41, %d' % k2f.haddr(m), 's_add_u32 s43, s14, %d' % (hh * 20480)]
        if hh: sc += wrap('s14', k2f.WSTEP, opt.get('win', 12))
        dma_group(('WO', m), k2f.hreg(m, m), sc, lst, at, spc, deps)
    def xreg(n, qt): return (XB0 + (n & 1) * 32768, XB0 + (n & 1) * 32768 + 32768, False, 'X%d_%d' % (n, qt), qt)
    def dma_x(n, qt, at, spc=0, deps=(), last=NQ - 1):
        half = qt >> 1
        lst = ['buffer_load_dwordx4 v%d, s[20:23], s43 offen offset:%d%s lds' % (25 + t, 1024 * t, wpol) for t in (2 * (qt & 1), 2 * (qt & 1) + 1)]
        sc = ['s_add_u32 m0, s42, %d' % ((n & 1) * 32768 + half * 4096), 's_add_u32 s43, s14, %d' % (half * 40960)]
        if qt == last: sc += wrap('s14', 128, 10)
        dma_group('X%d_%d' % (n, qt), xreg(n, qt), sc, lst, at, spc, deps)
    def xfrag(n, u, qt): return (n & 1) * 32 + (u * 4 + qt) * 4
    def x_reads(n, qt, lo, hi, deps, pre=False):
        return [P.job(I('ds_read_b128 %s, v%d offset:%d' % (ar(xfrag(n, u, qt)), 20 + u, (n & 1) * 32768 + qt * 2048), lds=xreg(n, qt)), lo=lo, hi=hi, deps=deps, pre=pre) for u in range(2)]
    def reads_txt(n, g):
        kind, j = TILES[n]; so = slot_of(kind, j) * TS; rb = RING + (g % 4) * 8
        reg = (so, so + TS, True, TILES[n], None); out = []
        if kind == 'W':
            s, e = g >> 1, g & 1
            areg = 16 + (s & 1); o = (j & 1) * TS + 128 * (s >> 1) + 8 * e
            for u in range(2):
                for hh in range(2):
                    out.append(I('ds_read_b64_tr_b16 %s, v%d offset:%d' % (ar(rb + 4 * u + 2 * hh, 2), areg, o + 1536 * hh + 12288 * u), lds=reg))
        elif kind == 'K':
            kt, sp = g // 3, g % 3
            for e in range(2):
                out.append(I('ds_read_b128 %s, v%d offset:%d' % (ar(rb + 4 * e), 1 + e, 128 * sp + 6144 * kt), lds=reg))
        else:
            for kp in range(2):
                for hh in range(2):
                    out.append(I('ds_read_b64_tr_b16 %s, v%d offset:%d' % (ar(rb + 4 * kp + 2 * hh, 2), 3 + (g & 3), 128 * (g >> 2) + 6144 * hh + 12288 * kp), lds=reg))
        return out

    start = {}; pos = 0
    for n, (kind, j) in enumerate(TILES):
        start[n] = pos
        if kind == 'V': pos += GL
        for g in range(12): start[n, g] = pos; pos += GL
    total = pos; start[42] = pos
    def prev_end(n, g, back):
        k = n * 12 + g - back
        if k < 0: return -1
        return start[k // 12, k % 12] + GL - 1

    def pstamp(k):
        if opt.get('sstamp'):
            for t in ('s_memrealtime s[%d:%d]' % (72 + 4 * k, 73 + 4 * k), 's_memtime s[%d:%d]' % (74 + 4 * k, 75 + 4 * k), 's_waitcnt lgkmcnt(0)'): P.job(t, pre=True)
    pstamp(1)
    for qt in range(4): dma_x(0, qt, None, last=3)
    dma_tile(('W', 0), None, dyn=False)
    for t in opt['mid']: P.job(t, pre=True)
    if opt.get('mw'):
        for t in ('v_lshlrev_b32 v40, 7, v0', 's_lshl_b32 s43, s2, 15', 's_add_u32 s43, s43, s50', 's_sub_u32 s43, s43, 7864320',
                  'buffer_load_dword v41, v40, s[48:51], s43 offen' + opt.get('wmpol', '')): P.job(t, pre=True)
    pstamp(2)
    P.job('; touch', pre=True)
    for t in ('s_waitcnt lgkmcnt(0)', 's_mul_i32 s45, s45, 0x9e3779b1', 's_add_u32 s45, s45, 0x7f4a7c15'): P.job(t, pre=True)
    pstamp(3)
    for qt in range(NQ): dma_x(1, qt, None)
    PW1 = opt.get('pw1', 1)
    if PW1: dma_tile(('W', 1), None, dyn=False)
    P.job(WAIT(sum((dmas['X0_%d' % qt] for qt in range(NQ)), [])), pre=True)
    xr = {(0, qt): x_reads(0, qt, 0, 0, [], pre=True) for qt in range(NQ)}
    P.job(WAIT(dmas['W', 0]), pre=True)
    bar = {0: P.job('s_barrier', pre=True)}
    after_bar = {n: [('W', n + 2)] for n in range(1, 8)}
    after_bar[8] = [('K', 0), ('V', 0)]; after_bar[9] = [('K', 1), ('K', 2)]; after_bar[10] = [('V', 1)]; after_bar[11] = [('K', 3)]
    for n in range(12, 42):
        kind, j = TILES[n - 1]
        after_bar[n] = [('V', j + 1) if kind == 'K' else ('K', j + 4)]
    after_bar[41] = []
    waitjob = {}
    stamps = opt.get('stamps')
    def stamp(k, at):
        if stamps:
            a = P.job('s_memrealtime s[%d:%d]' % (72 + 4 * k, 73 + 4 * k), lo=at, hi=at); a.cls = 's'
            b = P.job('s_memtime s[%d:%d]' % (74 + 4 * k, 75 + 4 * k), lo=at, hi=at, deps=[(a, 0)]); b.cls = 's'
            P.job('s_waitcnt lgkmcnt(0)', lo=at, hi=at, deps=[(b, 0)])

    def softmax(j, sub_kt=0):
        for kt in range(4):
            for qt in range(NQ):
                sb = SBLK[kt, qt]; pb = PBLK[j & 1, kt >> 1, qt] + 2 * (kt & 1)
                if kt < sub_kt:
                    for r in range(4): P.job('v_add_f32 v%d, v%d, v%d' % (sb + r, sb + r, NEGM[qt]))
                for r in range(4): P.job('v_exp_f32 v%d, v%d' % (sb + r, sb + r))
                for h in range(2): P.job('v_cvt_pk_bf16_f32 v%d, v%d, v%d' % (pb + h, sb + 2 * h, sb + 2 * h + 1))
    def advance(ring, lo, dummy):
        pos, dst, dl, regs = ('s6', 's16', 's8', (1, 2)) if ring == 'K' else ('s7', 's17', 's9', (3, 4, 5, 6))
        for t in ['s_add_u32 %s, s41, %s' % (dst, pos), 's_add_u32 s10, %s, %d' % (pos, 2 * TS), 's_sub_u32 s11, s10, %d' % (6 * TS),
                  's_min_u32 s10, s10, s11', 's_sub_u32 %s, s10, %s' % (dl, pos), 's_mov_b32 %s, s10' % pos]:
            P.job(t, lo=lo, dummy=dummy)
        for r in regs: P.job('v_add_u32 v%d, %s, v%d' % (r, dl, r), lo=lo, dummy=dummy)
    SUBKT = opt.get('subkt', 3)
    WROWS = 384 if opt.get('kmap', 1) else 192
    tmpblk = []
    for n, (kind, j) in enumerate(TILES):
        P.phase = n
        if kind == 'W' and n > 0 and n % 2 == 0:
            for r in (16, 17): P.job('v_xor_b32 v%d, 0xc000, v%d' % (r, r))
        if n == 11:
            for r in (1, 2): P.job('v_add_u32 v%d, %d, v%d' % (r, TS, r))
        if n == 10:
            for t in (k2f.inner(opt, 's15', 's12', 's13') + '\n' + k2f.rotation(opt, 's15', 's12')).split('\n') + ['s_mul_i32 s14, s15, %d' % k2f.WSTEP, 's_lshl_b32 s15, s15, 10']:
                P.job(t, lo=start[10], hi=start[10, 8])
        if n == 40:
            for m in range(9): dma_wo(m, start[40] + 2 + m * GL, GL / 2.0)
            flush_plan()
        if n == 41: advance('V', 0, False)
        if kind == 'V':
            for qt in range(NQ):
                for kp in range(2):
                    P.mfma(ar(LACC + 4 * qt), ar(ONES), vr(PBLK[j & 1, kp, qt]), '0' if (j == 0 and kp == 0) else ar(LACC + 4 * qt))
            if j == 15:
                RL = NEGM[0]
                for qt in range(NQ): P.job('v_accvgpr_read_b32 v%d, a%d' % (RL + qt, LACC + 4 * qt), dlat=4)
                for qt in range(1, NQ): P.job('v_add_f32 v11, v%d, v%d' % (RL if qt == 1 else 11, RL + qt))
                for qt in range(NQ): P.job('v_rcp_f32 v%d, v%d' % (RL + qt, RL + qt))
                P.job('s_mov_b32 s100, 0x%08x' % f2u(opt.get('limit', 2.0 ** 30)))
                P.job('v_cmp_nge_f32 s[100:101], s100, v11')
                P.job('s_or_b32 s100, s100, s101')
                P.job('v_mov_b32 v11, s100')
                freg = (FLAG, FLAG + 16, True, 'flag', None)
                fw = P.job(I('ds_write_b32 v12, v11', lds=freg), hi=start[n, 4])
                w1 = P.job(WAIT([fw.ins]), lo=start[n, 6] - 1, hi=start[n, 6] - 1, deps=[fw])
                b1 = P.job('s_barrier', lo=start[n, 6] - 1, hi=start[n, 6] - 1, deps=[(w1, 0)])
                F = NEGM[1]
                fr = P.job(I('ds_read_b128 %s, v13' % vr(F), lds=freg), deps=[b1], hi=start[n, 7])
                w2 = P.job(WAIT([fr.ins]), lo=start[n, 9], deps=[(fr, 8)])
                P.job('v_or_b32 v%d, v%d, v%d' % (F, F, F + 1), deps=[w2])
                P.job('v_or3_b32 v%d, v%d, v%d, v%d' % (F, F, F + 2, F + 3), deps=[w2])
                P.job('v_readfirstlane_b32 s100, v%d' % F)
                for m in range(12, 15): dma_wo(m, start[n, 6] + 2 + (m - 12) * GL, GL / 2.0, [b1])
                flush_plan()
                tmpblk = [SBLK[a, b] for a in range(4) for b in range(4)][4 * (6 - opt.get('se', 2)):] + [PBLK[0, a, b] for a in range(2) for b in range(4)] + [NEGM[2], NEGM[3]]
                tt = {}
        for g in range(12):
            k = n * 12 + g
            st = start[n, g]
            pre = k < 3
            deps = [(bar[n], 0)]
            lo = max(prev_end(n, g, 4), 0)
            rj = [P.job(x, lo=lo, hi=lo + GL + 2, deps=deps, pre=pre) for x in reads_txt(n, g)]
            cover = [x.ins for x in rj]
            wd = list(rj)
            xq = g // 2 if (kind == 'W' and g % 2 == 0 and g // 2 < NQ and n + 1 <= 9) else None
            xd = g // 2 - 1 if (kind == 'W' and g % 2 == 0 and 0 <= g // 2 - 1 < NQ and n + 1 <= 9) else None
            if k == 0:
                for qt in range(NQ): cover += [x.ins for x in xr[0, qt]]
            if xd is not None: cover += [x.ins for x in xr[n + 1, xd]]; wd += xr[n + 1, xd]
            if g == 9 and n + 1 < 42: cover += dmas[TILES[n + 1]]
            if xq is not None and k > 0: cover += dmas['X%d_%d' % (n + 1, xq)]
            wj = P.job(WAIT(cover), lo=st - 1, hi=st - 1, deps=wd, first=True, pre=(k == 0), name='W%d' % g)
            waitjob[n, g] = wj
            if g == 1 and 11 <= n <= 40: advance('V' if kind == 'K' else 'K', st, n >= 40)
            if g == 9 and n + 1 < 42:
                bar[n + 1] = P.job('s_barrier', lo=st - 1, hi=st - 1, deps=[(wj, 0)])
                tl = after_bar[n + 1]
                span = opt.get('spw', 5) if n + 1 < 8 else opt.get('spa', 11)
                for i, t in enumerate(tl):
                    spc = span * GL / (6.0 * len(tl))
                    dma_tile(t, st + 4 + i * 6 * spc, spc, [bar[n + 1]], dyn=(n < 7 or n >= 11))
                if opt.get('sw') and 1 <= n <= 6:
                    dma_group('warm', None, ['s_add_u32 s101, s101, 1280'], ['buffer_load_dword v18, v19, s[48:51], s101 offen%s' % opt.get('wmpol', '')], st + 1, 1, [])
                if str(n) in str(opt.get('op', '')).split(','):
                    dma_group('warm', None, ['s_add_u32 s101, s101, 2048'], ['buffer_load_dword v18, v19, s[36:39], s101 offen%s' % opt.get('wmpol', '')], st + 1, 1, [])
                if str(n) in str(opt.get('wp', '')).split(','):
                    if n >= 9: dma_group('warm', None, ['s_mov_b32 m0, %d' % (FLAG + 1024), 's_add_u32 s101, s101, %d' % (WROWS * 1280)],
                                         ['buffer_load_dword v11, s[48:51], s101 offen%s lds' % opt.get('wmpol', '')], st + 1, 1, [])
                    else: dma_group('warm', None, ['s_add_u32 s101, s101, %d' % (WROWS * 1280)],
                                    ['buffer_load_dword v18, v11, s[48:51], s101 offen%s' % opt.get('wmpol', '')], st + 1, 1, [])
                if n == 40:
                    for m in range(9, 12): dma_wo(m, st + 2 + (m - 9) * GL, GL / 2.0, [bar[n + 1]])
                if n >= 9: flush_plan()
            if xq is not None:
                wx = wj
                if k == 0: wx = P.job(WAIT(dmas['X1_0']), lo=GL - 3, hi=GL - 3, name='WX')
                xr[n + 1, xq] = x_reads(n + 1, xq, st - 1, st + GL + 2, [(wx, 0)])
            if k == 0:
                sp0 = GL / 2.0; at = 1; P.phase = -5
                if not PW1: sp0 = GL / 3.0; dma_tile(('W', 1), at, sp0, dyn=False); at += 6 * sp0
                for qt in range(NQ): dma_x(2, qt, at, sp0); at += 2 * sp0
                dma_tile(('W', 2), at, sp0, dyn=False); x3at = at + 6 * sp0; P.phase = 0
            if xd is not None and n + 3 <= 9:
                if n == 0:
                    x3at = max(x3at, st + 4); dma_x(3, xd, x3at, 2, [wj]); x3at += 4
                else: dma_x(n + 3, xd, st + 4, GL if xd < 3 else GL // 2, [wj])
            sl = str(opt.get('sl', '0,10,12,41')).split(',')
            if g == 0 and str(n) in sl: stamp(1 + sl.index(str(n)), st)
            rb = RING + (g % 4) * 8
            for qt in range(NQ):
                for e in range(2):
                    A = ar(rb + 4 * e)
                    if kind == 'W':
                        d = vr(qacc(g, qt)); P.mfma(d, A, ar(xfrag(n, e, qt)), '0' if (n == 0 and e == 0) else d)
                    elif kind == 'K':
                        kt, sp = g // 3, g % 3
                        d = vr(SBLK[kt, qt]); c = d
                        if sp == 0 and e == 0: c = '0' if (j == 0 and kt < SUBKT) else vr(NEGM[qt])
                        P.mfma(d, A, vr(qfrag(2 * sp + e, qt)), c)
                    else:
                        d = ar(oacc(g, qt)); P.mfma(d, A, vr(PBLK[j & 1, e, qt]), '0' if (j == 0 and e == 0) else d)
            if n == 9:
                for qt in range(NQ):
                    b = qacc(g, qt)
                    for r in range(4): P.job('v_mul_f32 v%d, s44, v%d' % (b + r, b + r), dlat=5)
                    for h in range(2): P.job('v_cvt_pk_bf16_f32 v%d, v%d, v%d' % (qfrag(g >> 1, qt) + 2 * (g & 1) + h, b + 2 * h, b + 2 * h + 1))
            if n == 10 and g == 2:
                for qt in range(NQ):
                    sb = SBLK[0, qt]; t = PBLK[1, 0, qt]
                    P.job('v_max3_f32 v%d, v%d, v%d, v%d' % (t, sb, sb + 1, sb + 2), dlat=5)
                    P.job('v_max_f32 v%d, v%d, v%d' % (t, t, sb + 3), dlat=5)
                    P.job('v_mov_b32 v%d, v%d' % (t + 1, t))
                    P.job('v_permlane32_swap_b32 v%d, v%d' % (t, t + 1))
                    P.job('v_max_f32 v%d, v%d, v%d' % (t, t, t + 1))
                    P.job('v_mov_b32 v%d, v%d' % (t + 1, t))
                    P.job('v_permlane16_swap_b32 v%d, v%d' % (t, t + 1))
                    P.job('v_max_f32 v%d, v%d, v%d' % (t, t, t + 1))
                    for r in range(4): P.job('v_sub_f32 v%d, 0, v%d' % (NEGM[qt] + r, t))
            if n == 41:
                for qt in range(NQ):
                    if (g & 1) == 0:
                        tt[qt] = t = t0 = late_blk(opt, g >> 1, qt) or tmpblk.pop(0)
                        if (g >> 1) < opt.get('se', 2): tmpblk.append(t)
                    else: t0 = tt[qt]; t = tmpblk.pop(0); tmpblk.append(t)
                    for r in range(4): P.job('v_accvgpr_read_b32 v%d, a%d' % (t + r, oacc(g, qt) + r), dlat=5)
                    for r in range(4): P.job('v_mul_f32 v%d, v%d, v%d' % (t + r, t + r, NEGM[0] + qt))
                    for h in range(2): P.job('v_cvt_pk_bf16_f32 v%d, v%d, v%d' % (t0 + 2 * (g & 1) + h, t + 2 * h, t + 2 * h + 1))
                    if (g & 1) and (g >> 1) < opt.get('se', 2):
                        s = g >> 1
                        P.job('buffer_store_dwordx4 %s, v10, s[36:39], s%d offen offset:%d%s' % (vr(t0), 56 + 2 * qt + (s >> 2), (s & 3) * 1024, opt.get('opol', ' sc1')))
        if kind == 'K': softmax(j, SUBKT if j == 0 else 0)
    assert P.n() == total
    w0i = waitjob[0, 0].ins
    P.pre.remove(w0i); P.pre.append(w0i)
    P.start = start
    P.wo = {m: dmas['WO', m] for m in range(15)}
    return P

def k1_body(NQ, opt):
    dense = opt.get('dense', 5)
    def run(P, regions):
        slots_fn = lambda g: dense if g >= P.start[41, 1] else 2
        return schedule(P.mf, P.jobs, verbose=opt.get('verbose'), slots_fn=slots_fn, regions=regions)
    P1 = k1_build(NQ, opt); run(P1, ())
    st = P1.start
    P = k1_build(NQ, opt)
    regions = []
    for n0, pn, n1, ref in LOOPS:
        L0 = st[n0]; T = st[n0 + pn] - L0; L1 = st[n1]
        regions.append((L0, L1))
        cls = {}
        for j in P1.jobs:
            if L0 + ref * T <= j.gap < L0 + (ref + 1) * T:
                ph, nm, c = j.key
                k = ((ph - n0) % pn, nm, c)
                assert k not in cls, ('duplicate class', k)
                cls[k] = (j.gap - L0 - ((ph - n0) // pn) * T, j.ord)
        for j in P.jobs:
            if j.gap is not None: continue
            ph, nm, c = j.key
            if not (n0 - pn <= ph < n1 + pn): continue
            k = ((ph - n0) % pn, nm, c)
            if k in cls:
                p = L0 + ((ph - n0) // pn) * T + cls[k][0]
                if L0 <= p < L1: j.pin = (p, cls[k][1]); j.lo = j.hi = p
                elif p < L0: j.hi = min(j.hi, L0 - 1)
                else: j.lo = max(j.lo, L1)
            else:
                assert not (n0 <= ph < n1), ('no class for', j.key)
        for j in P.jobs:
            if j.gap is None and j.pin is None:
                if j.key[0] < n0: j.hi = min(j.hi, L0 - 1) if j.lo < L1 else j.hi
                elif j.key[0] >= n1: j.lo = max(j.lo, L1)
    for j in P.jobs:
        if j.dummy and j.pin is None: j.gap = -10
    body, left, over = run(P, regions)
    errs = verify(P.jobs)
    for e in errs[:20]: print('ERR', e)
    assert not errs
    marks = []
    idx = {id(m): i for i, m in enumerate(P.mf)}
    seq = []
    want = {}
    for li, (n0, pn, n1, ref) in enumerate(LOOPS):
        L0 = st[n0]; T = st[n0 + pn] - L0; L1 = st[n1]
        ex = (L1 - L0) % T
        for p in range(L0, L1 + 1, T):
            want.setdefault(p, []).append((li, 'it'))
            if ex and p + ex <= L1: want.setdefault(p + ex, []).append((li, 'ex'))
    for x in body:
        i = idx.get(id(x))
        if i is not None and i in want:
            for li, w in want[i]:
                m = I('; L%d %s' % (li, w)); m.mark = (li, w); seq.append(m)
        seq.append(x)
    return P.pre + seq + left, over, P.wo

def fold(seq, tag):
    out = list(seq)
    for li, (n0, pn, n1, ref) in enumerate(LOOPS):
        pos = [i for i, x in enumerate(out) if getattr(x, 'mark', None) == (li, 'it')]
        exs = [i for i, x in enumerate(out) if getattr(x, 'mark', None) == (li, 'ex')]
        segs = [out[pos[i]:pos[i + 1]] for i in range(len(pos) - 1)]
        end = pos[-1]
        if exs: segs.append(out[pos[-1]:exs[-1]]); end = exs[-1]
        for s in segs[1:]:
            for a, b in zip(segs[0], s): assert a.txt == b.txt, (tag, li, a.txt, b.txt)
            assert len(s) == len(segs[0]) or (exs and s is segs[-1])
        nit = len(pos) - 1
        lab = '%s_L%d' % (tag, li)
        body = segs[0][1:]
        if exs:
            e = exs[0] - pos[0] - 1
            body = body[:e] + [I('s_cmp_eq_u32 s3, %d' % nit), I('s_cbranch_scc1 %s_x' % lab), I('s_add_u32 s3, s3, 1')] + body[e + 1:] + [I('s_branch %s' % lab), I('%s_x:' % lab)]
        else:
            body = body + [I('s_add_u32 s3, s3, 1'), I('s_cmp_lg_u32 s3, %d' % nit), I('s_cbranch_scc1 %s' % lab)]
        out = out[:pos[0]] + [I('s_mov_b32 s3, 0'), I('%s:' % lab)] + body + out[end + 1:]
    return out

def unify(seq):
    for li in range(len(LOOPS)):
        pos = [i for i, x in enumerate(seq) if getattr(x, 'mark', None) == (li, 'it')]
        exs = [i for i, x in enumerate(seq) if getattr(x, 'mark', None) == (li, 'ex')]
        ends = pos[1:] + ([exs[-1]] if exs else [])
        segs = [seq[a:b] for a, b in zip(pos, ends)]
        for k in range(len(segs[0])):
            col = [s[k] for s in segs if k < len(s)]
            if getattr(col[0], 'cover', None) is None: continue
            c = {}
            for x in col:
                for nm, v in re.findall(r'(vmcnt|lgkmcnt)\((\d+)\)', x.txt): c[nm] = min(c.get(nm, 99), int(v))
            t = 's_waitcnt ' + ' '.join('%s(%d)' % (nm, c[nm]) for nm in ('vmcnt', 'lgkmcnt') if nm in c) if c else 's_nop 0'
            if len(set(x.txt for x in col)) > 1: print('   unified', sorted(set(x.txt for x in col)), '->', t)
            for x in col: x.txt = t; x.parse()

def k1_prologue(opt):
    L = []
    a = lambda t: L.extend(I(x) for x in t.strip().split('\n'))
    a('''s_cmp_lt_u32 s2, 256
s_cbranch_scc1 K1_go
s_endpgm
K1_go:
s_load_dwordx8 s[4:11], s[0:1], 0
s_load_dwordx2 s[18:19], s[0:1], 56
s_load_dwordx2 s[48:49], s[0:1], 32''')
    if opt.get('stamps'): a('s_memrealtime s[64:65]\ns_memtime s[68:69]')
    a('''v_lshrrev_b32 v29, 6, v0
v_and_b32 v30, 63, v0
v_readfirstlane_b32 s40, v29''')
    if opt.get('map', 0) == 0:
        a('s_and_b32 s46, s2, 7\ns_lshr_b32 s47, s2, 3')
    else:
        a('''s_and_b32 s46, s2, 1
s_lshl_b32 s46, s46, 2
s_bfe_u32 s52, s2, 0x20003
s_or_b32 s46, s46, s52
s_bfe_u32 s47, s2, 0x20001
s_lshl_b32 s47, s47, 3
s_lshr_b32 s52, s2, 5
s_or_b32 s47, s47, s52''')
    if not opt.get('qrot', 1): a('s_mov_b32 s13, 0')
    elif opt.get('map', 0) == 0: a('s_mul_i32 s52, s47, 26\ns_lshr_b32 s52, s52, 8\ns_mul_i32 s52, s52, 10\ns_sub_u32 s13, s47, s52')
    else: a('''s_bfe_u32 s53, s2, 0x10003
s_mul_i32 s53, s53, 5
s_add_u32 s52, s52, s53
s_bfe_u32 s53, s2, 0x10004
s_lshl_b32 s53, s53, 1
s_add_u32 s52, s52, s53
s_sub_u32 s53, s52, 10
s_min_u32 s13, s52, s53''')
    a('s_lshl_b32 s14, s13, 7\ns_mul_i32 s13, s13, %d' % WSTEP)
    a('''v_lshrrev_b32 v31, 3, v30
v_and_b32 v32, 6, v31
v_and_b32 v33, 7, v30
v_xor_b32 v32, v32, v33
v_lshl_add_u32 v31, v29, 6, v31
v_mul_u32_u24 v31, 1280, v31
v_lshl_add_u32 v25, v32, 4, v31
v_add_u32 v26, 9216, v25
v_add_u32 v27, 18432, v25
v_add_u32 v28, 27648, v25''')
    a('v_mul_u32_u24 v34, 6144, v29\nv_lshlrev_b32 v35, 4, v29')
    for t in range(3):
        a('''v_add_u32 v31, %d, v30
v_mul_u32_u24 v32, 171, v31
v_lshrrev_b32 v32, 12, v32
v_mul_u32_u24 v33, 24, v32
v_sub_u32 v33, v31, v33
v_lshlrev_b32 v36, 1, v32
v_and_b32 v36, 4, v36
v_xor_b32 v33, v33, v36
v_add_u32 v36, v35, v32
v_mul_u32_u24 v36, 12288, v36
v_lshl_add_u32 v33, v33, 4, v36
v_subrev_u32 v%d, %d, v33
v_and_b32 v32, 6, v32
v_xor_b32 v32, v32, v30
v_lshl_add_u32 v%d, v32, 4, v34''' % (64 * t, 22 + t, 1024 * t, 7 + t))
    a('''s_mul_i32 s41, s40, 6144
s_lshl_b32 s42, s40, 13
s_add_u32 s42, s42, %d
s_mul_i32 s52, s46, 307200
s_mul_i32 s53, s47, 384
s_lshl_b32 s54, s46, 5
s_add_u32 s54, s54, s47
s_mul_i32 s54, s54, 393216
s_mul_i32 s55, s46, 2880
s_mul_i32 s56, s47, 6
s_add_u32 s55, s55, s56
s_lshl_b32 s55, s55, 10
s_mov_b32 s22, 307200
s_mov_b32 s23, 0x00020000
s_sub_u32 s26, 7864320, s53
s_mov_b32 s27, 0x00020000
s_mov_b32 s30, 393216
s_mov_b32 s31, 0x00020000
s_mov_b32 s34, 393216
s_mov_b32 s35, 0x00020000
s_sub_u32 s38, 23592960, s55
s_mov_b32 s39, 0x00020000
s_waitcnt lgkmcnt(0)
s_add_u32 s20, s4, s52
s_addc_u32 s21, s5, 0
s_add_u32 s24, s10, s53
s_addc_u32 s25, s11, 0
s_add_u32 s28, s6, s54
s_addc_u32 s29, s7, 0
s_add_u32 s32, s8, s54
s_addc_u32 s33, s9, 0
s_add_u32 s36, s18, s55
s_addc_u32 s37, s19, 0''' % XB0)
    mid = '''s_add_u32 s52, s18, %d
s_addc_u32 s53, s19, 0
s_load_dword s45, s[52:53], 1024
s_mov_b32 s54, 2048
s_mov_b32 s55, 0x00020000
''' % k2f.OBYTES + k2f.inner(opt, 's56', 's57', 's58') + '''
s_lshl_b32 s59, s56, 6
''' + k2f.outer(opt, 's56', 's57', 's58') + '''
s_lshl_b32 s57, s57, 7
s_add_u32 s48, s48, s57
s_addc_u32 s49, s49, 0
s_sub_u32 s50, 7864320, s57
s_mov_b32 s51, 0x00020000
s_mov_b32 s101, %d
v_lshrrev_b32 v31, 4, v0
v_min_u32 v31, 14, v31
v_mul_u32_u24 v31, 196608, v31
v_and_b32 v32, 15, v0
v_lshl_add_u32 v19, v32, 7, v31
''' % (-2048 if opt.get('op') else -(384 if opt.get('kmap', 1) else 192) * 1280) + '''v_lshrrev_b32 v31, 3, v30
v_and_b32 v32, 6, v31
v_and_b32 v33, 7, v30
v_xor_b32 v32, v32, v33
v_mul_u32_u24 v33, 1536, v29
v_add_u32 v31, v33, v31
v_mul_u32_u24 v31, 1280, v31
v_lshl_add_u32 v14, v32, 4, v31
v_add_u32 v15, 9216, v14
v_add3_u32 v11, v33, s59, v30
v_mul_u32_u24 v11, 1280, v11
'''
    mid += '''v_lshrrev_b32 v31, 4, v30
v_and_b32 v32, 15, v30
v_and_b32 v33, 6, v32
v_xor_b32 v33, v33, v31
v_lshlrev_b32 v33, 4, v33
v_lshl_add_u32 v20, v32, 7, v33
v_add_u32 v20, s42, v20
v_xor_b32 v21, 64, v20
v_mul_u32_u24 v1, 384, v32
v_add_u32 v1, v1, v33
v_add_u32 v1, %d, v1
v_xor_b32 v2, 64, v1
v_bfe_u32 v32, v30, 2, 2
v_lshl_add_u32 v33, v31, 3, v32
v_mul_u32_u24 v33, 384, v33
v_lshlrev_b32 v32, 1, v32
v_and_b32 v32, 4, v32
v_and_b32 v34, 3, v30
v_xor_b32 v32, v32, v34
v_lshl_add_u32 v16, v32, 4, v33
v_xor_b32 v17, 64, v16
v_lshrrev_b32 v31, 2, v30
v_and_b32 v32, 6, v31
v_lshrrev_b32 v33, 1, v34
v_xor_b32 v32, v32, v33
v_lshlrev_b32 v32, 4, v32
v_and_b32 v33, 1, v30
v_lshl_add_u32 v32, v33, 3, v32
v_mul_u32_u24 v31, 384, v31
v_add_u32 v3, v31, v32
v_add_u32 v3, %d, v3
v_xor_b32 v4, 32, v3
v_xor_b32 v5, 64, v3
v_xor_b32 v6, 96, v3
v_mul_u32_u24 v10, 786432, v29
v_lshl_add_u32 v10, v30, 4, v10
v_lshlrev_b32 v12, 2, v29
v_add_u32 v12, %d, v12
v_mov_b32 v13, %d
v_mov_b32 v31, 0x3f803f80
v_accvgpr_write_b32 a240, v31
v_accvgpr_write_b32 a241, v31
v_accvgpr_write_b32 a242, v31
v_accvgpr_write_b32 a243, v31
s_mov_b32 s44, 0x%08x
s_mov_b32 s4, 98304
s_mov_b32 s5, 49152
s_mov_b32 s6, 73728
s_mov_b32 s7, 49152
s_add_u32 s12, s41, 49152
s_add_u32 s15, s41, s12''' % (2 * TS, 2 * TS, FLAG, FLAG, f2u(math.log2(math.e) / math.sqrt(192.0)))
    if opt.get('sw'):
        mid += '''
v_mul_u32_u24 v31, 60, v29
v_add_u32 v31, v31, v30
v_lshlrev_b32 v19, 7, v31
v_subrev_u32 v31, 10, v30
v_not_b32 v31, v31
v_and_b32 v31, 0x40000000, v31
v_or_b32 v19, v19, v31
s_mul_i32 s101, s2, 30720
s_add_u32 s101, s101, s50
s_sub_u32 s101, s101, %d''' % (7864320 + 1280)
    mid = mid.split('\n')
    for qt in range(4):
        for hh in range(2): mid.append('s_mov_b32 s%d, %d' % (56 + 2 * qt + hh, qt * 196608 + hh * 4096))
    mid += ['s_cmp_eq_u32 s40, 3', 's_cselect_b32 s62, 0x7ff00000, s62', 's_cselect_b32 s63, 0x7ff00000, s63']
    return L, mid

def stamp_code(label, nst, tmp=96):
    L = []
    a = lambda t: L.extend(I(x) for x in t.strip().split('\n'))
    a('s_waitcnt vmcnt(0)\ns_memrealtime s[66:67]\ns_memtime s[70:71]\ns_memrealtime s[%d:%d]\ns_memtime s[%d:%d]\ns_waitcnt lgkmcnt(0)' % (72 + 4 * nst, 73 + 4 * nst, 74 + 4 * nst, 75 + 4 * nst))
    a('s_mov_b64 s[72:73], s[64:65]\ns_mov_b64 s[74:75], s[68:69]')
    a('''s_add_u32 s96, s18, 0x%x
s_addc_u32 s97, s19, 0
s_mov_b32 s98, 0x1000000
s_mov_b32 s99, 0x00020000
s_cmp_lg_u32 s40, 0
s_cbranch_scc1 %s
s_lshl_b32 s4, s2, 8
s_add_u32 s4, s4, 0x100000
v_lshlrev_b32 v11, 2, v0
v_lshlrev_b32 v14, 6, v255
s_nop 1
buffer_store_dword v14, v11, s[96:99], s4 offen
s_mul_i32 s4, s2, 128
v_mov_b32 v11, s4
s_mov_b64 exec, 1''' % (STAMP_OFF, label))
    regs = [64, 66, 68, 70] + [72 + 2 * i for i in range(2 * nst + 2)]
    for i, r in enumerate(regs):
        a('v_mov_b32 v14, s%d\nv_mov_b32 v15, s%d\nbuffer_store_dwordx2 v[14:15], v11, s[96:99], 0 offen offset:%d\ns_nop 1' % (r, r + 1, 8 * i))
    a('s_waitcnt vmcnt(0)\n%s:' % label)
    return L

def k1_fallback(opt):
    L = []
    a = lambda t: L.extend(I(x) for x in t.strip().split('\n'))
    MX = 12
    a('K1_fb:\ns_waitcnt vmcnt(0) lgkmcnt(0)\ns_barrier')
    a('s_sub_u32 s6, s6, %d\ns_sub_u32 s7, s7, %d' % (4 * TS, 4 * TS))
    for r in (1, 2): a('v_subrev_u32 v%d, s6, v%d' % (r, r))
    for r in (3, 4, 5, 6): a('v_subrev_u32 v%d, s7, v%d' % (r, r))
    for qt in range(4):
        a('v_mov_b32 v%d, 0xff7fffff' % (MX + qt))
        for r in range(4): a('v_mov_b32 v%d, 0' % (NEGM[qt] + r))
    a('s_mov_b32 s4, 0\nK1_fb_pass:\ns_mov_b32 s5, 0')
    for i in range(208): a('v_accvgpr_write_b32 a%d, 0' % i)
    a('K1_fb_loop:')
    def load(srd):
        for half in range(2):
            a('s_add_u32 m0, s41, %d\ns_add_u32 s43, s5, %d' % (4 * TS + half * 3072, half * 3072))
            for t in range(3): a('buffer_load_dwordx4 v%d, %s, s43 offen offset:%d lds' % (7 + t, srd, 1024 * t))
        a('s_waitcnt vmcnt(0)\ns_barrier')
    load('s[28:31]')
    for kt in range(4):
        for s in range(6): a('ds_read_b128 %s, v%d offset:%d' % (ar(RING + 4 * s), 1 + (s & 1), 128 * (s >> 1) + 6144 * kt))
        a('s_waitcnt lgkmcnt(0)')
        for qt in range(4):
            for s in range(6):
                d = vr(SBLK[kt, qt])
                a('v_mfma_f32_16x16x32_bf16 %s, %s, %s, %s' % (d, ar(RING + 4 * s), vr(qfrag(s, qt)), vr(NEGM[qt]) if s == 0 else d))
    a('s_nop 7\ns_cmp_lg_u32 s4, 0\ns_cbranch_scc1 K1_fb_pv')
    for kt in range(4):
        for qt in range(4):
            sb = SBLK[kt, qt]
            a('v_max3_f32 v%d, v%d, v%d, v%d\nv_max3_f32 v%d, v%d, v%d, v%d' % (MX + qt, MX + qt, sb, sb + 1, MX + qt, MX + qt, sb + 2, sb + 3))
    a('s_branch K1_fb_next\nK1_fb_pv:\ns_barrier')
    load('s[32:35]')
    for kt in range(4):
        for qt in range(4):
            sb = SBLK[kt, qt]
            for r in range(4): a('v_exp_f32 v%d, v%d' % (sb + r, sb + r))
    a('s_nop 0')
    for kt in range(4):
        for qt in range(4):
            sb = SBLK[kt, qt]; pb = PBLK[0, kt >> 1, qt] + 2 * (kt & 1)
            for h in range(2): a('v_cvt_pk_bf16_f32 v%d, v%d, v%d' % (pb + h, sb + 2 * h, sb + 2 * h + 1))
    a('s_nop 1')
    for qt in range(4):
        for kp in range(2): a('v_mfma_f32_16x16x32_bf16 %s, %s, %s, %s' % (ar(LACC + 4 * qt), ar(ONES), vr(PBLK[0, kp, qt]), ar(LACC + 4 * qt)))
    for dt in range(12):
        for kp in range(2):
            for hh in range(2): a('ds_read_b64_tr_b16 %s, v%d offset:%d' % (ar(RING + 4 * kp + 2 * hh, 2), 3 + (dt & 3), 128 * (dt >> 2) + 6144 * hh + 12288 * kp))
        a('s_waitcnt lgkmcnt(0)')
        for qt in range(4):
            for kp in range(2): a('v_mfma_f32_16x16x32_bf16 %s, %s, %s, %s' % (ar(oacc(dt, qt)), ar(RING + 4 * kp), vr(PBLK[0, kp, qt]), ar(oacc(dt, qt))))
    a('''K1_fb_next:
s_nop 7
s_barrier
s_add_u32 s5, s5, %d
s_cmp_lt_u32 s5, %d
s_cbranch_scc1 K1_fb_loop
s_cmp_lg_u32 s4, 0
s_cbranch_scc1 K1_fb_out''' % (TS, 16 * TS))
    for qt in range(4):
        t = MX + qt; u = PBLK[0, 0, 0]
        a('''v_mov_b32 v%d, v%d
s_nop 1
v_permlane32_swap_b32 v%d, v%d
v_max_f32 v%d, v%d, v%d
v_mov_b32 v%d, v%d
s_nop 1
v_permlane16_swap_b32 v%d, v%d
v_max_f32 v%d, v%d, v%d''' % (u, t, t, u, t, t, u, u, t, t, u, t, t, u))
        for r in range(4): a('v_sub_f32 v%d, 0, v%d' % (NEGM[qt] + r, t))
    a('s_mov_b32 s4, 1\ns_branch K1_fb_pass\nK1_fb_out:')
    for qt in range(4):
        a('v_accvgpr_read_b32 v11, a%d\ns_nop 0\nv_rcp_f32 v11, v11\ns_nop 0' % (LACC + 4 * qt))
        for s in range(6):
            t = 16 + 8 * (s & 1); d = late_blk(opt, s, qt) or t
            for e in range(2):
                for r in range(4): a('v_accvgpr_read_b32 v%d, a%d' % (t + 4 * e + r, oacc(2 * s + e, qt) + r))
            for r in range(8): a('v_mul_f32 v%d, v%d, v11' % (t + r, t + r))
            for h in range(4): a('v_cvt_pk_bf16_f32 v%d, v%d, v%d' % (d + h, t + 2 * h, t + 2 * h + 1))
            if d == t: a('buffer_store_dwordx4 %s, v10, s[36:39], s%d offen offset:%d%s' % (vr(t), 56 + 2 * qt + (s >> 2), (s & 3) * 1024, opt.get('opol', ' sc1')))
    a('s_branch K1_done')
    return L

def finish(seq, name, verbose=False):
    resolve_waits(seq)
    if any(hasattr(x, 'mark') for x in seq): unify(seq)
    seq, nn = fix_hazards(seq, verbose)
    errs, info = check(seq, name)
    for e in errs[:20]: print('ERR', e)
    assert not errs, '%d errors' % len(errs)
    return seq, info, nn

def sizes(seq):
    import subprocess, tempfile, os
    ins = [x for x in seq if x.kind != 'label']
    d = tempfile.mkdtemp()
    open(d + '/a.s', 'w').write('.amdgcn_target "amdgcn-amd-amdhsa--gfx950"\n.text\n' + '\n'.join(x.txt for x in seq) + '\ns_endpgm\n')
    subprocess.check_call(['clang', '-x', 'assembler', '-target', 'amdgcn-amd-amdhsa', '-mcpu=gfx950', '-c', d + '/a.s', '-o', d + '/a.o'])
    o = subprocess.check_output(['llvm-objdump', '-d', d + '/a.o'], text=True)
    offs = [int(m.group(1), 16) for m in re.finditer(r'// ([0-9A-F]{12}):', o)]
    assert len(offs) == len(ins) + 1, (len(offs), len(ins))
    for x, a, b in zip(ins, offs, offs[1:]): x.size = b - a

def add_touch(seq, tag):
    chains = []
    for mark, lab in (('; touch', tag + '_tr'), ('; touch2', tag + '_ts')):
        t = [x.txt for x in seq].index(mark)
        chain = [I('s_mov_b64 vcc, 1')]
        for w in range(4): chain += [I('s_cmp_eq_u32 s40, %d' % w), I('s_cbranch_scc1 %s' % lab)]
        chain += [I('%s:' % lab), I('s_mov_b64 vcc, 0')]
        seq = seq[:t] + chain + seq[t + 1:]
        chains.append((chain, lab))
    sizes(seq)
    out = []; off = 0; nxt = 4096; pads = []; cold = False
    def pad():
        nonlocal off
        b = I('s_cbranch_vccnz X'); pads.append((off, b)); out.append(I('%s_p%d:' % (tag, len(pads) - 1))); out.append(b); off += 4
    inchain = set(id(x) for c, _ in chains for x in c[1:])
    for x in seq:
        if x.txt == '; cold': cold = True; print('   hot code bytes', off)
        if x.txt == '; pad':
            if off % 4096 > 64: pad()
            continue
        if x.kind != 'label':
            if off >= nxt and not cold and id(x) not in inchain: pad(); nxt += 4096
            off += x.size
        out.append(x)
    split = next(i for i, x in enumerate(out) if x.txt == 'K1_w3:')
    split2 = out.index(chains[1][0][0])
    first = [i for i, (o, b) in enumerate(pads) if out.index(b) < split]
    second = [i for i, (o, b) in enumerate(pads) if split <= out.index(b) < split2]
    third = [i for i, (o, b) in enumerate(pads) if split2 <= out.index(b)]
    order = []
    for k in range(max(len(first), len(second))):
        if k < len(second): order.append(second[k])
        if k < len(first): order.append(first[k])
    for (chain, lab), order in zip(chains, (order, third)):
        br = [x for x in chain if x.op == 's_cbranch_scc1']
        for w in range(4):
            mine = order[w::4]
            if not mine: continue
            br[w].txt = 's_cbranch_scc1 %s_p%d' % (tag, mine[0])
            for a, b in zip(mine, mine[1:] + [None]):
                pads[a][1].txt = 's_cbranch_vccnz ' + ('%s_p%d' % (tag, b) if b is not None else lab)
    print('   pads', len(pads), [o for o, b in pads], 'second chain', third)
    return out

def gen_k1(opt):
    pro, mid = k1_prologue(opt)
    opt = dict(opt); opt['mid'] = mid
    out = []; infos = []
    pro, _ = fix_hazards(pro)
    sl = str(opt.get('sl', '0,10,12,41')).split(',')
    def stamp(nm):
        if not opt.get('stamps') or nm not in sl: return []
        k = 1 + sl.index(nm)
        return [I('s_memrealtime s[%d:%d]' % (72 + 4 * k, 73 + 4 * k)), I('s_memtime s[%d:%d]' % (74 + 4 * k, 75 + 4 * k)), I('s_waitcnt lgkmcnt(0)')]
    tails = []
    for NQ in (4, 3):
        seq, over, wo = k1_body(NQ, opt)
        seq += [I('s_cmp_lg_u32 s100, 0'), I('s_cbranch_scc1 K1_fb'), WAIT(sum((wo[m] for m in range(12)), []))]
        seq += k2f.tail(opt, wo, stamp, late_stores(opt))
        full, info, nn = finish(pro + seq, 'K1/NQ%d' % NQ, opt.get('verbose'))
        assert full[:len(pro)] == pro
        print('K1 NQ=%d: %d instrs, overflow %d, nops %d, est cycles %d' % (NQ, len(full), over, nn, est_cycles(full)))
        infos.append(info)
        if opt.get('fold', 1): full = fold(full, 'K1q%d' % NQ)
        print('   folded: %d instrs' % len(full))
        d = [x.txt for x in full].index('K1_done:')
        tails.append(full[d:]); full = full[:d]
        t = [x.txt for x in full].index('; touch')
        if NQ == 4:
            common = [x.txt for x in full[:t]]
            out += full[:t + 1] + [I('s_cmp_eq_u32 s40, 3'), I('s_cbranch_scc1 K1_w3')] + full[t + 1:] + [I('s_branch K1_done'), I('K1_w3:'), I('; pad')]
        else:
            assert common == [x.txt for x in full[:t]]
            out += full[t + 1:]
    ce = cross_check(infos)
    for e in ce: print('ERR', e)
    assert not ce
    assert len(tails[0]) == len(tails[1])
    for x, y in zip(*tails):
        if x.txt != y.txt:
            c = [int(re.fullmatch(r's_waitcnt vmcnt\((\d+)\)', z.txt).group(1)) for z in (x, y)]
            print('   tail wait', c); x.txt = 's_waitcnt vmcnt(%d)' % min(c); x.parse()
    out += k2f.patch(tails[0])
    out += [I('; cold')]
    if opt.get('stamps'): out += stamp_code('K1_st', 5)
    out += [I('s_endpgm')]
    fb, _, _ = finish(k1_fallback(opt), 'fb')
    out += k2f.rest(opt) + fb
    if opt.get('touch', 1): out = add_touch(out, 'K1')
    return out

def kdesc(name, vgpr, sgpr, accum):
    return '''.section .rodata,"a"
.p2align 6
.amdhsa_kernel %s
  .amdhsa_next_free_vgpr %d
  .amdhsa_next_free_sgpr %d
  .amdhsa_accum_offset %d
  .amdhsa_group_segment_fixed_size 0
  .amdhsa_kernarg_size 64
  .amdhsa_user_sgpr_count 2
  .amdhsa_user_sgpr_kernarg_segment_ptr 1
  .amdhsa_system_sgpr_workgroup_id_x 1
.end_amdhsa_kernel
''' % (name, vgpr, sgpr, accum)

MACROS = {}
def compact(x):
    t = x.txt
    m = re.fullmatch(r'v_mfma_f32_16x16x32_bf16 ([va])\[(\d+):\d+\], ([va])\[(\d+):\d+\], ([va])\[(\d+):\d+\], (.*)', t)
    if m:
        dc, d, ac, a, bc, b, c = m.groups()
        o = lambda cl, n: '%s[\\%s:\\%s+3]' % (cl, n, n)
        if c == '0': suf, cs, extra = 'Z', '0', ''
        elif c == x.dreg: suf, cs, extra = '', o(dc, 'd'), ''
        else: suf, cs, extra = 'C', o(dc, 'c'), ',' + re.match(r'[va]\[(\d+)', c).group(1)
        nm = 'M' + dc + ac + bc + suf
        MACROS[nm] = '.macro %s d,a,b%s\nv_mfma_f32_16x16x32_bf16 %s, %s, %s, %s\n.endm\n' % (nm, ',c' if extra else '', o(dc, 'd'), o(ac, 'a'), o(bc, 'b'), cs)
        return '%s %s,%s,%s%s' % (nm, d, a, b, extra)
    m = re.fullmatch(r'ds_read_(b64_tr_b16|b128) ([va])\[(\d+):\d+\], v(\d+) offset:(\d+)', t)
    if m:
        k, dc, d, a, off = m.groups()
        nm = ('T' if k != 'b128' else 'R') + dc; w = 1 if k != 'b128' else 3
        MACROS[nm] = '.macro %s d,a,o\nds_read_%s %s[\\d:\\d+%d], v\\a offset:\\o\n.endm\n' % (nm, k, dc, w)
        return '%s %s,%s,%s' % (nm, d, a, off)
    m = re.fullmatch(r'v_exp_f32 v(\d+), v(\d+)', t)
    if m and m.group(1) == m.group(2):
        MACROS['EX'] = '.macro EX d\nv_exp_f32 v\\d, v\\d\n.endm\n'
        return 'EX %s' % m.group(1)
    m = re.fullmatch(r'v_cvt_pk_bf16_f32 v(\d+), v(\d+), v(\d+)', t)
    if m:
        MACROS['CV'] = '.macro CV d,a,b\nv_cvt_pk_bf16_f32 v\\d, v\\a, v\\b\n.endm\n'
        return 'CV %s,%s,%s' % m.groups()
    m = re.fullmatch(r's_waitcnt lgkmcnt\((\d+)\)', t)
    if m:
        MACROS['WL'] = '.macro WL n\ns_waitcnt lgkmcnt(\\n)\n.endm\n'
        return 'WL %s' % m.group(1)
    return t.replace(', ', ',')

def emit(kernels, comp=True):
    s = ''
    for name, grid, lds, seq, vg, acc in kernels:
        s += '; @launch grid=(%d,1,1) block=(256,1,1) lds=%d\n' % (grid, lds)
    s += '.amdgcn_target "amdgcn-amd-amdhsa--gfx950"\n'
    body = ''
    for name, grid, lds, seq, vg, acc in kernels:
        body += '.text\n.globl %s\n.p2align 12\n.p2align 8\n.type %s,@function\n%s:\n' % (name, name, name)
        body += '\n'.join((compact(x) if comp else x.txt) for x in seq) + '\n'
        body += kdesc(name, vg, 102, acc)
    return s + ''.join(MACROS.values()) + body

if __name__ == '__main__':
    opt = {}
    outp = sys.argv[1]
    for a in sys.argv[2:]:
        k, v = a.split('=')
        try: v = int(v)
        except ValueError: v = v.replace('_', ' ')
        opt[k] = v
    ks = []
    if opt.get('fixw'): k2f.WSTEP = 0
    if opt.get('k1', 1): ks.append(('standalone__gqa_block_cached__near_ridge_kernel', 256, 163840, gen_k1(opt), 512, 256))
    txt = emit(ks, opt.get('comp', 1))
    open(outp, 'w').write(txt)
    print(outp, len(txt), 'bytes')
```

```python
import sys, math, struct
from sched import *
import k2f

INF = 10 ** 6
TS = 24576
XB0 = 98304
FLAG = 147456
STAMP_OFF = 0x10000000
def f2u(f): return struct.unpack('<I', struct.pack('<f', f))[0]
def vr(b, n=4): return 'v[%d:%d]' % (b, b + n - 1)
def ar(b, n=4): return 'a[%d:%d]' % (b, b + n - 1)

class Prog:
    def __init__(self, dlat=8):
        self.mf = []; self.jobs = []; self.lastw = {}; self.rds = {}; self.dlat = dlat
        self.pre = []; self.phase = -1; self.occ = {}
    def _conf(self, ins):
        c = []
        for r in ins.rd:
            if r in self.lastw: c.append((self.lastw[r], 'raw', r))
        for r in ins.wr:
            if r in self.lastw: c.append((self.lastw[r], 'waw', r))
            for x in self.rds.get(r, ()): c.append((x, 'war', r))
        return c
    def _rec(self, ins, who):
        for r in ins.rd: self.rds.setdefault(r, []).append(who)
        for r in ins.wr: self.lastw[r] = who; self.rds[r] = []
    def mfma(self, d, a, b, c):
        ins = I('v_mfma_f32_16x16x32_bf16 %s, %s, %s, %s' % (d, a, b, c))
        m = len(self.mf)
        for x, ty, r in self._conf(ins):
            if isinstance(x, Job):
                lim = m - 1
                if ty == 'raw' and x.cls in ('valu', 'trans'): lim = m - 3
                x.hi = min(x.hi, lim); x.hard = min(x.hard, m - 1)
        self.mf.append(ins); self._rec(ins, m)
        return m
    def job(self, ins, lo=0, hi=INF, deps=(), first=False, pre=False, dlat=None, name=None, phase=None, dummy=False, **kw):
        ins = ins if isinstance(ins, I) else I(ins, **kw)
        j = Job(ins, lo, hi, deps, first)
        ph = self.phase if phase is None else phase
        nm = name or ins.txt
        c = self.occ.get((ph, nm), 0); self.occ[ph, nm] = c + 1
        j.key = (ph, nm, c); j.dummy = dummy
        seen = set(id(d) for d, _ in j.deps)
        for x, ty, r in self._conf(ins):
            if isinstance(x, Job):
                if id(x) in seen: continue
                seen.add(id(x))
                dist = 1
                if x.cls == 'valu' and j.cls == 'valu': dist = 0
                if 'permlane' in ins.op and ty == 'raw': dist = 2
                if x.cls == 's' and j.cls == 's': dist = 0
                if ty == 'war' and hasattr(x.ins, 'sdata'): dist = 2
                j.deps.append((x, dist))
            else:
                y = self.mf[x]
                j.lo0 = max(j.lo0, x)
                if ty in ('raw', 'waw'): j.lo = max(j.lo, x + (dlat if dlat is not None else self.dlat))
                elif r in y.cr and j.cls in ('valu', 'trans'): j.lo = max(j.lo, x + 3)
                else: j.lo = max(j.lo, x)
        self._rec(ins, j)
        if pre:
            j.gap = -10; self.pre.append(ins)
        self.jobs.append(j)
        return j
    def n(self): return len(self.mf)

RING = 208; ONES = 240; LACC = 192
def qacc(T, qt): return 64 + ((T >> 1) * 4 + qt) * 8 + 4 * (T & 1)
def qfrag(s, qt): return 64 + (s * 4 + qt) * 8
_lows = [32 + 4 * k for k in range(8)] + [16 + 4 * k for k in range(4)]
_ups = [64 + 8 * k + 4 for k in range(24)]
SBLK = {}; PBLK = {}; NEGM = {}
for kt in range(4):
    for qt in range(4): SBLK[kt, qt] = _lows[kt * 4 + qt] if kt < 2 else _ups[4 + (kt - 2) * 4 + qt]
for qt in range(4): NEGM[qt] = _ups[qt]
_rest = _ups[12:] + _lows[8:]
for i, key in enumerate([(bf, kp, qt) for bf in range(2) for kp in range(2) for qt in range(4)]): PBLK[key] = _rest[i]
def oacc(dt, qt): return dt * 16 + qt * 4
def late_blk(opt, s, qt):
    se = opt.get('se', 2)
    return SBLK[s - se, qt] if s >= se else None
def late_stores(opt):
    return ['buffer_store_dwordx4 %s, v10, s[36:39], s%d offen offset:%d%s' % (vr(late_blk(opt, s, qt)), 56 + 2 * qt + (s >> 2), (s & 3) * 1024, opt.get('opol', ' sc1'))
            for s in range(opt.get('se', 2), 6) for qt in range(4)]

TILES = [('W', n) for n in range(10)] + [('K', 0)]
for j in range(15): TILES += [('K', j + 1), ('V', j)]
TILES += [('V', 15)]
def slot_of(kind, j):
    if kind == 'W': return j % 4
    if kind == 'K': return 2 if j == 0 else (2 * j + 1) % 6
    return (2 * j + 4) % 6
WSTEP = 64 * 12288
LOOPS = [(1, 2, 7, 1), (13, 4, 40, 3)]

def wrap(reg, step, n):
    return ['s_add_u32 s10, %s, %d' % (reg, step), 's_sub_u32 s11, s10, %d' % (n * step), 's_min_u32 %s, s10, s11' % reg]

def k1_build(NQ, opt):
    P = Prog()
    nt = opt.get('kvp', ' nt') if opt.get('nt', 1) else ''
    wpol = opt.get('wpol', '')
    GL = 2 * NQ
    XV = NEGM[3] if opt.get('ls') else 12
    dmas = {}; plan = []
    def dma_group(tag, region, sc, lst, at, spc, deps, dummy=False):
        ins = [I(t, lds=region) for t in lst]
        dmas.setdefault(tag, []).extend(ins)
        if at is None:
            for t in sc: P.job(t, pre=True)
            for x in ins: P.job(x, pre=True)
        else: plan.append((at, len(plan), sc, ins, spc, deps, P.phase, dummy))
    def flush_plan():
        for at, _, sc, ins, spc, deps, ph, dummy in sorted(plan, key=lambda e: e[:2]):
            for t in sc: P.job(t, lo=max(at - 6, 0), phase=ph, dummy=dummy)
            for i, x in enumerate(ins):
                t = int(at + i * spc)
                P.job(x, lo=t, hi=t + 2, deps=deps, phase=ph, dummy=dummy)
        plan.clear()
    def dma_tile(tile, at, spc=0, deps=(), dyn=True):
        kind, j = tile; so = slot_of(kind, j) * TS
        reg = (so, so + TS, True, tile, None)
        for half in range(2):
            if kind == 'W':
                lst = ['buffer_load_dwordx4 v%d, s[24:27], s43 offen offset:%d%s lds' % (22 + t, 1024 * t, wpol) for t in range(3)]
                m0 = 's_add_u32 m0, s12, %d' % ((j & 1) * TS + half * 3072) if dyn else 's_add_u32 m0, s41, %d' % (so + half * 3072)
                Q0 = opt.get('q0', 0)
                sc = [m0, 's_add_u32 s43, s13, %d' % (half * 8 * 12288 + Q0 * WSTEP) if j >= Q0 else 's_mov_b32 s43, %d' % (half * 8 * 12288 + j * WSTEP)]
                if half:
                    if j >= Q0: sc += wrap('s13', WSTEP, 10 - Q0)
                    if dyn and (j & 1): sc += ['s_sub_u32 s12, s15, s12']
            else:
                srd = 's[28:31]' if kind == 'K' else 's[32:35]'
                lst = ['buffer_load_dwordx4 v%d, %s, s43 offen offset:%d%s lds' % (7 + t, srd, 1024 * t, nt) for t in range(3)]
                if dyn:
                    dst, off = ('s16', 's4') if kind == 'K' else ('s17', 's5')
                    sc = ['s_add_u32 m0, %s, %d' % (dst, half * 3072), 's_add_u32 s43, %s, %d' % (off, half * 3072)]
                    if half: sc += ['s_add_u32 %s, %s, %d' % (off, off, TS)]
                else:
                    sc = ['s_add_u32 m0, s41, %d' % (so + half * 3072), 's_mov_b32 s43, %d' % (j * TS + half * 3072)]
            dma_group(tile, reg, sc, lst, None if at is None else int(at + half * 3 * spc), spc, deps, dummy=(j > 15))
    def dma_wo(m, at, spc, deps=()):
        hh = m & 1
        lst = ['buffer_load_dwordx4 v%d, s[48:51], s43 offen offset:%d%s lds' % (XV + 2 + t, 1024 * t, opt.get('k2w', '')) for t in range(2)]
        sc = ['s_add_u32 m0, s41, %d' % k2f.haddr(m), 's_add_u32 s43, s14, %d' % (hh * 20480)]
        if hh: sc += wrap('s14', k2f.WSTEP, opt.get('win', 12))
        dma_group(('WO', m), k2f.hreg(m, m), sc, lst, at, spc, deps)
    def xreg(n, qt): return (XB0 + (n & 1) * 32768, XB0 + (n & 1) * 32768 + 32768, False, 'X%d_%d' % (n, qt), qt)
    def dma_x(n, qt, at, spc=0, deps=(), last=NQ - 1):
        half = qt >> 1
        lst = ['buffer_load_dwordx4 v%d, s[20:23], s43 offen offset:%d%s lds' % (25 + t, 1024 * t, wpol) for t in (2 * (qt & 1), 2 * (qt & 1) + 1)]
        Q0 = opt.get('q0', 0)
        sc = ['s_add_u32 m0, s42, %d' % ((n & 1) * 32768 + half * 4096), 's_add_u32 s43, s14, %d' % (half * 40960 + Q0 * 128) if n >= Q0 else 's_mov_b32 s43, %d' % (half * 40960 + n * 128)]
        if qt == last and n >= Q0: sc += wrap('s14', 128, 10 - Q0)
        dma_group('X%d_%d' % (n, qt), xreg(n, qt), sc, lst, at, spc, deps)
    def xfrag(n, u, qt): return (n & 1) * 32 + (u * 4 + qt) * 4
    def x_reads(n, qt, lo, hi, deps, pre=False):
        return [P.job(I('ds_read_b128 %s, v%d offset:%d' % (ar(xfrag(n, u, qt)), 20 + u, (n & 1) * 32768 + qt * 2048), lds=xreg(n, qt)), lo=lo, hi=hi, deps=deps, pre=pre) for u in range(2)]
    def reads_txt(n, g):
        kind, j = TILES[n]; so = slot_of(kind, j) * TS; rb = RING + (g % 4) * 8
        reg = (so, so + TS, True, TILES[n], None); out = []
        if kind == 'W':
            s, e = g >> 1, g & 1
            areg = 16 + (s & 1); o = (j & 1) * TS + 128 * (s >> 1) + 8 * e
            for u in range(2):
                for hh in range(2):
                    out.append(I('ds_read_b64_tr_b16 %s, v%d offset:%d' % (ar(rb + 4 * u + 2 * hh, 2), areg, o + 1536 * hh + 12288 * u), lds=reg))
        elif kind == 'K':
            kt, sp = g // 3, g % 3
            for e in range(2):
                out.append(I('ds_read_b128 %s, v%d offset:%d' % (ar(rb + 4 * e), 1 + e, 128 * sp + 6144 * kt), lds=reg))
        else:
            for kp in range(2):
                for hh in range(2):
                    out.append(I('ds_read_b64_tr_b16 %s, v%d offset:%d' % (ar(rb + 4 * kp + 2 * hh, 2), 3 + (g & 3), 128 * (g >> 2) + 6144 * hh + 12288 * kp), lds=reg))
        return out

    start = {}; pos = 0
    for n, (kind, j) in enumerate(TILES):
        start[n] = pos
        if kind == 'V' and not opt.get('ls'): pos += GL
        for g in range(12): start[n, g] = pos; pos += GL
    total = pos; start[42] = pos
    def prev_end(n, g, back):
        k = n * 12 + g - back
        if k < 0: return -1
        return start[k // 12, k % 12] + GL - 1

    def pstamp(k):
        if opt.get('sstamp'):
            for t in ('s_memrealtime s[%d:%d]' % (72 + 4 * k, 73 + 4 * k), 's_memtime s[%d:%d]' % (74 + 4 * k, 75 + 4 * k), 's_waitcnt lgkmcnt(0)'): P.job(t, pre=True)
    pstamp(1)
    for qt in range(4): dma_x(0, qt, None, last=3)
    dma_tile(('W', 0), None, dyn=False)
    EARLY = opt.get('early', 0)
    if EARLY:
        for qt in range(NQ): dma_x(1, qt, None)
        dma_tile(('W', 1), None, dyn=False)
    if EARLY > 1: dma_tile(('W', 2), None, dyn=False)
    for t in opt['mid']: P.job(t, pre=True)
    if opt.get('mw'):
        for t in ('v_lshlrev_b32 v40, 7, v0', 's_lshl_b32 s43, s2, 15', 's_add_u32 s43, s43, s50', 's_sub_u32 s43, s43, 7864320',
                  'buffer_load_dword v41, v40, s[48:51], s43 offen' + opt.get('wmpol', '')): P.job(t, pre=True)
    if opt.get('tlb'):
        n_ = opt['tlb']
        for t in ('v_mul_u32_u24 v40, %d, v29' % n_, 'v_add_u32 v40, v40, v30', 'v_mul_u32_u24 v40, %d, v40' % (393216 // (4 * n_)),
                  'v_subrev_u32 v41, %d, v30' % n_, 'v_not_b32 v41, v41', 'v_and_b32 v41, 0x40000000, v41', 'v_or_b32 v40, v40, v41',
                  'buffer_load_dword v41, v40, s[28:31], 0 offen nt', 'buffer_load_dword v42, v40, s[32:35], 0 offen nt'): P.job(t, pre=True)
    pstamp(2)
    P.job('; touch', pre=True)
    for t in ('s_waitcnt lgkmcnt(0)', 's_mul_i32 s45, s45, 0x9e3779b1', 's_add_u32 s45, s45, 0x7f4a7c15'): P.job(t, pre=True)
    pstamp(3)
    PW1 = opt.get('pw1', 1)
    if not EARLY:
        for qt in range(NQ): dma_x(1, qt, None)
        if PW1: dma_tile(('W', 1), None, dyn=False)
    P.job(WAIT(sum((dmas['X0_%d' % qt] for qt in range(NQ)), [])), pre=True)
    xr = {(0, qt): x_reads(0, qt, 0, 0, [], pre=True) for qt in range(NQ)}
    P.job(WAIT(dmas['W', 0]), pre=True)
    bar = {0: P.job('s_barrier', pre=True)}
    after_bar = {n: [('W', n + 2)] for n in range(1, 8)}
    after_bar[8] = [('K', 0), ('V', 0)]; after_bar[9] = [('K', 1), ('K', 2)]; after_bar[10] = [('V', 1)]; after_bar[11] = [('K', 3)]
    XB = opt.get('xb', 0)
    if XB >= 1: after_bar[8] = [('V', 0)]
    if XB >= 2: after_bar[9] = [('K', 2)]
    KD = opt.get('kd', 0) / 10.0
    first6 = [('K', 0), ('V', 0), ('K', 1), ('K', 2), ('V', 1), ('K', 3)]
    kat = [0]
    def dma_first(t, st, dep):
        at = max(st + 4, kat[0]); kat[0] = at + KD * GL
        dma_tile(t, at, KD * GL / 6.0, [dep], dyn=False)
    for n in range(12, 42):
        kind, j = TILES[n - 1]
        after_bar[n] = [('V', j + 1) if kind == 'K' else ('K', j + 4)]
    after_bar[41] = []
    waitjob = {}
    stamps = opt.get('stamps')
    def stamp(k, at):
        if stamps:
            a = P.job('s_memrealtime s[%d:%d]' % (72 + 4 * k, 73 + 4 * k), lo=at, hi=at); a.cls = 's'
            b = P.job('s_memtime s[%d:%d]' % (74 + 4 * k, 75 + 4 * k), lo=at, hi=at, deps=[(a, 0)]); b.cls = 's'
            P.job('s_waitcnt lgkmcnt(0)', lo=at, hi=at, deps=[(b, 0)])

    def softmax(j, sub_kt=0):
        for kt in range(4):
            for qt in range(NQ):
                sb = SBLK[kt, qt]; pb = PBLK[j & 1, kt >> 1, qt] + 2 * (kt & 1)
                if kt < sub_kt:
                    if opt.get('pk'):
                        for r in (0, 2): P.job('v_pk_add_f32 %s, %s, %s' % (vr(sb + r, 2), vr(sb + r, 2), vr(NEGM[qt], 2)))
                    else:
                        for r in range(4): P.job('v_add_f32 v%d, v%d, v%d' % (sb + r, sb + r, NEGM[qt]))
                for r in range(4): P.job('v_exp_f32 v%d, v%d' % (sb + r, sb + r))
                if opt.get('ls'):
                    for r in range(4): P.job('v_add_f32 v%d, v%d, v%d' % (12 + qt, 12 + qt, sb + r))
                for h in range(2): P.job('v_cvt_pk_bf16_f32 v%d, v%d, v%d' % (pb + h, sb + 2 * h, sb + 2 * h + 1))
    def advance(ring, lo, dummy):
        pos, dst, dl, regs = ('s6', 's16', 's8', (1, 2)) if ring == 'K' else ('s7', 's17', 's9', (3, 4, 5, 6))
        for t in ['s_add_u32 %s, s41, %s' % (dst, pos), 's_add_u32 s10, %s, %d' % (pos, 2 * TS), 's_sub_u32 s11, s10, %d' % (6 * TS),
                  's_min_u32 s10, s10, s11', 's_sub_u32 %s, s10, %s' % (dl, pos), 's_mov_b32 %s, s10' % pos]:
            P.job(t, lo=lo, dummy=dummy)
        for r in regs: P.job('v_add_u32 v%d, %s, v%d' % (r, dl, r), lo=lo, dummy=dummy)
    SUBKT = opt.get('subkt', 3)
    WROWS = 384 if opt.get('kmap', 1) else 192
    tmpblk = []
    for n, (kind, j) in enumerate(TILES):
        P.phase = n
        if kind == 'W' and n > 0 and n % 2 == 0:
            for r in (16, 17): P.job('v_xor_b32 v%d, 0xc000, v%d' % (r, r))
        if n == 11:
            for r in (1, 2): P.job('v_add_u32 v%d, %d, v%d' % (r, TS, r))
        if n == 10:
            for t in (k2f.inner(opt, 's15', 's12', 's13') + '\n' + k2f.rotation(opt, 's15', 's12')).split('\n') + ['s_mul_i32 s14, s15, %d' % k2f.WSTEP, 's_lshl_b32 s15, s15, 10']:
                P.job(t, lo=start[10], hi=start[10, 8])
        if n == 40:
            if opt.get('ls'):
                for r in range(4): P.job('v_accvgpr_read_b32 v%d, a%d' % (XV + r, 248 + r), lo=start[40] - 2, hi=start[40])
            for m in range(9): dma_wo(m, start[40] + 2 + m * GL, GL / 2.0)
            flush_plan()
        if n == 41: advance('V', 0, False)
        if kind == 'V':
            for qt in range(NQ):
                for kp in range(0 if opt.get('ls') else 2):
                    P.mfma(ar(LACC + 4 * qt), ar(ONES), vr(PBLK[j & 1, kp, qt]), '0' if (j == 0 and kp == 0) else ar(LACC + 4 * qt))
            if j == 15:
                RL = NEGM[0]
                for qt in range(NQ):
                    if not opt.get('ls'): P.job('v_accvgpr_read_b32 v%d, a%d' % (RL + qt, LACC + 4 * qt), dlat=4); continue
                    t = 12 + qt; u = RL + qt
                    for x in ('v_mov_b32 v%(u)d, v%(t)d', 'v_permlane32_swap_b32 v%(t)d, v%(u)d', 'v_add_f32 v%(t)d, v%(t)d, v%(u)d', 'v_mov_b32 v%(u)d, v%(t)d',
                              'v_permlane16_swap_b32 v%(t)d, v%(u)d', 'v_add_f32 v%(u)d, v%(t)d, v%(u)d'): P.job(x % dict(t=t, u=u))
                for qt in range(1, NQ): P.job('v_add_f32 v11, v%d, v%d' % (RL if qt == 1 else 11, RL + qt))
                for qt in range(NQ): P.job('v_rcp_f32 v%d, v%d' % (RL + qt, RL + qt))
                P.job('s_mov_b32 s100, 0x%08x' % f2u(opt.get('limit', 2.0 ** 30)))
                P.job('v_cmp_nge_f32 s[100:101], s100, v11')
                P.job('s_or_b32 s100, s100, s101')
                P.job('v_mov_b32 v11, s100')
                freg = (FLAG, FLAG + 16, True, 'flag', None)
                fw = P.job(I('ds_write_b32 v%d, v11' % XV, lds=freg), hi=start[n, 4])
                w1 = P.job(WAIT([fw.ins]), lo=start[n, 6] - 1, hi=start[n, 6] - 1, deps=[fw])
                b1 = P.job('s_barrier', lo=start[n, 6] - 1, hi=start[n, 6] - 1, deps=[(w1, 0)])
                F = NEGM[1]
                fr = P.job(I('ds_read_b128 %s, v%d' % (vr(F), XV + 1), lds=freg), deps=[b1], hi=start[n, 7])
                w2 = P.job(WAIT([fr.ins]), lo=start[n, 9], deps=[(fr, 8)])
                P.job('v_or_b32 v%d, v%d, v%d' % (F, F, F + 1), deps=[w2])
                P.job('v_or3_b32 v%d, v%d, v%d, v%d' % (F, F, F + 2, F + 3), deps=[w2])
                P.job('v_readfirstlane_b32 s100, v%d' % F)
                for m in range(12, 15): dma_wo(m, start[n, 6] + 2 + (m - 12) * GL, GL / 2.0, [b1])
                flush_plan()
                tmpblk = [SBLK[a, b] for a in range(4) for b in range(4)][4 * (6 - opt.get('se', 2)):] + [PBLK[0, a, b] for a in range(2) for b in range(4)] + [NEGM[2]] + ([] if opt.get('ls') else [NEGM[3]])
                tt = {}
        for g in range(12):
            k = n * 12 + g
            st = start[n, g]
            pre = k < 3
            deps = [(bar[n], 0)]
            lo = max(prev_end(n, g, 4), 0)
            rj = [P.job(x, lo=lo, hi=lo + GL + 2, deps=deps, pre=pre) for x in reads_txt(n, g)]
            cover = [x.ins for x in rj]
            wd = list(rj)
            xq = g // 2 if (kind == 'W' and g % 2 == 0 and g // 2 < NQ and n + 1 <= 9) else None
            xd = g // 2 - 1 if (kind == 'W' and g % 2 == 0 and 0 <= g // 2 - 1 < NQ and n + 1 <= 9) else None
            if k == 0:
                for qt in range(NQ): cover += [x.ins for x in xr[0, qt]]
            if xd is not None: cover += [x.ins for x in xr[n + 1, xd]]; wd += xr[n + 1, xd]
            if g == 9 and n + 1 < 42: cover += dmas[TILES[n + 1]]
            if xq is not None and k > 0: cover += dmas['X%d_%d' % (n + 1, xq)]
            wj = P.job(WAIT(cover), lo=st - 1, hi=st - 1, deps=wd, first=True, pre=(k == 0), name='W%d' % g)
            waitjob[n, g] = wj
            if g == 0 and 7 <= n < 7 + XB:
                dma_first(('K', n - 7), st, P.job('s_barrier', lo=st, hi=st, deps=[(wj, 0)], name='XB'))
            if g == 1 and 11 <= n <= 40: advance('V' if kind == 'K' else 'K', st, n >= 40)
            if g == 9 and n + 1 < 42:
                bar[n + 1] = P.job('s_barrier', lo=st - 1, hi=st - 1, deps=[(wj, 0)])
                tl = after_bar[n + 1]
                span = opt.get('spw', 5) if n + 1 < 8 else opt.get('sp8', 3 if XB else 11) if n + 1 == 8 else opt.get('sp9', 11) if n + 1 == 9 else opt.get('spa', 11)
                for i, t in enumerate(tl):
                    if KD and t in first6: dma_first(t, st, bar[n + 1]); continue
                    spc = span * GL / (6.0 * len(tl))
                    dma_tile(t, st + 4 + i * 6 * spc + (opt.get('sh', 0) * GL if n >= 11 else 0), spc, [bar[n + 1]], dyn=(n < 7 or n >= 11))
                if opt.get('sw') and 1 <= n <= 6:
                    dma_group('warm', None, ['s_add_u32 s101, s101, 1280'], ['buffer_load_dword v18, v19, s[48:51], s101 offen%s' % opt.get('wmpol', '')], st + 1, 1, [])
                if opt.get('pfk') and 1 <= n <= 6 and n % 2 == opt.get('pfp', 0):
                    dma_group('warm', None, ['s_add_u32 s100, s100, %d' % (opt['pfk'] * 512)], ['buffer_load_dword v18, v31, s[28:31], s100 offen%s' % opt.get('pfpol', '')], st + 2, 1, [])
                if str(n) in str(opt.get('op', '')).split(','):
                    dma_group('warm', None, ['s_add_u32 s101, s101, 2048'], ['buffer_load_dword v18, v19, s[36:39], s101 offen%s' % opt.get('wmpol', '')], st + 1, 1, [])
                if str(n) in str(opt.get('wp', '')).split(','):
                    if n >= 9: dma_group('warm', None, ['s_mov_b32 m0, %d' % (FLAG + 1024), 's_add_u32 s101, s101, %d' % (WROWS * 1280)],
                                         ['buffer_load_dword v11, s[48:51], s101 offen%s lds' % opt.get('wmpol', '')], st + 1, 1, [])
                    else: dma_group('warm', None, ['s_add_u32 s101, s101, %d' % (WROWS * 1280)],
                                    ['buffer_load_dword v18, v11, s[48:51], s101 offen%s' % opt.get('wmpol', '')], st + 1, 1, [])
                if n == 40:
                    for m in range(9, 12): dma_wo(m, st + 2 + (m - 9) * GL, GL / 2.0, [bar[n + 1]])
                if n >= 9: flush_plan()
            if xq is not None:
                wx = wj
                if k == 0: wx = P.job(WAIT(dmas['X1_0']), lo=GL - 3, hi=GL - 3, name='WX')
                xr[n + 1, xq] = x_reads(n + 1, xq, st - 1, st + GL + 2, [(wx, 0)])
            if k == 0:
                sp0 = GL / 2.0; at = 1; P.phase = -5
                if not PW1: sp0 = GL / 3.0; dma_tile(('W', 1), at, sp0, dyn=False); at += 6 * sp0
                for qt in range(NQ): dma_x(2, qt, at, sp0); at += 2 * sp0
                if EARLY < 2: dma_tile(('W', 2), at, sp0, dyn=False); at += 6 * sp0
                x3at = at; P.phase = 0
            if xd is not None and n + 3 <= 9:
                if n == 0:
                    x3at = max(x3at, st + 4); dma_x(3, xd, x3at, 2, [wj]); x3at += 4
                else: dma_x(n + 3, xd, st + 4, GL if xd < 3 else GL // 2, [wj])
            sl = str(opt.get('sl', '0,10,12,41')).split(',')
            if g == 0 and str(n) in sl: stamp(1 + sl.index(str(n)), st)
            if opt.get('ktrace') and g == 0 and n <= 40:
                a_ = P.job('s_memrealtime s[90:91]', lo=st, hi=st); a_.cls = 's'
                b_ = P.job('s_waitcnt lgkmcnt(0)', lo=st, hi=st, deps=[(a_, 0)])
                P.job('s_lshl_b32 s90, s90, 6', lo=st, hi=st + 1, deps=[(b_, 0)])
                P.job('s_or_b32 s90, s90, s98', lo=st, hi=st + 1)
                P.job('v_writelane_b32 v11, s90, s90', lo=st, hi=st + 2)
                P.job('s_add_u32 s98, s98, 1', lo=st, hi=st + 3)
                if n == 40: P.job('v_accvgpr_write_b32 a244, v11')
            rb = RING + (g % 4) * 8
            for qt in range(NQ):
                for e in range(2):
                    A = ar(rb + 4 * e)
                    if kind == 'W':
                        d = vr(qacc(g, qt)); P.mfma(d, A, ar(xfrag(n, e, qt)), '0' if (n == 0 and e == 0) else d)
                    elif kind == 'K':
                        kt, sp = g // 3, g % 3
                        d = vr(SBLK[kt, qt]); c = d
                        if sp == 0 and e == 0: c = '0' if (j == 0 and kt < SUBKT) else vr(NEGM[qt])
                        P.mfma(d, A, vr(qfrag(2 * sp + e, qt)), c)
                    else:
                        d = ar(oacc(g, qt)); P.mfma(d, A, vr(PBLK[j & 1, e, qt]), '0' if (j == 0 and e == 0) else d)
            if n == 9:
                for qt in range(NQ):
                    b = qacc(g, qt)
                    if opt.get('pk'):
                        for r in (0, 2): P.job('v_pk_mul_f32 %s, s[44:45], %s op_sel_hi:[0,1]' % (vr(b + r, 2), vr(b + r, 2)), dlat=5)
                    else:
                        for r in range(4): P.job('v_mul_f32 v%d, s44, v%d' % (b + r, b + r), dlat=5)
                    for h in range(2): P.job('v_cvt_pk_bf16_f32 v%d, v%d, v%d' % (qfrag(g >> 1, qt) + 2 * (g & 1) + h, b + 2 * h, b + 2 * h + 1))
            if n == 10 and g == 2:
                for qt in range(NQ):
                    sb = SBLK[0, qt]; t = PBLK[1, 0, qt]
                    P.job('v_max3_f32 v%d, v%d, v%d, v%d' % (t, sb, sb + 1, sb + 2), dlat=5)
                    P.job('v_max_f32 v%d, v%d, v%d' % (t, t, sb + 3), dlat=5)
                    P.job('v_mov_b32 v%d, v%d' % (t + 1, t))
                    P.job('v_permlane32_swap_b32 v%d, v%d' % (t, t + 1))
                    P.job('v_max_f32 v%d, v%d, v%d' % (t, t, t + 1))
                    P.job('v_mov_b32 v%d, v%d' % (t + 1, t))
                    P.job('v_permlane16_swap_b32 v%d, v%d' % (t, t + 1))
                    P.job('v_max_f32 v%d, v%d, v%d' % (t, t, t + 1))
                    for r in range(4): P.job('v_sub_f32 v%d, 0, v%d' % (NEGM[qt] + r, t))
            if n == 41:
                for qt in range(NQ):
                    if (g & 1) == 0:
                        tt[qt] = t = t0 = late_blk(opt, g >> 1, qt) or tmpblk.pop(0)
                        if (g >> 1) < opt.get('se', 2): tmpblk.append(t)
                    else: t0 = tt[qt]; t = tmpblk.pop(0); tmpblk.append(t)
                    for r in range(4): P.job('v_accvgpr_read_b32 v%d, a%d' % (t + r, oacc(g, qt) + r), dlat=5)
                    if opt.get('pk'):
                        for r in (0, 2): P.job('v_pk_mul_f32 %s, %s, %s op_sel:[0,%d] op_sel_hi:[1,%d]' % (vr(t + r, 2), vr(t + r, 2), vr(NEGM[0] + (qt & 2), 2), qt & 1, qt & 1))
                    else:
                        for r in range(4): P.job('v_mul_f32 v%d, v%d, v%d' % (t + r, t + r, NEGM[0] + qt))
                    for h in range(2): P.job('v_cvt_pk_bf16_f32 v%d, v%d, v%d' % (t0 + 2 * (g & 1) + h, t + 2 * h, t + 2 * h + 1))
                    if (g & 1) and (g >> 1) < opt.get('se', 2):
                        s = g >> 1
                        P.job('buffer_store_dwordx4 %s, v10, s[36:39], s%d offen offset:%d%s' % (vr(t0), 56 + 2 * qt + (s >> 2), (s & 3) * 1024, opt.get('opol', ' sc1')))
        if kind == 'K': softmax(j, SUBKT if j == 0 else 0)
    assert P.n() == total
    w0i = waitjob[0, 0].ins
    P.pre.remove(w0i); P.pre.append(w0i)
    P.start = start
    P.wo = {m: dmas['WO', m] for m in range(15)}
    return P

def k1_body(NQ, opt):
    dense = opt.get('dense', 5)
    def run(P, regions):
        slots_fn = lambda g: dense if g >= P.start[41, 1] else 2
        return schedule(P.mf, P.jobs, verbose=opt.get('verbose'), slots_fn=slots_fn, regions=regions)
    P1 = k1_build(NQ, opt); run(P1, ())
    st = P1.start
    P = k1_build(NQ, opt)
    regions = []
    for n0, pn, n1, ref in LOOPS:
        L0 = st[n0]; T = st[n0 + pn] - L0; L1 = st[n1]
        regions.append((L0, L1))
        cls = {}
        for j in P1.jobs:
            if L0 + ref * T <= j.gap < L0 + (ref + 1) * T:
                ph, nm, c = j.key
                k = ((ph - n0) % pn, nm, c)
                assert k not in cls, ('duplicate class', k)
                cls[k] = (j.gap - L0 - ((ph - n0) // pn) * T, j.ord)
        for j in P.jobs:
            if j.gap is not None: continue
            ph, nm, c = j.key
            if not (n0 - pn <= ph < n1 + pn): continue
            k = ((ph - n0) % pn, nm, c)
            if k in cls:
                p = L0 + ((ph - n0) // pn) * T + cls[k][0]
                if L0 <= p < L1: j.pin = (p, cls[k][1]); j.lo = j.hi = p
                elif p < L0: j.hi = min(j.hi, L0 - 1)
                else: j.lo = max(j.lo, L1)
            else:
                assert not (n0 <= ph < n1), ('no class for', j.key)
        for j in P.jobs:
            if j.gap is None and j.pin is None:
                if j.key[0] < n0: j.hi = min(j.hi, L0 - 1) if j.lo < L1 else j.hi
                elif j.key[0] >= n1: j.lo = max(j.lo, L1)
    for j in P.jobs:
        if j.dummy and j.pin is None: j.gap = -10
    body, left, over = run(P, regions)
    errs = verify(P.jobs)
    for e in errs[:20]: print('ERR', e)
    assert not errs
    marks = []
    idx = {id(m): i for i, m in enumerate(P.mf)}
    seq = []
    want = {}
    for li, (n0, pn, n1, ref) in enumerate(LOOPS):
        L0 = st[n0]; T = st[n0 + pn] - L0; L1 = st[n1]
        ex = (L1 - L0) % T
        for p in range(L0, L1 + 1, T):
            want.setdefault(p, []).append((li, 'it'))
            if ex and p + ex <= L1: want.setdefault(p + ex, []).append((li, 'ex'))
    for x in body:
        i = idx.get(id(x))
        if i is not None and i in want:
            for li, w in want[i]:
                m = I('; L%d %s' % (li, w)); m.mark = (li, w); seq.append(m)
        seq.append(x)
    return P.pre + seq + left, over, P.wo

def fold(seq, tag):
    out = list(seq)
    for li, (n0, pn, n1, ref) in enumerate(LOOPS):
        pos = [i for i, x in enumerate(out) if getattr(x, 'mark', None) == (li, 'it')]
        exs = [i for i, x in enumerate(out) if getattr(x, 'mark', None) == (li, 'ex')]
        segs = [out[pos[i]:pos[i + 1]] for i in range(len(pos) - 1)]
        end = pos[-1]
        if exs: segs.append(out[pos[-1]:exs[-1]]); end = exs[-1]
        for s in segs[1:]:
            for a, b in zip(segs[0], s): assert a.txt == b.txt, (tag, li, a.txt, b.txt)
            assert len(s) == len(segs[0]) or (exs and s is segs[-1])
        nit = len(pos) - 1
        lab = '%s_L%d' % (tag, li)
        body = segs[0][1:]
        if exs:
            e = exs[0] - pos[0] - 1
            body = body[:e] + [I('s_cmp_eq_u32 s3, %d' % nit), I('s_cbranch_scc1 %s_x' % lab), I('s_add_u32 s3, s3, 1')] + body[e + 1:] + [I('s_branch %s' % lab), I('%s_x:' % lab)]
        else:
            body = body + [I('s_add_u32 s3, s3, 1'), I('s_cmp_lg_u32 s3, %d' % nit), I('s_cbranch_scc1 %s' % lab)]
        out = out[:pos[0]] + [I('s_mov_b32 s3, 0'), I('%s:' % lab)] + body + out[end + 1:]
    return out

def unify(seq):
    for li in range(len(LOOPS)):
        pos = [i for i, x in enumerate(seq) if getattr(x, 'mark', None) == (li, 'it')]
        exs = [i for i, x in enumerate(seq) if getattr(x, 'mark', None) == (li, 'ex')]
        ends = pos[1:] + ([exs[-1]] if exs else [])
        segs = [seq[a:b] for a, b in zip(pos, ends)]
        for k in range(len(segs[0])):
            col = [s[k] for s in segs if k < len(s)]
            if getattr(col[0], 'cover', None) is None: continue
            c = {}
            for x in col:
                for nm, v in re.findall(r'(vmcnt|lgkmcnt)\((\d+)\)', x.txt): c[nm] = min(c.get(nm, 99), int(v))
            t = 's_waitcnt ' + ' '.join('%s(%d)' % (nm, c[nm]) for nm in ('vmcnt', 'lgkmcnt') if nm in c) if c else 's_nop 0'
            if len(set(x.txt for x in col)) > 1: print('   unified', sorted(set(x.txt for x in col)), '->', t)
            for x in col: x.txt = t; x.parse()

def k1_prologue(opt):
    L = []
    a = lambda t: L.extend(I(x) for x in t.strip().split('\n'))
    a('''s_cmp_lt_u32 s2, 256
s_cbranch_scc1 K1_go
s_endpgm
K1_go:
s_load_dwordx8 s[4:11], s[0:1], 0
s_load_dwordx2 s[18:19], s[0:1], 56
s_load_dwordx2 s[48:49], s[0:1], 32''')
    if opt.get('stamps'): a('s_memrealtime s[64:65]\ns_memtime s[68:69]')
    a('''v_lshrrev_b32 v29, 6, v0
v_and_b32 v30, 63, v0
v_readfirstlane_b32 s40, v29''')
    if opt.get('map', 0) == 0:
        a('s_and_b32 s46, s2, 7\ns_lshr_b32 s47, s2, 3')
    else:
        a('''s_and_b32 s46, s2, 1
s_lshl_b32 s46, s46, 2
s_bfe_u32 s52, s2, 0x20003
s_or_b32 s46, s46, s52
s_bfe_u32 s47, s2, 0x20001
s_lshl_b32 s47, s47, 3
s_lshr_b32 s52, s2, 5
s_or_b32 s47, s47, s52''')
    if not opt.get('qrot', 1): a('s_mov_b32 s13, 0')
    elif opt.get('map', 0) == 0: a('s_mul_i32 s52, s47, 26\ns_lshr_b32 s52, s52, 8\ns_mul_i32 s52, s52, 10\ns_sub_u32 s13, s47, s52')
    else: a('''s_bfe_u32 s53, s2, 0x10003
s_mul_i32 s53, s53, ''' + str(5 - opt.get('q0', 0) // 2) + '''
s_add_u32 s52, s52, s53
s_bfe_u32 s53, s2, 0x10004
s_lshl_b32 s53, s53, 1
s_add_u32 s52, s52, s53
s_sub_u32 s53, s52, %d
s_min_u32 s13, s52, s53''' % (10 - opt.get('q0', 0)))
    a('s_lshl_b32 s14, s13, 7\ns_mul_i32 s13, s13, %d' % WSTEP)
    a('''v_lshrrev_b32 v31, 3, v30
v_and_b32 v32, 6, v31
v_and_b32 v33, 7, v30
v_xor_b32 v32, v32, v33
v_lshl_add_u32 v31, v29, 6, v31
v_mul_u32_u24 v31, 1280, v31
v_lshl_add_u32 v25, v32, 4, v31
v_add_u32 v26, 9216, v25
v_add_u32 v27, 18432, v25
v_add_u32 v28, 27648, v25''')
    a('v_mul_u32_u24 v34, 6144, v29\nv_lshlrev_b32 v35, 4, v29')
    for t in range(3):
        a('''v_add_u32 v31, %d, v30
v_mul_u32_u24 v32, 171, v31
v_lshrrev_b32 v32, 12, v32
v_mul_u32_u24 v33, 24, v32
v_sub_u32 v33, v31, v33
v_lshlrev_b32 v36, 1, v32
v_and_b32 v36, 4, v36
v_xor_b32 v33, v33, v36
v_add_u32 v36, v35, v32
v_mul_u32_u24 v36, 12288, v36
v_lshl_add_u32 v33, v33, 4, v36
v_subrev_u32 v%d, %d, v33
v_and_b32 v32, 6, v32
v_xor_b32 v32, v32, v30
v_lshl_add_u32 v%d, v32, 4, v34''' % (64 * t, 22 + t, 1024 * t, 7 + t))
    a('''s_mul_i32 s41, s40, 6144
s_lshl_b32 s42, s40, 13
s_add_u32 s42, s42, %d
s_mul_i32 s52, s46, 307200
s_mul_i32 s53, s47, 384
s_lshl_b32 s54, s46, 5
s_add_u32 s54, s54, s47
s_mul_i32 s54, s54, 393216
s_mul_i32 s55, s46, 2880
s_mul_i32 s56, s47, 6
s_add_u32 s55, s55, s56
s_lshl_b32 s55, s55, 10
s_mov_b32 s22, 307200
s_mov_b32 s23, 0x00020000
s_sub_u32 s26, 7864320, s53
s_mov_b32 s27, 0x00020000
s_mov_b32 s30, 393216
s_mov_b32 s31, 0x00020000
s_mov_b32 s34, 393216
s_mov_b32 s35, 0x00020000
s_sub_u32 s38, 23592960, s55
s_mov_b32 s39, 0x00020000
s_waitcnt lgkmcnt(0)
s_add_u32 s20, s4, s52
s_addc_u32 s21, s5, 0
s_add_u32 s24, s10, s53
s_addc_u32 s25, s11, 0
s_add_u32 s28, s6, s54
s_addc_u32 s29, s7, 0
s_add_u32 s32, s8, s54
s_addc_u32 s33, s9, 0
s_add_u32 s36, s18, s55
s_addc_u32 s37, s19, 0''' % XB0)
    mid = '''s_add_u32 s52, s18, %d
s_addc_u32 s53, s19, 0
s_load_dword s45, s[52:53], 1024
s_mov_b32 s54, 2048
s_mov_b32 s55, 0x00020000
''' % k2f.OBYTES + k2f.inner(opt, 's56', 's57', 's58') + '''
s_lshl_b32 s59, s56, 6
''' + k2f.outer(opt, 's56', 's57', 's58') + '''
s_lshl_b32 s57, s57, 7
s_add_u32 s48, s48, s57
s_addc_u32 s49, s49, 0
s_sub_u32 s50, 7864320, s57
s_mov_b32 s51, 0x00020000
s_mov_b32 s101, %d
v_lshrrev_b32 v31, 4, v0
v_min_u32 v31, 14, v31
v_mul_u32_u24 v31, 196608, v31
v_and_b32 v32, 15, v0
v_lshl_add_u32 v19, v32, 7, v31
''' % (-2048 if opt.get('op') else -(384 if opt.get('kmap', 1) else 192) * 1280) + '''v_lshrrev_b32 v31, 3, v30
v_and_b32 v32, 6, v31
v_and_b32 v33, 7, v30
v_xor_b32 v32, v32, v33
v_mul_u32_u24 v33, 1536, v29
v_add_u32 v31, v33, v31
v_mul_u32_u24 v31, 1280, v31
v_lshl_add_u32 v14, v32, 4, v31
v_add_u32 v15, 9216, v14
v_add3_u32 v11, v33, s59, v30
v_mul_u32_u24 v11, 1280, v11
'''
    mid += '''v_lshrrev_b32 v31, 4, v30
v_and_b32 v32, 15, v30
v_and_b32 v33, 6, v32
v_xor_b32 v33, v33, v31
v_lshlrev_b32 v33, 4, v33
v_lshl_add_u32 v20, v32, 7, v33
v_add_u32 v20, s42, v20
v_xor_b32 v21, 64, v20
v_mul_u32_u24 v1, 384, v32
v_add_u32 v1, v1, v33
v_add_u32 v1, %d, v1
v_xor_b32 v2, 64, v1
v_bfe_u32 v32, v30, 2, 2
v_lshl_add_u32 v33, v31, 3, v32
v_mul_u32_u24 v33, 384, v33
v_lshlrev_b32 v32, 1, v32
v_and_b32 v32, 4, v32
v_and_b32 v34, 3, v30
v_xor_b32 v32, v32, v34
v_lshl_add_u32 v16, v32, 4, v33
v_xor_b32 v17, 64, v16
v_lshrrev_b32 v31, 2, v30
v_and_b32 v32, 6, v31
v_lshrrev_b32 v33, 1, v34
v_xor_b32 v32, v32, v33
v_lshlrev_b32 v32, 4, v32
v_and_b32 v33, 1, v30
v_lshl_add_u32 v32, v33, 3, v32
v_mul_u32_u24 v31, 384, v31
v_add_u32 v3, v31, v32
v_add_u32 v3, %d, v3
v_xor_b32 v4, 32, v3
v_xor_b32 v5, 64, v3
v_xor_b32 v6, 96, v3
v_mul_u32_u24 v10, 786432, v29
v_lshl_add_u32 v10, v30, 4, v10
v_lshlrev_b32 v12, 2, v29
v_add_u32 v12, %d, v12
v_mov_b32 v13, %d
v_mov_b32 v31, 0x3f803f80
v_accvgpr_write_b32 a240, v31
v_accvgpr_write_b32 a241, v31
v_accvgpr_write_b32 a242, v31
v_accvgpr_write_b32 a243, v31
s_mov_b32 s44, 0x%08x
s_mov_b32 s4, 98304
s_mov_b32 s5, 49152
s_mov_b32 s6, 73728
s_mov_b32 s7, 49152
s_add_u32 s12, s41, 49152
s_add_u32 s15, s41, s12''' % (2 * TS, 2 * TS, FLAG, FLAG, f2u(math.log2(math.e) / math.sqrt(192.0)))
    if opt.get('sw'):
        mid += '''
v_mul_u32_u24 v31, 60, v29
v_add_u32 v31, v31, v30
v_lshlrev_b32 v19, 7, v31
v_subrev_u32 v31, 10, v30
v_not_b32 v31, v31
v_and_b32 v31, 0x40000000, v31
v_or_b32 v19, v19, v31
s_mul_i32 s101, s2, 30720
s_add_u32 s101, s101, s50
s_sub_u32 s101, s101, %d''' % (7864320 + 1280)
    if opt.get('pfk'):
        mid += '''
v_mul_u32_u24 v31, %d, v29
v_add_u32 v31, v31, v30
v_lshlrev_b32 v31, 7, v31
v_subrev_u32 v32, %d, v30
v_not_b32 v32, v32
v_and_b32 v32, 0x40000000, v32
v_or_b32 v31, v31, v32
s_mov_b32 s100, %d''' % (opt['pfk'], opt['pfk'], -opt['pfk'] * 512)
    mid = mid.split('\n')
    for qt in range(4):
        for hh in range(2): mid.append('s_mov_b32 s%d, %d' % (56 + 2 * qt + hh, qt * 196608 + hh * 4096))
    if opt.get('ktrace'): mid.append('s_mov_b32 s98, 0')
    if opt.get('ls'):
        for r in range(4): mid += ['v_accvgpr_write_b32 a%d, v%d' % (248 + r, 12 + r), 'v_mov_b32 v%d, v%d' % (NEGM[3] + r, 12 + r), 'v_mov_b32 v%d, 0' % (12 + r)]
    mid += ['s_cmp_eq_u32 s40, 3', 's_cselect_b32 s62, 0x7ff00000, s62', 's_cselect_b32 s63, 0x7ff00000, s63']
    return L, mid

def stamp_code(label, nst, tmp=96):
    L = []
    a = lambda t: L.extend(I(x) for x in t.strip().split('\n'))
    a('s_waitcnt vmcnt(0)\ns_memrealtime s[66:67]\ns_memtime s[70:71]\ns_memrealtime s[%d:%d]\ns_memtime s[%d:%d]\ns_waitcnt lgkmcnt(0)' % (72 + 4 * nst, 73 + 4 * nst, 74 + 4 * nst, 75 + 4 * nst))
    a('s_mov_b64 s[72:73], s[64:65]\ns_mov_b64 s[74:75], s[68:69]')
    a('''s_add_u32 s96, s18, 0x%x
s_addc_u32 s97, s19, 0
s_mov_b32 s98, 0x1000000
s_mov_b32 s99, 0x00020000
s_cmp_lg_u32 s40, 0
s_cbranch_scc1 %s
s_lshl_b32 s4, s2, 8
s_add_u32 s4, s4, 0x100000
v_lshlrev_b32 v11, 2, v0
v_lshlrev_b32 v14, 6, v255
s_nop 1
buffer_store_dword v14, v11, s[96:99], s4 offen
s_mul_i32 s4, s2, 128
v_mov_b32 v11, s4
s_mov_b64 exec, 1''' % (STAMP_OFF, label))
    regs = [64, 66, 68, 70] + [72 + 2 * i for i in range(2 * nst + 2)]
    for i, r in enumerate(regs):
        a('v_mov_b32 v14, s%d\nv_mov_b32 v15, s%d\nbuffer_store_dwordx2 v[14:15], v11, s[96:99], 0 offen offset:%d\ns_nop 1' % (r, r + 1, 8 * i))
    a('s_waitcnt vmcnt(0)\n%s:' % label)
    return L

def k1_fallback(opt):
    L = []
    a = lambda t: L.extend(I(x) for x in t.strip().split('\n'))
    MX = 12
    a('K1_fb:\ns_waitcnt vmcnt(0) lgkmcnt(0)\ns_barrier')
    a('s_sub_u32 s6, s6, %d\ns_sub_u32 s7, s7, %d' % (4 * TS, 4 * TS))
    for r in (1, 2): a('v_subrev_u32 v%d, s6, v%d' % (r, r))
    for r in (3, 4, 5, 6): a('v_subrev_u32 v%d, s7, v%d' % (r, r))
    for qt in range(4):
        a('v_mov_b32 v%d, 0xff7fffff' % (MX + qt))
        for r in range(4): a('v_mov_b32 v%d, 0' % (NEGM[qt] + r))
    a('s_mov_b32 s4, 0\nK1_fb_pass:\ns_mov_b32 s5, 0')
    for i in range(208): a('v_accvgpr_write_b32 a%d, 0' % i)
    a('K1_fb_loop:')
    def load(srd):
        for half in range(2):
            a('s_add_u32 m0, s41, %d\ns_add_u32 s43, s5, %d' % (4 * TS + half * 3072, half * 3072))
            for t in range(3): a('buffer_load_dwordx4 v%d, %s, s43 offen offset:%d lds' % (7 + t, srd, 1024 * t))
        a('s_waitcnt vmcnt(0)\ns_barrier')
    load('s[28:31]')
    for kt in range(4):
        for s in range(6): a('ds_read_b128 %s, v%d offset:%d' % (ar(RING + 4 * s), 1 + (s & 1), 128 * (s >> 1) + 6144 * kt))
        a('s_waitcnt lgkmcnt(0)')
        for qt in range(4):
            for s in range(6):
                d = vr(SBLK[kt, qt])
                a('v_mfma_f32_16x16x32_bf16 %s, %s, %s, %s' % (d, ar(RING + 4 * s), vr(qfrag(s, qt)), vr(NEGM[qt]) if s == 0 else d))
    a('s_nop 7\ns_cmp_lg_u32 s4, 0\ns_cbranch_scc1 K1_fb_pv')
    for kt in range(4):
        for qt in range(4):
            sb = SBLK[kt, qt]
            a('v_max3_f32 v%d, v%d, v%d, v%d\nv_max3_f32 v%d, v%d, v%d, v%d' % (MX + qt, MX + qt, sb, sb + 1, MX + qt, MX + qt, sb + 2, sb + 3))
    a('s_branch K1_fb_next\nK1_fb_pv:\ns_barrier')
    load('s[32:35]')
    for kt in range(4):
        for qt in range(4):
            sb = SBLK[kt, qt]
            for r in range(4): a('v_exp_f32 v%d, v%d' % (sb + r, sb + r))
    a('s_nop 0')
    for kt in range(4):
        for qt in range(4):
            sb = SBLK[kt, qt]; pb = PBLK[0, kt >> 1, qt] + 2 * (kt & 1)
            for h in range(2): a('v_cvt_pk_bf16_f32 v%d, v%d, v%d' % (pb + h, sb + 2 * h, sb + 2 * h + 1))
    a('s_nop 1')
    for qt in range(4):
        for kp in range(2): a('v_mfma_f32_16x16x32_bf16 %s, %s, %s, %s' % (ar(LACC + 4 * qt), ar(ONES), vr(PBLK[0, kp, qt]), ar(LACC + 4 * qt)))
    for dt in range(12):
        for kp in range(2):
            for hh in range(2): a('ds_read_b64_tr_b16 %s, v%d offset:%d' % (ar(RING + 4 * kp + 2 * hh, 2), 3 + (dt & 3), 128 * (dt >> 2) + 6144 * hh + 12288 * kp))
        a('s_waitcnt lgkmcnt(0)')
        for qt in range(4):
            for kp in range(2): a('v_mfma_f32_16x16x32_bf16 %s, %s, %s, %s' % (ar(oacc(dt, qt)), ar(RING + 4 * kp), vr(PBLK[0, kp, qt]), ar(oacc(dt, qt))))
    a('''K1_fb_next:
s_nop 7
s_barrier
s_add_u32 s5, s5, %d
s_cmp_lt_u32 s5, %d
s_cbranch_scc1 K1_fb_loop
s_cmp_lg_u32 s4, 0
s_cbranch_scc1 K1_fb_out''' % (TS, 16 * TS))
    for qt in range(4):
        t = MX + qt; u = PBLK[0, 0, 0]
        a('''v_mov_b32 v%d, v%d
s_nop 1
v_permlane32_swap_b32 v%d, v%d
v_max_f32 v%d, v%d, v%d
v_mov_b32 v%d, v%d
s_nop 1
v_permlane16_swap_b32 v%d, v%d
v_max_f32 v%d, v%d, v%d''' % (u, t, t, u, t, t, u, u, t, t, u, t, t, u))
        for r in range(4): a('v_sub_f32 v%d, 0, v%d' % (NEGM[qt] + r, t))
    a('s_mov_b32 s4, 1\ns_branch K1_fb_pass\nK1_fb_out:')
    for qt in range(4):
        a('v_accvgpr_read_b32 v11, a%d\ns_nop 0\nv_rcp_f32 v11, v11\ns_nop 0' % (LACC + 4 * qt))
        for s in range(6):
            t = 16 + 8 * (s & 1); d = late_blk(opt, s, qt) or t
            for e in range(2):
                for r in range(4): a('v_accvgpr_read_b32 v%d, a%d' % (t + 4 * e + r, oacc(2 * s + e, qt) + r))
            for r in range(8): a('v_mul_f32 v%d, v%d, v11' % (t + r, t + r))
            for h in range(4): a('v_cvt_pk_bf16_f32 v%d, v%d, v%d' % (d + h, t + 2 * h, t + 2 * h + 1))
            if d == t: a('buffer_store_dwordx4 %s, v10, s[36:39], s%d offen offset:%d%s' % (vr(t), 56 + 2 * qt + (s >> 2), (s & 3) * 1024, opt.get('opol', ' sc1')))
    a('s_branch K1_done')
    return L

def finish(seq, name, verbose=False):
    resolve_waits(seq)
    if any(hasattr(x, 'mark') for x in seq): unify(seq)
    seq, nn = fix_hazards(seq, verbose)
    errs, info = check(seq, name)
    for e in errs[:20]: print('ERR', e)
    assert not errs, '%d errors' % len(errs)
    return seq, info, nn

def sizes(seq):
    import subprocess, tempfile, os
    ins = [x for x in seq if x.kind != 'label']
    d = tempfile.mkdtemp()
    open(d + '/a.s', 'w').write('.amdgcn_target "amdgcn-amd-amdhsa--gfx950"\n.text\n' + '\n'.join(x.txt for x in seq) + '\ns_endpgm\n')
    subprocess.check_call(['clang', '-x', 'assembler', '-target', 'amdgcn-amd-amdhsa', '-mcpu=gfx950', '-c', d + '/a.s', '-o', d + '/a.o'])
    o = subprocess.check_output(['llvm-objdump', '-d', d + '/a.o'], text=True)
    offs = [int(m.group(1), 16) for m in re.finditer(r'// ([0-9A-F]{12}):', o)]
    assert len(offs) == len(ins) + 1, (len(offs), len(ins))
    for x, a, b in zip(ins, offs, offs[1:]): x.size = b - a

def add_touch(seq, tag, opt):
    NC = opt.get('ncls', 1); STEP = opt.get('pstep', 4096 // NC)
    chains = []
    for mark, lab in (('; touch', tag + '_tr'), ('; touch2', tag + '_ts')):
        if mark not in [x.txt for x in seq]: continue
        t = [x.txt for x in seq].index(mark)
        chain = [I('s_mov_b64 vcc, 1')]
        leaves = {}
        if NC == 1:
            for w in range(4):
                leaves[0, w] = I('s_cbranch_scc1 %s' % lab)
                chain += [I('s_cmp_eq_u32 s40, %d' % w), leaves[0, w]]
        else:
            bits = [('s40', 0), ('s40', 1)] + [('s2', 3 + i) for i in range(NC.bit_length() - 1)]
            def tree(level, val):
                if level == len(bits) - 1:
                    r, b = bits[level]
                    v1 = val | (1 << level)
                    l1 = I('s_cbranch_scc1 %s' % lab); l0 = I('s_branch %s' % lab)
                    leaves[v1 >> 2, v1 & 3] = l1; leaves[val >> 2, val & 3] = l0
                    return [I('s_bitcmp1_b32 %s, %d' % (r, b)), l1, l0]
                r, b = bits[level]
                nm = '%s_n%d_%d' % (lab, level, val)
                return [I('s_bitcmp1_b32 %s, %d' % (r, b)), I('s_cbranch_scc1 %s' % nm)] + tree(level + 1, val) + [I(nm + ':')] + tree(level + 1, val | (1 << level))
            chain += tree(0, 0)
        chain += [I('%s:' % lab), I('s_mov_b64 vcc, 0')]
        seq = seq[:t] + chain + seq[t + 1:]
        chains.append((chain, lab, leaves))
    sizes(seq)
    end0 = 0
    for x in seq:
        if x.kind != 'label': end0 += x.size
        if x is chains[0][0][-1]: break
    out = []; off = 0; nxt = 4096 if NC == 1 else (end0 // STEP + 1) * STEP; pads = []; cold = False
    def pad():
        nonlocal off
        b = I('s_cbranch_vccnz %s' % chains[0][1]); pads.append((off, b)); out.append(I('%s_p%d:' % (tag, len(pads) - 1))); out.append(b); off += 4
    inchain = set(id(x) for c in chains for x in c[0][1:])
    for x in seq:
        if x.txt == '; cold': cold = True; print('   hot code bytes', off)
        if x.txt == '; pad':
            if off % 4096 > 64 and NC == 1: pad()
            continue
        if x.kind != 'label':
            if off >= nxt and not cold and id(x) not in inchain:
                pad()
                while nxt <= off: nxt += STEP
            off += x.size
        out.append(x)
    pos = {id(x): i for i, x in enumerate(out)}
    split = next((i for i, x in enumerate(out) if x.txt == 'K1_w3:'), None)
    done = next(i for i, x in enumerate(out) if x.txt == 'K1_done:')
    if split is None: split = done
    split2 = pos[id(chains[1][0][0])] if len(chains) > 1 else len(out)
    for c in range(NC):
        my = [i for i, (o, b) in enumerate(pads) if NC == 1 or (o // STEP) % NC == c]
        if opt.get('pmax'): my = my[:opt['pmax']]
        first = [i for i in my if pos[id(pads[i][1])] < split]
        second = [i for i in my if split <= pos[id(pads[i][1])] < min(done, split2)]
        tl = [i for i in my if min(done, split2) <= pos[id(pads[i][1])] < split2]
        third = [i for i in my if split2 <= pos[id(pads[i][1])]]
        order = []
        for k in range(max(len(first), len(second))):
            if k < len(second): order.append(second[k])
            if k < len(first): order.append(first[k])
        order += tl
        for (chain, lab, leaves), order in zip(chains, (order, third)):
            for w in range(4):
                mine = order[w::4]
                if not mine: continue
                br = leaves[c, w]
                br.txt = br.txt.split()[0] + ' %s_p%d' % (tag, mine[0])
                for a, b in zip(mine, mine[1:] + [None]):
                    pads[a][1].txt = 's_cbranch_vccnz ' + ('%s_p%d' % (tag, b) if b is not None else lab)
    print('   pads', len(pads), [o for o, b in pads][:40])
    return out

def gen_k1(opt):
    pro, mid = k1_prologue(opt)
    opt = dict(opt); opt['mid'] = mid
    out = []; infos = []
    pro, _ = fix_hazards(pro)
    sl = str(opt.get('sl', '0,10,12,41')).split(',')
    def stamp(nm):
        if not opt.get('stamps') or nm not in sl: return []
        k = 1 + sl.index(nm)
        return [I('s_memrealtime s[%d:%d]' % (72 + 4 * k, 73 + 4 * k)), I('s_memtime s[%d:%d]' % (74 + 4 * k, 75 + 4 * k)), I('s_waitcnt lgkmcnt(0)')]
    tails = []
    for NQ in ((4,) if opt.get('one') else (4, 3)):
        seq, over, wo = k1_body(NQ, opt)
        seq += [I('s_cmp_lg_u32 s100, 0'), I('s_cbranch_scc1 K1_fb'), WAIT(sum((wo[m] for m in range(12)), []))]
        seq += k2f.tail(opt, wo, stamp, late_stores(opt))
        full, info, nn = finish(pro + seq, 'K1/NQ%d' % NQ, opt.get('verbose'))
        assert full[:len(pro)] == pro
        print('K1 NQ=%d: %d instrs, overflow %d, nops %d, est cycles %d' % (NQ, len(full), over, nn, est_cycles(full)))
        infos.append(info)
        if opt.get('fold', 1): full = fold(full, 'K1q%d' % NQ)
        print('   folded: %d instrs' % len(full))
        d = [x.txt for x in full].index('K1_done:')
        tails.append(full[d:]); full = full[:d]
        t = [x.txt for x in full].index('; touch')
        if opt.get('one'): out += full
        elif NQ == 4:
            common = [x.txt for x in full[:t]]
            out += full[:t + 1] + [I('s_cmp_eq_u32 s40, 3'), I('s_cbranch_scc1 K1_w3')] + full[t + 1:] + [I('s_branch K1_done'), I('K1_w3:'), I('; pad')]
        else:
            assert common == [x.txt for x in full[:t]]
            out += full[t + 1:]
    ce = cross_check(infos)
    for e in ce: print('ERR', e)
    assert not ce
    assert len(tails[0]) == len(tails[-1])
    for x, y in zip(tails[0], tails[-1]):
        if x.txt != y.txt:
            c = [int(re.fullmatch(r's_waitcnt vmcnt\((\d+)\)', z.txt).group(1)) for z in (x, y)]
            print('   tail wait', c); x.txt = 's_waitcnt vmcnt(%d)' % min(c); x.parse()
    out += k2f.patch(tails[0])
    out += [I('; cold')]
    if opt.get('stamps'): out += stamp_code('K1_st', 5)
    out += [I('s_endpgm')]
    fb, _, _ = finish(k1_fallback(opt), 'fb')
    out += k2f.rest(opt) + fb
    if opt.get('touch', 1): out = add_touch(out, 'K1', opt)
    return out

def kdesc(name, vgpr, sgpr, accum):
    return '''.section .rodata,"a"
.p2align 6
.amdhsa_kernel %s
  .amdhsa_next_free_vgpr %d
  .amdhsa_next_free_sgpr %d
  .amdhsa_accum_offset %d
  .amdhsa_group_segment_fixed_size 0
  .amdhsa_kernarg_size 64
  .amdhsa_user_sgpr_count 2
  .amdhsa_user_sgpr_kernarg_segment_ptr 1
  .amdhsa_system_sgpr_workgroup_id_x 1
.end_amdhsa_kernel
''' % (name, vgpr, sgpr, accum)

MACROS = {}
def compact(x):
    t = x.txt
    m = re.fullmatch(r'v_mfma_f32_16x16x32_bf16 ([va])\[(\d+):\d+\], ([va])\[(\d+):\d+\], ([va])\[(\d+):\d+\], (.*)', t)
    if m:
        dc, d, ac, a, bc, b, c = m.groups()
        o = lambda cl, n: '%s[\\%s:\\%s+3]' % (cl, n, n)
        if c == '0': suf, cs, extra = 'Z', '0', ''
        elif c == x.dreg: suf, cs, extra = '', o(dc, 'd'), ''
        else: suf, cs, extra = 'C', o(dc, 'c'), ',' + re.match(r'[va]\[(\d+)', c).group(1)
        nm = 'M' + dc + ac + bc + suf
        MACROS[nm] = '.macro %s d,a,b%s\nv_mfma_f32_16x16x32_bf16 %s, %s, %s, %s\n.endm\n' % (nm, ',c' if extra else '', o(dc, 'd'), o(ac, 'a'), o(bc, 'b'), cs)
        return '%s %s,%s,%s%s' % (nm, d, a, b, extra)
    m = re.fullmatch(r'ds_read_(b64_tr_b16|b128) ([va])\[(\d+):\d+\], v(\d+) offset:(\d+)', t)
    if m:
        k, dc, d, a, off = m.groups()
        nm = ('T' if k != 'b128' else 'R') + dc; w = 1 if k != 'b128' else 3
        MACROS[nm] = '.macro %s d,a,o\nds_read_%s %s[\\d:\\d+%d], v\\a offset:\\o\n.endm\n' % (nm, k, dc, w)
        return '%s %s,%s,%s' % (nm, d, a, off)
    m = re.fullmatch(r'v_exp_f32 v(\d+), v(\d+)', t)
    if m and m.group(1) == m.group(2):
        MACROS['EX'] = '.macro EX d\nv_exp_f32 v\\d, v\\d\n.endm\n'
        return 'EX %s' % m.group(1)
    m = re.fullmatch(r'v_cvt_pk_bf16_f32 v(\d+), v(\d+), v(\d+)', t)
    if m:
        MACROS['CV'] = '.macro CV d,a,b\nv_cvt_pk_bf16_f32 v\\d, v\\a, v\\b\n.endm\n'
        return 'CV %s,%s,%s' % m.groups()
    m = re.fullmatch(r's_waitcnt lgkmcnt\((\d+)\)', t)
    if m:
        MACROS['WL'] = '.macro WL n\ns_waitcnt lgkmcnt(\\n)\n.endm\n'
        return 'WL %s' % m.group(1)
    return t.replace(', ', ',')

def emit(kernels, comp=True):
    s = ''
    for name, grid, lds, seq, vg, acc in kernels:
        s += '; @launch grid=(%d,1,1) block=(256,1,1) lds=%d\n' % (grid, lds)
    s += '.amdgcn_target "amdgcn-amd-amdhsa--gfx950"\n'
    body = ''
    for name, grid, lds, seq, vg, acc in kernels:
        body += '.text\n.globl %s\n.p2align 12\n.p2align 8\n.type %s,@function\n%s:\n' % (name, name, name)
        body += '\n'.join((compact(x) if comp else x.txt) for x in seq) + '\n'
        body += kdesc(name, vg, 102, acc)
    return s + ''.join(MACROS.values()) + body

if __name__ == '__main__':
    opt = {}
    outp = sys.argv[1]
    for a in sys.argv[2:]:
        k, v = a.split('=')
        try: v = int(v)
        except ValueError: v = v.replace('_', ' ')
        opt[k] = v
    ks = []
    if opt.get('fixw'): k2f.WSTEP = 0
    if opt.get('k1', 1): ks.append(('standalone__gqa_block_cached__near_ridge_kernel', 256, 163840, gen_k1(opt), 512, 256))
    txt = emit(ks, opt.get('comp', 1))
    open(outp, 'w').write(txt)
    print(outp, len(txt), 'bytes')
```

```python
from sched import *

TS = 24576
SLOTORD = [3, 5, 0, 1, 2, 4]
OBYTES = 23592960
WSTEP = 40960
def vr(b, n=4): return 'v[%d:%d]' % (b, b + n - 1)
def ar(b, n=4): return 'a[%d:%d]' % (b, b + n - 1)
def haddr(h): return SLOTORD[h // 3] * TS + (h % 3) * 2048
def hreg(m, h):
    s = SLOTORD[h // 3]
    return (s * TS, (s + 1) * TS, False, ('WO', m), 100 + h)

def inner(opt, ri, ci, tmp):
    C = 5 if opt.get('kmap', 1) else 10
    return '''s_lshr_b32 %(ci)s, s2, 3
s_mul_i32 %(ri)s, %(ci)s, %(m)d
s_lshr_b32 %(ri)s, %(ri)s, 8
s_mul_i32 %(t)s, %(ri)s, %(C)d
s_sub_u32 %(ci)s, %(ci)s, %(t)s''' % dict(ri=ri, ci=ci, t=tmp, C=C, m=260 // C)

def outer(opt, rb, cb, tmp):
    if opt.get('kmap', 1):
        t = '''s_and_b32 %(t)s, s2, 1
s_mul_i32 %(t)s, %(t)s, 5
s_add_u32 %(cb)s, %(cb)s, %(t)s
s_and_b32 %(t)s, s2, 6
'''
    else: t = 's_and_b32 %(t)s, s2, 7\n'
    return (t + 's_mul_i32 %(t)s, %(t)s, 3\ns_add_u32 %(rb)s, %(rb)s, %(t)s') % dict(rb=rb, cb=cb, t=tmp)

def rotation(opt, ri, ci, tmp='s13'):
    km = opt.get('kmap', 1)
    W = opt.get('win', 12); ra = opt.get('ra', 2 if km else 4); rc = opt.get('rc', 5 if km else 1)
    n = (ra * (6 if km else 3) + rc * (4 if km else 9)) // W
    t = ''
    if opt.get('wv'):
        t = ('s_add_u32 %(t)s, %(t)s, s40\ns_sub_u32 %(u)s, %(t)s, 5\ns_min_u32 %(t)s, %(t)s, %(u)s\n'
             's_mul_i32 %(u)s, s40, 3\ns_lshr_b32 %(u)s, %(u)s, 1\ns_add_u32 %(d)s, %(d)s, %(u)s\ns_sub_u32 %(u)s, %(d)s, 6\ns_min_u32 %(d)s, %(d)s, %(u)s\n')
    t += 's_mul_i32 %(d)s, %(d)s, %(ra)d\ns_mul_i32 %(t)s, %(t)s, %(rc)d\ns_add_u32 %(d)s, %(d)s, %(t)s\n'
    t += 's_sub_u32 %(t)s, %(d)s, %(W)d\ns_min_u32 %(d)s, %(d)s, %(t)s\n' * n
    return t.strip() % dict(d=ri, t=ci, u=tmp, ra=ra, rc=rc, W=W)

def tail(opt, W0, stamp, late, early):
    L = []
    a = lambda t: L.extend(I(x) for x in t.strip().split('\n'))
    NR = opt.get('nr', 20); D = opt.get('dep', 4); PQ = opt.get('pq', 4)
    SP = opt.get('sp', 15) / 10.0; PL = opt.get('pl', 4)
    WIN = opt.get('win', 12); wpol = opt.get('k2w', '')
    ACC = 24; OB = ACC + 80; AV = OB + 20 * D; AV += (-AV) % 4
    assert NR <= 16 + (256 - AV) // 16
    def afrag(k, nt, n=4, o=0):
        s = k % NR
        return ar(16 * s + 4 * nt + o, n) if s < 16 else vr(AV + 16 * (s - 16) + 4 * nt + o, n)
    ofrag = lambda k, qt: OB + (k % D) * 20 + qt * 4
    acc = lambda qt, nt: ACC + (qt * 4 + nt) * 4
    W = dict(W0); half = {m: m for m in W0}; T = {}; O = {}
    nm = [len(W0)]; free = []
    def step(reg, k, unit):
        if k + 1 >= 48: return []
        if opt.get('fixo') and reg == 's15': unit = 0
        w = (k + 1) // WIN
        inc = unit + (WIN * unit if (k + 1) % WIN == 0 else 0)
        return [I('s_add_u32 %s, %s, %d' % (reg, reg, inc)), I('s_cmp_eq_u32 %s, %d' % (reg, (w + 1) * WIN * unit)),
                I('s_cselect_b32 %s, %d, %s' % (reg, w * WIN * unit, reg))]
    def dma():
        m = nm[0]; nm[0] += 1
        h = free.pop(0); half[m] = h; hh = m & 1
        W[m] = [I('buffer_load_dwordx4 v%d, s[48:51], s14 offen offset:%d%s lds' % (6 + 2 * hh + t, 1024 * t, wpol), lds=hreg(m, h)) for t in range(2)]
        return [I('s_add_u32 m0, s41, %d' % haddr(h))], W[m], (step('s14', m // 2, WSTEP) if hh else [])
    def tr(k):
        T[k] = []
        for nt in range(4):
            for hh in range(2):
                h = half[2 * k + hh]; ad = haddr(h); st = ad // (3 * TS)
                T[k].append(I('ds_read_b64_tr_b16 %s, v%d offset:%d' % (afrag(k, nt, 2, 2 * hh), 12 + 4 * st + nt, ad - st * 3 * TS), lds=hreg(2 * k + hh, h)))
        return T[k]
    def release(k): free.extend([half[2 * k], half[2 * k + 1]])
    def ld_o(k, qt):
        x = I('buffer_load_dwordx4 %s, v%d, s[20:23], s15 offen sc1' % (vr(ofrag(k, qt)), 1 + qt))
        O[k, qt] = x
        return x
    tn = [0]
    def trace():
        if opt.get('trace') and tn[0] < 64:
            a('s_memrealtime s[90:91]\ns_waitcnt lgkmcnt(0)\nv_writelane_b32 v255, s90, %d' % tn[0]); tn[0] += 1
    a('K1_done:')
    if opt.get('ktrace'): a('v_accvgpr_read_b32 v255, a244\ns_nop 1\nv_lshrrev_b32 v255, 6, v255')
    trace()
    L += stamp('j')
    late = [I(t) for t in late]; stores = list(late)
    a('''s_load_dwordx2 s[28:29], s[0:1], 40
v_and_b32 v24, 63, v0
v_lshrrev_b32 v25, 2, v24
v_and_b32 v26, 6, v25
v_bfe_u32 v27, v24, 1, 1
v_xor_b32 v26, v26, v27
v_lshlrev_b32 v26, 4, v26
v_lshl_add_u32 v26, v25, 7, v26
v_and_b32 v27, 1, v24
v_lshl_add_u32 v26, v27, 3, v26
v_add_u32 v12, s41, v26
v_add_u32 v16, %d, v12
v_xor_b32 v17, 32, v16
v_xor_b32 v18, 64, v16
v_xor_b32 v19, 96, v16''' % (3 * TS))
    L += tr(0)
    a('''v_xor_b32 v13, 32, v12
v_xor_b32 v14, 64, v12
v_xor_b32 v15, 96, v12
v_lshrrev_b32 v25, 3, v24
v_and_b32 v26, 6, v25
v_and_b32 v27, 7, v24
v_xor_b32 v26, v26, v27
s_mul_i32 s4, s40, 1536
v_add_u32 v25, s4, v25
v_mul_u32_u24 v25, 1280, v25
v_lshl_add_u32 v6, v26, 4, v25
v_add_u32 v7, 9216, v6
v_add_u32 v8, 20480, v6
v_add_u32 v9, 29696, v6
s_waitcnt lgkmcnt(0)
s_barrier''')
    free.extend(h for h in range(len(W0), 18))
    setup = ('''s_mul_i32 s4, s40, 49152
v_lshl_add_u32 v1, v24, 4, s4
v_add_u32 v2, 196608, v1
v_add_u32 v3, 393216, v1
v_add_u32 v4, 589824, v1
v_add_u32 v5, 786432, v1
s_lshl_b32 s4, s46, 7
s_lshl_b32 s5, s47, 2
s_add_u32 s4, s4, s5
v_mov_b32 v20, s4
v_mov_b32 v21, s45
''' + inner(opt, 's46', 's47', 's4') + '\n' + outer(opt, 's46', 's47', 's4') + '''
s_mul_i32 s4, s46, 983040
s_sub_u32 s22, %d, s4
s_add_u32 s20, s18, s4
s_addc_u32 s21, s19, 0
s_lshl_b32 s5, s47, 7
s_mul_i32 s6, s46, 102400
s_add_u32 s6, s6, s5
s_sub_u32 s30, 2457600, s6
s_add_u32 s28, s28, s6
s_addc_u32 s29, s29, 0
s_mul_i32 s4, s46, 43
s_and_b32 s4, s4, 0x380
s_lshl_b32 s5, s40, 5
s_add_u32 s4, s4, s5
v_and_b32 v22, 7, v24
v_lshl_add_u32 v22, v22, 2, s4
s_mov_b32 s7, %d''' % (OBYTES, opt.get('spin', 40000)))
    mfirst = nm[0]; pub = [None if late else nm[0] + PL]; poll = None
    def publish():
        L.append(WAIT(late or early) if opt.get('cnt') else I('s_waitcnt vmcnt(0)'))
        a('''s_barrier
s_cmp_lg_u32 s40, 0
s_cbranch_scc1 K2_pub
s_mov_b64 exec, 1
; flagstore
s_mov_b64 exec, -1
K2_pub:
s_cmp_ge_u32 s2, 240
s_cbranch_scc1 K2_rest''')
        L.extend(stamp('p'))
    KC = opt.get('kc', NR + 1); first = []
    def check():
        L.append(WAIT([poll]))
        L.extend(stamp('e'))
        a('; spin')
        L.extend(stamp('f'))
        for k in range(D): first.extend([[ld_o(k, qt)] + (step('s15', k, 1024) if qt == 4 else []) for qt in range(5)])
    for k in range(1, NR + 1):
        if k == KC: check(); per = -(-len(first) // (2 * (NR + 1 - KC)))
        if k < NR: L += ([WAIT(W[2 * k] + W[2 * k + 1])] if k >= 6 else []) + tr(k)
        if k == 2: a(setup)
        if k == opt.get('t2', 5): a('; touch2')
        L.append(WAIT(T[k - 1])); release(k - 1)
        trace()
        while free:
            if pub[0] == nm[0]: publish()
            if 2 * (NR + 9) - nm[0] == PQ:
                assert pub[0] is not None and pub[0] <= nm[0]
                poll = I('buffer_load_dword v23, v22, s[52:55], 0 offen sc1'); L.append(poll)
            p, w, q = dma()
            L += p
            while stores and len(late) - len(stores) < (nm[0] - mfirst) / SP:
                L.append(stores.pop(0))
                if not stores: pub[0] = nm[0] + PL
            L += w + q
            for _ in range(min(len(first), per if k >= KC else 0)): L += first.pop(0)
    assert nm[0] == 2 * (NR + 9)
    if KC > NR: check()
    for x in first: L += x
    issued = {m: -100 for m in W}
    m0 = nm[0]; rho = opt.get('rho', 0) / 10.0 or max((96 - m0) / (42.0 - D), 0.1)
    jn = NR; last_tr = None
    for k in range(48):
        if k % 2 == 0: trace()
        cover = [O[k, 0]]
        if last_tr is not None: cover += T[last_tr]; release(last_tr); last_tr = None
        trs = []
        if jn < 48 and jn - k <= NR - 1 and 2 * jn + 1 in issued and issued[2 * jn + 1] <= k - D - 1:
            cover += W[2 * jn] + W[2 * jn + 1]
            trs = list(tr(jn)); last_tr = jn; jn += 1
        assert jn > k + 1 or jn == 48, (k, jn)
        ds = []
        while free and nm[0] < 96 and nm[0] - m0 < (k - 1) * rho and len(ds) < 4:
            issued[nm[0]] = k
            p, w, q = dma(); ds += [p + [w[0]], [w[1]] + q]
        for qt in range(5):
            L.append(WAIT(cover if qt == 0 else [O[k, qt]]))
            for nt in range(4):
                d = vr(acc(qt, nt))
                L.append(I('v_mfma_f32_16x16x32_bf16 %s, %s, %s, %s' % (d, afrag(k, nt), vr(ofrag(k, qt)), d if k else '0')))
                if nt == 0 and ds: L += ds.pop(0)
                if nt in (1, 2) and trs: L.append(trs.pop(0))
                if nt == 3 and k + D < 48: L.append(ld_o(k + D, qt))
        assert not ds and not trs
        if k + D < 48: L += step('s15', k + D, 1024)
        if k == 40:
            a('''v_lshlrev_b32 v31, 4, v30
v_add_u32 v10, s41, v31
v_add_u32 v11, %d, v10
s_mul_i32 s4, s40, %d
v_add_u32 v20, s4, v31
v_and_b32 v31, 15, v30
v_mul_u32_u24 v31, 1280, v31
v_lshrrev_b32 v21, 4, v30
v_lshl_add_u32 v31, v21, 3, v31
s_lshl_b32 s4, s40, 5
v_add_u32 v21, s4, v31'''.replace('v31', 'v23').replace('v30', 'v22').replace('v_lshlrev_b32 v23, 4, v22', 'v_and_b32 v22, 63, v0\nv_lshlrev_b32 v23, 4, v22') % (2 * TS, TS))
    assert nm[0] == 96 and jn == 48
    L += stamp('m')
    trace()
    wr = [I('ds_write_b128 v%d, %s offset:%d' % (10 + (nt >> 1), vr(acc(qt, nt)), (nt & 1) * TS + qt * 1024)) for qt in range(5) for nt in range(4)]
    L += wr
    L.append(WAIT(wr)); a('s_barrier')
    rd = {(qt, p): I('ds_read_b128 %s, v20 offset:%d' % (vr(OB + qt * 16 + p * 4), p * 6144 + qt * 1024)) for qt in range(5) for p in range(4)}
    for qt in range(3): L += [rd[qt, p] for p in range(4)]
    for qt in range(5):
        b = OB + qt * 16
        L.append(WAIT([rd[qt, p] for p in range(4)]))
        if qt + 3 < 5: L += [rd[qt + 3, p] for p in range(4)]
        for r in range(4): a('v_add_f32 v%d, v%d, v%d\nv_add_f32 v%d, v%d, v%d' % (b + r, b + r, b + 4 + r, b + 8 + r, b + 8 + r, b + 12 + r))
        for r in range(4): a('v_add_f32 v%d, v%d, v%d' % (b + r, b + r, b + 8 + r))
        for h in range(2): a('v_cvt_pk_bf16_f32 v%d, v%d, v%d' % (b + h, b + 2 * h, b + 2 * h + 1))
        a('s_mov_b32 s4, %d' % (qt * 20480))
        a('buffer_store_dwordx2 %s, v21, s[28:31], s4 offen' % vr(b, 2))
    trace()
    a('K2_end:')
    return L

def patch(seq):
    out = []
    for x in seq:
        if x.txt == '; flagstore': out.append(I('buffer_store_dword v21, v20, s[52:55], 0 offen sc1'))
        elif x.txt == '; spin':
            out += [I(t) for t in '''K2_chk:
v_cmp_ne_u32 s[100:101], s45, v23
s_nop 0
s_cmp_eq_u64 s[100:101], 0
s_cbranch_scc1 K2_go
s_sub_u32 s7, s7, 1
s_cbranch_scc1 K2_go
buffer_load_dword v23, v22, s[52:55], 0 offen sc1
s_waitcnt vmcnt(0)
s_branch K2_chk
K2_go:'''.split('\n')]
        else: out.append(x)
    return out

def rest(opt):
    return [I(t) for t in '''K2_rest:
s_waitcnt vmcnt(0)
s_cmp_lg_u32 s2, 240
s_cbranch_scc1 K2_end
s_cmp_lg_u32 s40, 0
s_cbranch_scc1 K2_end
v_lshlrev_b32 v22, 4, v0
K2_all:
buffer_load_dwordx4 v[24:27], v22, s[52:55], 0 offen sc1
s_waitcnt vmcnt(0)
v_xor_b32 v24, s45, v24
v_xor_b32 v25, s45, v25
v_xor_b32 v26, s45, v26
v_xor_b32 v27, s45, v27
v_or_b32 v24, v24, v25
v_or3_b32 v24, v24, v26, v27
v_cmp_ne_u32 s[100:101], 0, v24
s_nop 0
s_cmp_eq_u64 s[100:101], 0
s_cbranch_scc1 K2_ret
s_sub_u32 s7, s7, 1
s_cbranch_scc0 K2_all
K2_ret:
s_mov_b64 exec, 1
buffer_store_dword v21, v22, s[52:55], 0 offen offset:1024 sc1
s_mov_b64 exec, -1
s_branch K2_end'''.split('\n')]
```

```python
from sched import *
from k2f import TS, SLOTORD, OBYTES, WSTEP, vr, ar, haddr, inner

IBOFF = OBYTES + 4096
IBSIZE = 256 * 131072
def sreg(st, tag):
    s = SLOTORD[st % 6]
    return (s * TS, (s + 1) * TS, True, tag, None)
def hreg(m): return sreg(m // 3, ('WO', m // 3))
def wrap(reg, step, n):
    return ['s_add_u32 s10, %s, %d' % (reg, step), 's_sub_u32 s11, s10, %d' % (n * step), 's_min_u32 %s, s10, s11' % reg]

def rotation(opt):
    return (inner(opt, 's15', 's12', 's13') + '''
s_mul_i32 s15, s15, %d
s_mul_i32 s12, s12, %d
s_add_u32 s15, s15, s12
s_and_b32 s15, s15, 15
s_mul_i32 s12, s15, 3
s_add_u32 s12, s12, 16
s_sub_u32 s13, s12, 48
s_min_u32 s12, s12, s13
s_mul_i32 s14, s12, %d''' % (opt.get('ra', 3), opt.get('rc', 3), WSTEP)).split('\n')

def wo_addr(d, lane, wave, t):
    return '''s_bfe_u32 s4, s2, 0x20001
s_mul_i32 s4, s4, 1536
v_lshrrev_b32 v%(a)d, 3, v%(l)d
v_and_b32 v%(b)d, 6, v%(a)d
v_and_b32 v%(c)d, 7, v%(l)d
v_xor_b32 v%(b)d, v%(b)d, v%(c)d
v_and_b32 v%(c)d, 1, v%(w)d
v_lshl_add_u32 v%(a)d, v%(c)d, 4, v%(a)d
v_add_u32 v%(a)d, s4, v%(a)d
v_mul_u32_u24 v%(a)d, 1280, v%(a)d
v_lshl_add_u32 v%(a)d, v%(b)d, 4, v%(a)d
v_lshrrev_b32 v%(c)d, 1, v%(w)d
v_lshl_add_u32 v%(d)d, v%(c)d, 7, v%(a)d
v_add_u32 v%(e)d, 9216, v%(d)d''' % dict(d=d, e=d + 1, l=lane, w=wave, a=t, b=t + 1, c=t + 2)

def tail(opt, W0, stamp, late, early):
    L = []
    a = lambda t: L.extend(I(x) for x in t.strip().split('\n'))
    GP = opt.get('gp', 5); GQ = opt.get('gq', 9); KC = opt.get('kc', 11); LD = opt.get('ld', 4); SP = opt.get('sp', 10) / 10.0
    FD = opt.get('fd', 15); FL = opt.get('fl', 12); GA = opt.get('ga', 106); GB = opt.get('gb', 116)
    wpol = opt.get('k2w', '')
    SH = 15 if opt.get('tg') else 14
    global XO
    XO = opt.get('xo', 0)
    ACC = 24; KEEP = 56; RG = 60; AV = 124
    SQ = ['s8', 's9', 's12', 's13']
    def afrag(s, n, w=4, o=0): return vr(AV + 8 * s + 4 * n + o, w) if s < 16 else ar(8 * (s - 16) + 4 * n + o, w)
    def acc(p, t): return KEEP if (p, t) == (0, 0) else ACC + 16 * (p & 1) + 4 * t
    def inb(p, t): return AV + ((p - 1) * 5 + t) * 4
    W = {g: sum((W0[m] for m in range(3 * g, 3 * g + 3)), []) for g in range(5)}; T = {}; O = {}
    def dma_w(g):
        W[g] = []; out = []
        for m in range(3 * g, 3 * g + 3):
            x = [I('buffer_load_dwordx4 v%d, s[48:51], s14 offen offset:%d%s lds' % (6 + t, 1024 * t, wpol), lds=hreg(m)) for t in range(2)]
            W[g] += x
            out += [[I('s_add_u32 m0, s41, %d' % haddr(m % 18)), x[0]], [x[1]] + ([I(t) for t in wrap('s14', WSTEP, 48)] if m < 47 else [])]
        return out
    def tr(g):
        T[g] = []
        for m in range(3 * g, 3 * g + 3):
            ad = haddr(m % 18); st = ad // (3 * TS)
            for n in range(2):
                for hh in range(2):
                    T[g].append(I('ds_read_b64_tr_b16 %s, v%d offset:%d' % (afrag((m + 16) % 48, n, 2, 2 * hh), 12 + 2 * st + n, ad - st * 3 * TS + hh * 6144), lds=hreg(m)))
        return T[g]
    def dma_o(c, split=False):
        p, q = c // 4, c % 4; so = SLOTORD[(c + 4) % 6] * TS
        O[c] = []; out = []
        for e in range(2):
            for i in range(3):
                x = I('buffer_load_dwordx4 v%d, s[20:23], s43 offen offset:%d sc1 lds' % (1 + e, 1024 * i), lds=sreg(c + 4, ('O', c)))
                O[c].append(x); pre = []
                if (e, i) == (0, 0):
                    if q == 0: pre += ['s_mov_b32 s16, %d' % (4 * 393216)] if p == 0 else ['s_xor_b32 s16, s44, %d' % (p & 3), 's_mul_i32 s16, s16, 393216']
                    pre += ['s_add_u32 s43, s16, %s' % SQ[q]]
                if i == 0: pre += ['s_add_u32 m0, s41, %d' % (so + e * 3072)]
                if split and pre: out.append([I(t) for t in pre]); pre = []
                out.append([I(t) for t in pre] + [x])
        return out
    def reads(G):
        c = G // 6; sl = SLOTORD[(c + 4) % 6]; out = []
        for u in range(2):
            j = 2 * (G % 6) + u
            for e in range(2):
                out.append(I('ds_read_b128 %s, v%d offset:%d' % (vr(RG + (G % 4) * 16 + (2 * u + e) * 4), 3 + sl // 2, (sl & 1) * TS + (j // 3) * 6144 + e * 3072 + (j % 3) * 1024), lds=sreg(c + 4, ('O', c))))
        return out
    tn = [0]
    def trace():
        if opt.get('trace') and tn[0] < 64:
            a('s_memrealtime s[90:91]\ns_waitcnt lgkmcnt(0)\nv_writelane_b32 v255, s90, %d' % tn[0]); tn[0] += 1
    a('K1_done:')
    if opt.get('ktrace'): a('v_accvgpr_read_b32 v255, a244\ns_nop 1\nv_lshrrev_b32 v255, 6, v255')
    trace()
    L += stamp('j')
    late = [I(t) for t in late]; stores = list(late)
    for _ in range(min(opt.get('s0', 4), len(stores))): L.append(stores.pop(0))
    a('''s_load_dwordx2 s[28:29], s[0:1], 40
s_bfe_u32 s44, s2, 0x20001
s_lshr_b32 s4, s40, 1
s_mul_i32 s4, s4, 12288
s_lshl_b32 s5, s40, 1
s_xor_b32 s5, s5, s44
s_and_b32 s6, s44, 2
s_xor_b32 s5, s5, s6
s_and_b32 s5, s5, 3
s_lshl_b32 s5, s5, 5
v_and_b32 v24, 63, v0
v_lshrrev_b32 v25, 2, v24
v_and_b32 v26, 6, v25
v_bfe_u32 v27, v24, 1, 1
v_xor_b32 v26, v26, v27
v_lshlrev_b32 v26, 4, v26
v_lshl_add_u32 v26, v25, 7, v26
v_and_b32 v27, 1, v24
v_lshl_add_u32 v26, v27, 3, v26
v_xor_b32 v26, s5, v26
v_add_u32 v12, s4, v26
v_xor_b32 v13, 32, v12
v_add_u32 v14, %d, v12
v_add_u32 v15, %d, v13
v_lshrrev_b32 v28, 6, v0''' % (3 * TS, 3 * TS))
    a(wo_addr(6, 24, 28, 25))
    a('s_waitcnt lgkmcnt(0)')
    setup = ('''s_lshl_b32 s4, s46, 7
s_lshl_b32 s5, s47, 2
s_add_u32 s4, s4, s5
v_mov_b32 v20, s4
v_mov_b32 v21, s45
''' + inner(opt, 's46', 's47', 's4') + '''
s_and_b32 s4, s2, 1
s_mul_i32 s4, s4, 6
s_add_u32 s46, s46, s4
s_mul_i32 s4, s46, 1966080
s_mul_i32 s5, s44, 49152
s_add_u32 s4, s4, s5
s_sub_u32 s22, %(ob)d, s4
s_add_u32 s20, s18, s4
s_addc_u32 s21, s19, 0
s_lshl_b32 s5, s47, 8
s_mul_i32 s6, s46, 204800
s_add_u32 s6, s6, s5
s_sub_u32 s30, 2457600, s6
s_add_u32 s28, s28, s6
s_addc_u32 s29, s29, 0
s_add_u32 s24, s18, %(ib)d
s_addc_u32 s25, s19, 0
s_mov_b32 s26, %(ibs)d
s_lshr_b32 s4, s44, 1
s_mul_i32 s4, s4, 196608
s_sub_u32 s5, 196608, s4
v_lshlrev_b32 v3, 4, v24
v_add_u32 v1, s4, v3
v_add_u32 v2, s5, v3
v_add_u32 v4, %(t2)d, v3
v_add_u32 v5, %(t4)d, v3
s_lshl_b32 s4, s46, 1
v_bfe_u32 v22, v24, 3, 1
v_add_u32 v22, s4, v22
v_mul_u32_u24 v22, 43, v22
v_and_b32 v22, 0x380, v22
v_and_b32 v25, 7, v24
v_lshl_add_u32 v22, v25, 2, v22
s_lshl_b32 s4, s44, 5
v_add_u32 v22, s4, v22
s_mov_b32 s7, %(spin)d''' % dict(ob=OBYTES, ib=IBOFF, ibs=1024 << SH, t2=2 * TS, t4=4 * TS, spin=opt.get('spin', 40000)))
    setup2 = '''s_add_u32 s4, s15, s40
''' + ''.join('s_add_u32 s5, s4, %d\ns_and_b32 s5, s5, 15\ns_mul_i32 %s, s5, 3072\n' % (4 * q, SQ[q]) for q in range(4)) + '''s_lshl_b32 s4, s40, ''' + str(SH) + '''
s_lshl_b32 s42, s2, ''' + str(SH + 2) + '''
v_add_u32 v8, s4, v3
s_add_u32 s4, s4, 15360
v_mov_b32 v19, s4
v_and_b32 v25, ''' + ('3, v24\nv_min_u32 v25, 2, v25' if opt.get('mg') or opt.get('tg') else '1, v24') + '''
v_lshl_add_u32 v9, v25, 7, v19
v_min_u32 v25, 1, v24
v_lshl_add_u32 v17, v25, 30, v19'''
    poll = None; nc = 0; nd = 0
    def check():
        L.append(WAIT([poll]))
        L.extend(stamp('e'))
        a('; spin K2 v23 v22 s[52:55] 0 0')
        L.extend(stamp('f'))
    for g in range(16):
        cov = (W[g] if g >= 4 else [])
        if g == GP:
            assert not stores
            cov = cov + (late or early)
        if cov: L.append(WAIT(cov))
        a('s_barrier')
        if g == GP:
            a('''s_cmp_lg_u32 s40, 0
s_cbranch_scc1 K2_pub
s_mov_b64 exec, 1
; flagstore
s_mov_b64 exec, -1
K2_pub:
s_cmp_ge_u32 s2, 240
s_cbranch_scc1 K2_rest''')
            L.extend(stamp('p'))
        if g == GQ:
            assert GQ >= GP
            poll = I('buffer_load_dword v23, v22, s[52:55], 0 offen sc1'); L.append(poll)
        if g >= 10: assert not stores
        L += tr(g)
        if g == 0: a(setup)
        if g == 1: a(setup2)
        if g + 5 < 16:
            for x in dma_w(g + 5):
                nd += 1
                while stores and len(late) - len(stores) < opt.get('s0', 4) + nd / SP: L.append(stores.pop(0))
                L += x
        if g == KC: check()
        while g >= KC and nc <= g - 11 and nc < LD:
            for x in dma_o(nc): L += x
            nc += 1
        if g == opt.get('t3'): a('; touch3')
        L.append(WAIT(T[g]))
        if not opt.get('tg0'): trace()
    if KC > 15:
        check()
        while nc < LD:
            for x in dma_o(nc): L += x
            nc += 1
    R = {}
    a('v_mov_b32 v15, v21')
    a('''v_and_b32 v25, 15, v24
v_mul_u32_u24 v25, 1280, v25
v_lshrrev_b32 v6, 4, v24
v_lshl_add_u32 v25, v6, 3, v25
s_lshl_b32 s4, s40, 6
v_add_u32 v6, s4, v25''')
    L.append(WAIT(O[0])); a('s_barrier')
    for G in range(3): R[G] = reads(G); L += R[G]
    L += stamp('g')
    vq = dma_o(LD, True)
    S = {}; IN = {}; pa = pb = None; adds = []; xq = []; sq = []
    assert 100 <= GA and (GA < GB or opt.get('mg') or opt.get('tg'))
    def ld_in(p):
        IN[p] = [I('buffer_load_dwordx4 %s, v8, s[24:27], s%d offen offset:%d sc1' % (vr(inb(p, t)), 4 + t // 4, 1024 * (t & 3))) for t in range(5)]
        return [[I('s_add_u32 s4, s42, %d' % ((p - 1) * 5120)), I('s_add_u32 s5, s4, 4096'), IN[p][0]]] + [[x] for x in IN[p][1:]]
    def dest(p, off): return [I('s_xor_b32 s17, s42, %d' % (p << SH + 3))] + ([I('s_add_u32 s17, s17, %d' % off)] if off else [])
    GC = opt.get('gc', 114)
    assert GB < GC or opt.get('tg')
    MG = opt.get('mg'); TG = opt.get('tg')
    add12 = ['v_add_f32 v%d, v%d, v%d' % (inb(1, 0) + r, inb(1, 0) + r, inb(2, 0) + r) for r in range(20)]
    add12 += ['v_add_f32 v%d, v%d, v%d' % (inb(1, 4) + r, inb(1, 4) + r, KEEP + r) for r in range(4)]
    if TG: add12 += ['v_add_f32 v%d, v%d, v%d' % (inb(1, 4) + r, inb(1, 4) + r, inb(3, 4) + r) for r in range(4)]
    def chk(nm): return [[I('v_cmp_ne_u32 s[100:101], s45, v16')], [I('s_cmp_eq_u64 s[100:101], 0'), I('s_cbranch_scc0 %s_slow' % nm), I('%s_go:' % nm)]]
    for G in range(120):
        c = G // 6; p = c // 4
        if G % opt.get('tgs', 6) == 0 and G >= opt.get('tg0', 0): trace()
        cov = list(R[G])
        if G % 6 == 3 and c + 1 < 20: cov += O[c + 1]
        for pp in (1, 2, 3):
            if TG and pp == 3:
                if G == 24 + FD:
                    cov += S[0]
                    xq.insert(0, dest(pp, 0) + [I('buffer_store_dword v21, v17, s[24:27], s17 offen offset:%d sc1' % (128 * (pp - 1)))])
            elif G == 24 * (pp + 1) + (FD if pp < 3 else FL):
                cov += S[pp]
                xq.insert(0, dest(pp, 0) + [I('buffer_store_dword v21, v17, s[24:27], s17 offen offset:%d sc1' % (128 * (pp - 1)))])
        if G == GA: cov.append(pa); xq += chk('KA'); sq += ld_in(1) + ld_in(2) + (ld_in(3) + [[I('KB_go:')]] if MG else [])
        if G == GA and TG:
            IN[2].append(I('buffer_load_dwordx4 %s, v8, s[24:27], s5 offen sc1' % vr(inb(3, 4))))
            sq.append([I('s_add_u32 s5, s42, %d' % (2 * 5120 + 4096)), IN[2][-1]])
        if G == GC and TG:
            IN[3] = [I(t) for t in LDT]
            xq += [[I('s_add_u32 s61, s42, %d' % (2 * 5120)), I('s_add_u32 s62, s42, 16384')]] + [[x] for x in IN[3]]
        elif G == GC and not MG: cov.append(pb); xq += chk('KB') + ld_in(3)
        if G == GA + opt.get('gd', 8): cov += IN[1] + IN[2]; adds += add12
        if G == 107:
            adds += ['s_lshr_b32 s8, s44, 1', 's_and_b32 s9, s44, 1', 's_lshl_b32 s9, s9, 5', 's_mul_i32 s12, s44, 40960', 's_mul_i32 s8, s8, 20480', 's_add_u32 s60, s8, s9']
            for t in range(4): adds += ['s_xor_b32 s10, s8, %d' % (20480 * (t >> 1)), 's_xor_b32 s11, s9, %d' % (32 * (t & 1)), 's_add_u32 s10, s10, s11', 's_add_u32 s%d, s10, s12' % (56 + t)]
            adds += ['s_add_u32 s60, s60, %d' % (8 * 20480), 's_nop 0']
        L.append(WAIT(cov))
        if G % 6 == 3 and c + 1 < 20:
            a('s_barrier')
            if c + 1 + LD < 20: assert not vq; vq = dma_o(c + 1 + LD, True)
        if G % 24 == 0 and G:
            pp = p - 1
            if pp == 0:
                S[0] = [I('buffer_store_dwordx4 %s, v8, s[24:27], s17 offen sc1' % vr(acc(0, t))) for t in (1, 2, 3)]
                sq += [dest(t, (t - 1) * 5120 + 4096) + [S[0][t - 1]] for t in (1, 2, 3)]
            elif pp == 3 and TG:
                mv = lambda t: [I('v_mov_b32 v%d, v%d' % ((12, 13, 14, 20)[t ^ 3], acc(3, t) + 3)), I('v_mov_b32 v%d, v21' % (acc(3, t) + 3))]
                st = lambda t: I('buffer_store_dwordx4 %s, v8, s[24:27], s17 offen offset:%d sc1' % (vr(acc(3, t)), 1024 * (t ^ 3)))
                xq += [mv(0) + dest(3, 2 * 5120), mv(1)]
                sq += [[st(0)] + mv(2), [st(1)] + mv(3), [st(2)], [st(3)] + dest(3, 16384)]
                sq += [[I('buffer_store_dwordx4 %s, v8, s[24:27], s17 offen offset:%d sc1' % (vr(b), o))] for b, o in ((12, 0), (20, 1024))]
            else:
                S[pp] = [I('buffer_store_dwordx4 %s, v8, s[24:27], s17 offen offset:%d sc1' % (vr(acc(pp, t)), 1024 * (t ^ pp))) for t in range(4)]
                sq += [dest(pp, (pp - 1) * 5120) + [S[pp][0]]] + [[x] for x in S[pp][1:]]
        if G == GA - opt.get('gl', 6): pa = I('buffer_load_dword v16, v9, s[24:27], s42 offen sc1'); xq.append([pa])
        if G == GB and not MG and not TG: pb = I('buffer_load_dword v16, v19, s[24:27], s42 offen offset:256 sc1'); xq.insert(0, [pb])
        if G + 3 < 120: R[G + 3] = reads(G + 3)
        rq = list(R.get(G + 3, []))
        for _ in range(opt.get('sr', 1) if G < 96 else opt.get('sr4', 2) if G < GA else opt.get('sr5', 2)):
            if sq: xq.append(sq.pop(0))
        for _ in range(2 if G < 3 else opt.get('vr', 1)):
            if vq and vq[0][0].kind == 'salu': xq.append(vq.pop(0))
            if vq: xq.append(vq.pop(0))
        s0 = 12 * (c % 4) + 2 * (G % 6); k = 0
        for t in range(4):
            e, n = t >> 1, t & 1; d = vr(acc(p, t))
            for u in range(2):
                L.append(I('v_mfma_f32_16x16x32_bf16 %s, %s, %s, %s' % (d, afrag(s0 + u, n), vr(RG + (G % 4) * 16 + (2 * u + e) * 4), d if s0 + u else '0')))
                if k % 2 == 0 and rq: L.append(rq.pop(0))
                elif xq: L += xq.pop(0)
                elif adds: L += [I(adds.pop(0)), I(adds.pop(0))]
                k += 1
    if GC >= 120 and not MG: L.append(WAIT([pb])); xq += chk('KB') + ld_in(3)
    for x in xq + sq: L += x
    if GA + opt.get('gd', 8) >= 120: L.append(WAIT(IN[1] + IN[2])); adds += add12
    L += [I(t) for t in adds]
    assert not vq
    L += stamp('m')
    trace()
    for t in range(4):
        for r in range(4): a('v_add_f32 v%d, v%d, v%d' % (inb(1, t) + r, inb(1, t) + r, acc(4, t) + r))
    if TG: L.append(WAIT(IN[3])); a(CHT + '\ns_cbranch_scc0 KB_slow\nKB_go:')
    for t in ((4, 0, 1, 2, 3) if TG else range(5)):
        b = inb(1, t)
        if not TG: L.append(WAIT([IN[3][t]]))
        for r in range(4):
            if not TG or t < 4: a('v_add_f32 v%d, v%d, v%d' % (b + r, b + r, inb(3, 5) + (t if t < 3 else 4) if TG and r == 3 else inb(3, t) + r))
        for h in range(2): a('v_cvt_pk_bf16_f32 v%d, v%d, v%d' % (b + h, b + 2 * h, b + 2 * h + 1))
        a('buffer_store_dwordx2 %s, v6, s[28:31], s%d offen' % (vr(b, 2), 56 + t))
    trace()
    a('K2_end:')
    return L

I3 = 124 + 40
LDT = ['buffer_load_dwordx4 %s, v8, s[24:27], s61 offen offset:%d sc1' % (vr(I3 + 4 * t), 1024 * t) for t in range(4)]
LDT += ['buffer_load_dwordx4 %s, v8, s[24:27], s62 offen offset:%d sc1' % (vr(I3 + 20 + 4 * t), 1024 * t) for t in range(2)]
CHT = '\n'.join('v_%s3_u32 v%d, v%d, v%d, v%d' % (m, d, x, y, z) for m, d in (('min', 10), ('max', 11))
                for x, y, z in ((21, I3 + 3, I3 + 7), (d, I3 + 11, I3 + 15), (d, I3 + 23, I3 + 25))) + '\nv_cmp_ne_u32 s[100:101], v10, v11\ns_nop 0\ns_cmp_eq_u64 s[100:101], 0'
def slow(opt):
    out = []
    if opt.get('tg'):
        out += [I(t) for t in ['KB_slow:', 's_mov_b32 s7, 40000', 'KB_again:'] + LDT + ['s_waitcnt vmcnt(0)'] + CHT.split('\n') +
                ['s_cbranch_scc1 KB_go', 's_sub_u32 s7, s7, 1', 's_cbranch_scc0 KB_again', 's_branch KB_go']]
    for nm, ad, off in (('KA', 'v9', 0), ('KB', 'v19', 256))[:1 if opt.get('tg') else 2]:
        out += [I(t) for t in ('''%(n)s_slow:
s_mov_b32 s7, 40000
%(n)s_again:
buffer_load_dword v16, %(a)s, s[24:27], s42 offen offset:%(f)d sc1
s_waitcnt vmcnt(0)
v_cmp_ne_u32 s[100:101], s45, v16
s_nop 0
s_cmp_eq_u64 s[100:101], 0
s_cbranch_scc1 %(n)s_go
s_sub_u32 s7, s7, 1
s_cbranch_scc0 %(n)s_again
s_branch %(n)s_go''' % dict(n=nm, a=ad, f=off)).split('\n')]
    return out

XO = 0
def patch(seq):
    out = []; main = False
    for x in seq:
        if x.kind == 'mfma': main = True
        if main:
            if XO & 1 and x.txt.startswith('s_add_u32 s43'): x = I('s_mov_b32 s43, 0')
            if XO & 2 and x.txt.endswith(' lds'): continue
            if XO & 4 and x.kind == 'ds': continue
            if XO & 8 and x.kind == 'bar': continue
            if XO & 16 and ('_slow' in x.txt or 's[24:27]' in x.txt): continue
            if XO & 32 and x.txt.endswith('sc1 lds'): x = I(x.txt.replace('sc1 ', ''))
        if x.txt == '; flagstore': out.append(I('buffer_store_dword v21, v20, s[52:55], 0 offen sc1'))
        elif x.txt.startswith('; spin'):
            nm, d, ad, srd, so, off = x.txt.split()[2:]
            out += [I(t) for t in ('''s_mov_b32 s7, 40000
%(n)s_chk:
v_cmp_ne_u32 s[100:101], s45, %(d)s
s_nop 0
s_cmp_eq_u64 s[100:101], 0
s_cbranch_scc1 %(n)s_go
s_sub_u32 s7, s7, 1
s_cbranch_scc1 %(n)s_go
buffer_load_dword %(d)s, %(a)s, %(s)s, %(o)s offen offset:%(f)s sc1
s_waitcnt vmcnt(0)
s_branch %(n)s_chk
%(n)s_go:''' % dict(n=nm, d=d, a=ad, s=srd, o=so, f=off)).split('\n')]
        else: out.append(x)
    return out
```

```python
import sys, math, struct
from sched import *
import k2f, k2g

INF = 10 ** 6
TS = 24576
XB0 = 98304
FLAG = 147456
STAMP_OFF = 0x10000000
def f2u(f): return struct.unpack('<I', struct.pack('<f', f))[0]
def vr(b, n=4): return 'v[%d:%d]' % (b, b + n - 1)
def ar(b, n=4): return 'a[%d:%d]' % (b, b + n - 1)

class Prog:
    def __init__(self, dlat=8):
        self.mf = []; self.jobs = []; self.lastw = {}; self.rds = {}; self.dlat = dlat
        self.pre = []; self.phase = -1; self.occ = {}
    def _conf(self, ins):
        c = []
        for r in ins.rd:
            if r in self.lastw: c.append((self.lastw[r], 'raw', r))
        for r in ins.wr:
            if r in self.lastw: c.append((self.lastw[r], 'waw', r))
            for x in self.rds.get(r, ()): c.append((x, 'war', r))
        return c
    def _rec(self, ins, who):
        for r in ins.rd: self.rds.setdefault(r, []).append(who)
        for r in ins.wr: self.lastw[r] = who; self.rds[r] = []
    def mfma(self, d, a, b, c):
        ins = I('v_mfma_f32_16x16x32_bf16 %s, %s, %s, %s' % (d, a, b, c))
        m = len(self.mf)
        for x, ty, r in self._conf(ins):
            if isinstance(x, Job):
                lim = m - 1
                if ty == 'raw' and x.cls in ('valu', 'trans'): lim = m - 3
                x.hi = min(x.hi, lim); x.hard = min(x.hard, m - 1)
        self.mf.append(ins); self._rec(ins, m)
        return m
    def job(self, ins, lo=0, hi=INF, deps=(), first=False, pre=False, dlat=None, name=None, phase=None, dummy=False, **kw):
        ins = ins if isinstance(ins, I) else I(ins, **kw)
        j = Job(ins, lo, hi, deps, first)
        ph = self.phase if phase is None else phase
        nm = name or ins.txt
        c = self.occ.get((ph, nm), 0); self.occ[ph, nm] = c + 1
        j.key = (ph, nm, c); j.dummy = dummy
        seen = set(id(d) for d, _ in j.deps)
        for x, ty, r in self._conf(ins):
            if isinstance(x, Job):
                if id(x) in seen: continue
                seen.add(id(x))
                dist = 1
                if x.cls == 'valu' and j.cls == 'valu': dist = 0
                if 'permlane' in ins.op and ty == 'raw': dist = 2
                if x.cls == 's' and j.cls == 's': dist = 0
                if ty == 'war' and hasattr(x.ins, 'sdata'): dist = 2
                j.deps.append((x, dist))
            else:
                y = self.mf[x]
                j.lo0 = max(j.lo0, x)
                if ty in ('raw', 'waw'): j.lo = max(j.lo, x + (dlat if dlat is not None else self.dlat))
                elif r in y.cr and j.cls in ('valu', 'trans'): j.lo = max(j.lo, x + 3)
                else: j.lo = max(j.lo, x)
        self._rec(ins, j)
        if pre:
            j.gap = -10; self.pre.append(ins)
        self.jobs.append(j)
        return j
    def n(self): return len(self.mf)

RING = 208; ONES = 240; LACC = 192
def qacc(T, qt): return 64 + ((T >> 1) * 4 + qt) * 8 + 4 * (T & 1)
def qfrag(s, qt): return 64 + (s * 4 + qt) * 8
_lows = [32 + 4 * k for k in range(8)] + [16 + 4 * k for k in range(4)]
_ups = [64 + 8 * k + 4 for k in range(24)]
SBLK = {}; PBLK = {}; NEGM = {}
for kt in range(4):
    for qt in range(4): SBLK[kt, qt] = _lows[kt * 4 + qt] if kt < 2 else _ups[4 + (kt - 2) * 4 + qt]
for qt in range(4): NEGM[qt] = _ups[qt]
_rest = _ups[12:] + _lows[8:]
for i, key in enumerate([(bf, kp, qt) for bf in range(2) for kp in range(2) for qt in range(4)]): PBLK[key] = _rest[i]
def oacc(dt, qt): return dt * 16 + qt * 4
def late_blk(opt, s, qt):
    se = opt.get('se', 2)
    return SBLK[s - se, qt] if s >= se else None
def late_stores(opt):
    return ['buffer_store_dwordx4 %s, v10, s[36:39], s%d offen offset:%d%s' % (vr(late_blk(opt, s, qt)), 56 + 2 * qt + (s >> 2), (s & 3) * 1024, opt.get('opol', ' sc1'))
            for s in range(opt.get('se', 2), 6) for qt in range(4)]

TILES = [('W', n) for n in range(10)] + [('K', 0)]
for j in range(15): TILES += [('K', j + 1), ('V', j)]
TILES += [('V', 15)]
def slot_of(kind, j):
    if kind == 'W': return j % 4
    if kind == 'K': return 2 if j == 0 else (2 * j + 1) % 6
    return (2 * j + 4) % 6
WSTEP = 64 * 12288
LOOPS = [(1, 2, 7, 1), (13, 4, 40, 3)]

def wrap(reg, step, n):
    return ['s_add_u32 s10, %s, %d' % (reg, step), 's_sub_u32 s11, s10, %d' % (n * step), 's_min_u32 %s, s10, s11' % reg]

def k1_build(NQ, opt):
    P = Prog()
    nt = opt.get('kvp', ' nt') if opt.get('nt', 1) else ''
    wpol = opt.get('wpol', '')
    GL = 2 * NQ
    XV = NEGM[3] if opt.get('ls') else 12
    dmas = {}; plan = []
    def dma_group(tag, region, sc, lst, at, spc, deps, dummy=False):
        ins = [I(t, lds=region) for t in lst]
        dmas.setdefault(tag, []).extend(ins)
        if at is None:
            for t in sc: P.job(t, pre=True)
            for x in ins: P.job(x, pre=True)
        else: plan.append((at, len(plan), sc, ins, spc, deps, P.phase, dummy))
    def flush_plan():
        for at, _, sc, ins, spc, deps, ph, dummy in sorted(plan, key=lambda e: e[:2]):
            for t in sc: P.job(t, lo=max(at - 6, 0), phase=ph, dummy=dummy)
            for i, x in enumerate(ins):
                t = int(at + i * spc)
                P.job(x, lo=t, hi=t + 2, deps=deps, phase=ph, dummy=dummy)
        plan.clear()
    def dma_tile(tile, at, spc=0, deps=(), dyn=True):
        kind, j = tile; so = slot_of(kind, j) * TS
        reg = (so, so + TS, True, tile, None)
        for half in range(2):
            if kind == 'W':
                lst = ['buffer_load_dwordx4 v%d, s[24:27], s43 offen offset:%d%s lds' % (22 + t, 1024 * t, wpol) for t in range(3)]
                m0 = 's_add_u32 m0, s12, %d' % ((j & 1) * TS + half * 3072) if dyn else 's_add_u32 m0, s41, %d' % (so + half * 3072)
                Q0 = opt.get('q0', 0)
                sc = [m0, 's_add_u32 s43, s13, %d' % (half * 8 * 12288 + Q0 * WSTEP) if j >= Q0 else 's_mov_b32 s43, %d' % (half * 8 * 12288 + j * WSTEP)]
                if half:
                    if j >= Q0: sc += wrap('s13', WSTEP, 10 - Q0)
                    if dyn and (j & 1): sc += ['s_sub_u32 s12, s15, s12']
            else:
                srd = 's[28:31]' if kind == 'K' else 's[32:35]'
                lst = ['buffer_load_dwordx4 v%d, %s, s43 offen offset:%d%s lds' % (7 + t, srd, 1024 * t, nt) for t in range(3)]
                if dyn:
                    dst, off = ('s16', 's4') if kind == 'K' else ('s17', 's5')
                    sc = ['s_add_u32 m0, %s, %d' % (dst, half * 3072), 's_add_u32 s43, %s, %d' % (off, half * 3072)]
                    if half: sc += ['s_add_u32 %s, %s, %d' % (off, off, TS)]
                else:
                    sc = ['s_add_u32 m0, s41, %d' % (so + half * 3072), 's_mov_b32 s43, %d' % (j * TS + half * 3072)]
            dma_group(tile, reg, sc, lst, None if at is None else int(at + half * 3 * spc), spc, deps, dummy=(j > 15))
    def dma_wo(m, at, spc, deps=()):
        hh = m & 1
        lst = ['buffer_load_dwordx4 v%d, s[48:51], s43 offen offset:%d%s lds' % (XV + 2 + t, 1024 * t, opt.get('k2w', '')) for t in range(2)]
        if opt.get('k2') == 2:
            sc = ['s_add_u32 m0, s41, %d' % k2f.haddr(m), 's_mov_b32 s43, s14'] + wrap('s14', k2f.WSTEP, 48)
            return dma_group(('WO', m), k2g.hreg(m), sc, lst, at, spc, deps)
        sc = ['s_add_u32 m0, s41, %d' % k2f.haddr(m), 's_add_u32 s43, s14, %d' % (hh * 20480)]
        if hh: sc += wrap('s14', k2f.WSTEP, opt.get('win', 12))
        dma_group(('WO', m), k2f.hreg(m, m), sc, lst, at, spc, deps)
    def xreg(n, qt): return (XB0 + (n & 1) * 32768, XB0 + (n & 1) * 32768 + 32768, False, 'X%d_%d' % (n, qt), qt)
    def dma_x(n, qt, at, spc=0, deps=(), last=NQ - 1):
        half = qt >> 1
        lst = ['buffer_load_dwordx4 v%d, s[20:23], s43 offen offset:%d%s lds' % (25 + t, 1024 * t, wpol) for t in (2 * (qt & 1), 2 * (qt & 1) + 1)]
        Q0 = opt.get('q0', 0)
        sc = ['s_add_u32 m0, s42, %d' % ((n & 1) * 32768 + half * 4096), 's_add_u32 s43, s14, %d' % (half * 40960 + Q0 * 128) if n >= Q0 else 's_mov_b32 s43, %d' % (half * 40960 + n * 128)]
        if qt == last and n >= Q0: sc += wrap('s14', 128, 10 - Q0)
        dma_group('X%d_%d' % (n, qt), xreg(n, qt), sc, lst, at, spc, deps)
    def xfrag(n, u, qt): return (n & 1) * 32 + (u * 4 + qt) * 4
    def x_reads(n, qt, lo, hi, deps, pre=False):
        return [P.job(I('ds_read_b128 %s, v%d offset:%d' % (ar(xfrag(n, u, qt)), 20 + u, (n & 1) * 32768 + qt * 2048), lds=xreg(n, qt)), lo=lo, hi=hi, deps=deps, pre=pre) for u in range(2)]
    def reads_txt(n, g):
        kind, j = TILES[n]; so = slot_of(kind, j) * TS; rb = RING + (g % 4) * 8
        reg = (so, so + TS, True, TILES[n], None); out = []
        if kind == 'W':
            s, e = g >> 1, g & 1
            areg = 16 + (s & 1); o = (j & 1) * TS + 128 * (s >> 1) + 8 * e
            for u in range(2):
                for hh in range(2):
                    out.append(I('ds_read_b64_tr_b16 %s, v%d offset:%d' % (ar(rb + 4 * u + 2 * hh, 2), areg, o + 1536 * hh + 12288 * u), lds=reg))
        elif kind == 'K':
            kt, sp = g // 3, g % 3
            for e in range(2):
                out.append(I('ds_read_b128 %s, v%d offset:%d' % (ar(rb + 4 * e), 1 + e, 128 * sp + 6144 * kt), lds=reg))
        else:
            for kp in range(2):
                for hh in range(2):
                    out.append(I('ds_read_b64_tr_b16 %s, v%d offset:%d' % (ar(rb + 4 * kp + 2 * hh, 2), 3 + (g & 3), 128 * (g >> 2) + 6144 * hh + 12288 * kp), lds=reg))
        return out

    start = {}; pos = 0
    for n, (kind, j) in enumerate(TILES):
        start[n] = pos
        if kind == 'V' and not opt.get('ls'): pos += GL
        for g in range(12): start[n, g] = pos; pos += GL
    total = pos; start[42] = pos
    def prev_end(n, g, back):
        k = n * 12 + g - back
        if k < 0: return -1
        return start[k // 12, k % 12] + GL - 1

    def pstamp(k):
        if opt.get('sstamp'):
            for t in ('s_memrealtime s[%d:%d]' % (72 + 4 * k, 73 + 4 * k), 's_memtime s[%d:%d]' % (74 + 4 * k, 75 + 4 * k), 's_waitcnt lgkmcnt(0)'): P.job(t, pre=True)
    pstamp(1)
    for qt in range(4): dma_x(0, qt, None, last=3)
    dma_tile(('W', 0), None, dyn=False)
    EARLY = opt.get('early', 0)
    if EARLY:
        for qt in range(NQ): dma_x(1, qt, None)
        dma_tile(('W', 1), None, dyn=False)
    if EARLY > 1: dma_tile(('W', 2), None, dyn=False)
    for t in opt['mid']: P.job(t, pre=True)
    if opt.get('mw'):
        for t in ('v_lshlrev_b32 v40, 7, v0', 's_lshl_b32 s43, s2, 15', 's_add_u32 s43, s43, s50', 's_sub_u32 s43, s43, 7864320',
                  'buffer_load_dword v41, v40, s[48:51], s43 offen' + opt.get('wmpol', '')): P.job(t, pre=True)
    if opt.get('tlb'):
        n_ = opt['tlb']
        for t in ('v_mul_u32_u24 v40, %d, v29' % n_, 'v_add_u32 v40, v40, v30', 'v_mul_u32_u24 v40, %d, v40' % (393216 // (4 * n_)),
                  'v_subrev_u32 v41, %d, v30' % n_, 'v_not_b32 v41, v41', 'v_and_b32 v41, 0x40000000, v41', 'v_or_b32 v40, v40, v41',
                  'buffer_load_dword v41, v40, s[28:31], 0 offen nt', 'buffer_load_dword v42, v40, s[32:35], 0 offen nt'): P.job(t, pre=True)
    pstamp(2)
    P.job('; touch', pre=True)
    for t in ('s_waitcnt lgkmcnt(0)', 's_mul_i32 s45, s45, 0x9e3779b1', 's_add_u32 s45, s45, 0x7f4a7c15'): P.job(t, pre=True)
    pstamp(3)
    PW1 = opt.get('pw1', 1)
    if not EARLY:
        for qt in range(NQ): dma_x(1, qt, None)
        if PW1: dma_tile(('W', 1), None, dyn=False)
    P.job(WAIT(sum((dmas['X0_%d' % qt] for qt in range(NQ)), [])), pre=True)
    xr = {(0, qt): x_reads(0, qt, 0, 0, [], pre=True) for qt in range(NQ)}
    P.job(WAIT(dmas['W', 0]), pre=True)
    bar = {0: P.job('s_barrier', pre=True)}
    after_bar = {n: [('W', n + 2)] for n in range(1, 8)}
    after_bar[8] = [('K', 0), ('V', 0)]; after_bar[9] = [('K', 1), ('K', 2)]; after_bar[10] = [('V', 1)]; after_bar[11] = [('K', 3)]
    XB = opt.get('xb', 0)
    if XB >= 1: after_bar[8] = [('V', 0)]
    if XB >= 2: after_bar[9] = [('K', 2)]
    KD = opt.get('kd', 0) / 10.0
    first6 = [('K', 0), ('V', 0), ('K', 1), ('K', 2), ('V', 1), ('K', 3)]
    kat = [0]
    def dma_first(t, st, dep):
        at = max(st + 4, kat[0]); kat[0] = at + KD * GL
        dma_tile(t, at, KD * GL / 6.0, [dep], dyn=False)
    for n in range(12, 42):
        kind, j = TILES[n - 1]
        after_bar[n] = [('V', j + 1) if kind == 'K' else ('K', j + 4)]
    after_bar[41] = []
    waitjob = {}
    stamps = opt.get('stamps')
    def stamp(k, at):
        if stamps:
            a = P.job('s_memrealtime s[%d:%d]' % (72 + 4 * k, 73 + 4 * k), lo=at, hi=at); a.cls = 's'
            b = P.job('s_memtime s[%d:%d]' % (74 + 4 * k, 75 + 4 * k), lo=at, hi=at, deps=[(a, 0)]); b.cls = 's'
            P.job('s_waitcnt lgkmcnt(0)', lo=at, hi=at, deps=[(b, 0)])

    def softmax(j, sub_kt=0):
        for kt in range(4):
            for qt in range(NQ):
                sb = SBLK[kt, qt]; pb = PBLK[j & 1, kt >> 1, qt] + 2 * (kt & 1)
                if kt < sub_kt:
                    if opt.get('pk'):
                        for r in (0, 2): P.job('v_pk_add_f32 %s, %s, %s' % (vr(sb + r, 2), vr(sb + r, 2), vr(NEGM[qt], 2)))
                    else:
                        for r in range(4): P.job('v_add_f32 v%d, v%d, v%d' % (sb + r, sb + r, NEGM[qt]))
                for r in range(4): P.job('v_exp_f32 v%d, v%d' % (sb + r, sb + r))
                if opt.get('ls'):
                    for r in range(4): P.job('v_add_f32 v%d, v%d, v%d' % (12 + qt, 12 + qt, sb + r))
                for h in range(2): P.job('v_cvt_pk_bf16_f32 v%d, v%d, v%d' % (pb + h, sb + 2 * h, sb + 2 * h + 1))
    def advance(ring, lo, dummy):
        pos, dst, dl, regs = ('s6', 's16', 's8', (1, 2)) if ring == 'K' else ('s7', 's17', 's9', (3, 4, 5, 6))
        for t in ['s_add_u32 %s, s41, %s' % (dst, pos), 's_add_u32 s10, %s, %d' % (pos, 2 * TS), 's_sub_u32 s11, s10, %d' % (6 * TS),
                  's_min_u32 s10, s10, s11', 's_sub_u32 %s, s10, %s' % (dl, pos), 's_mov_b32 %s, s10' % pos]:
            P.job(t, lo=lo, dummy=dummy)
        for r in regs: P.job('v_add_u32 v%d, %s, v%d' % (r, dl, r), lo=lo, dummy=dummy)
    SUBKT = opt.get('subkt', 3)
    WROWS = 384 if opt.get('kmap', 1) else 192
    tmpblk = []
    for n, (kind, j) in enumerate(TILES):
        P.phase = n
        if kind == 'W' and n > 0 and n % 2 == 0:
            for r in (16, 17): P.job('v_xor_b32 v%d, 0xc000, v%d' % (r, r))
        if n == 11:
            for r in (1, 2): P.job('v_add_u32 v%d, %d, v%d' % (r, TS, r))
        if n == 10:
            for t in k2g.rotation(opt) if opt.get('k2') == 2 else (k2f.inner(opt, 's15', 's12', 's13') + '\n' + k2f.rotation(opt, 's15', 's12')).split('\n') + ['s_mul_i32 s14, s15, %d' % k2f.WSTEP, 's_lshl_b32 s15, s15, 10']:
                P.job(t, lo=start[10], hi=start[10, 8])
        if n == 40:
            if opt.get('ls'):
                for r in range(4): P.job('v_accvgpr_read_b32 v%d, a%d' % (XV + r, 248 + r), lo=start[40] - 2, hi=start[40])
            for m in range(9): dma_wo(m, start[40] + 2 + m * GL, GL / 2.0)
            for e in str(opt.get('lw', '')).split(','):
                if not e: continue
                w_, g_ = [int(z) for z in e.split('@')]
                dma_group('warm', None, ['s_mov_b32 m0, %d' % (FLAG + 1024), 's_mov_b32 s43, %d' % (w_ * WROWS * 1280)],
                          ['buffer_load_dword v11, s[48:51], s43 offen lds'], start[40] + g_ * GL, 1, [])
            flush_plan()
        if n == 41: advance('V', 0, False)
        if kind == 'V':
            for qt in range(NQ):
                for kp in range(0 if opt.get('ls') else 2):
                    P.mfma(ar(LACC + 4 * qt), ar(ONES), vr(PBLK[j & 1, kp, qt]), '0' if (j == 0 and kp == 0) else ar(LACC + 4 * qt))
            if j == 15:
                RL = NEGM[0]
                for qt in range(NQ):
                    if not opt.get('ls'): P.job('v_accvgpr_read_b32 v%d, a%d' % (RL + qt, LACC + 4 * qt), dlat=4); continue
                    t = 12 + qt; u = RL + qt
                    for x in ('v_mov_b32 v%(u)d, v%(t)d', 'v_permlane32_swap_b32 v%(t)d, v%(u)d', 'v_add_f32 v%(t)d, v%(t)d, v%(u)d', 'v_mov_b32 v%(u)d, v%(t)d',
                              'v_permlane16_swap_b32 v%(t)d, v%(u)d', 'v_add_f32 v%(u)d, v%(t)d, v%(u)d'): P.job(x % dict(t=t, u=u))
                for qt in range(1, NQ): P.job('v_add_f32 v11, v%d, v%d' % (RL if qt == 1 else 11, RL + qt))
                for qt in range(NQ): P.job('v_rcp_f32 v%d, v%d' % (RL + qt, RL + qt))
                P.job('s_mov_b32 s100, 0x%08x' % f2u(opt.get('limit', 2.0 ** 30)))
                P.job('v_cmp_nge_f32 s[100:101], s100, v11')
                P.job('s_or_b32 s100, s100, s101')
                P.job('v_mov_b32 v11, s100')
                freg = (FLAG, FLAG + 16, True, 'flag', None)
                fw = P.job(I('ds_write_b32 v%d, v11' % XV, lds=freg), hi=start[n, 4])
                w1 = P.job(WAIT([fw.ins]), lo=start[n, 6] - 1, hi=start[n, 6] - 1, deps=[fw])
                b1 = P.job('s_barrier', lo=start[n, 6] - 1, hi=start[n, 6] - 1, deps=[(w1, 0)])
                F = NEGM[1]
                fr = P.job(I('ds_read_b128 %s, v%d' % (vr(F), XV + 1), lds=freg), deps=[b1], hi=start[n, 7])
                w2 = P.job(WAIT([fr.ins]), lo=start[n, 9], deps=[(fr, 8)])
                P.job('v_or_b32 v%d, v%d, v%d' % (F, F, F + 1), deps=[w2])
                P.job('v_or3_b32 v%d, v%d, v%d, v%d' % (F, F, F + 2, F + 3), deps=[w2])
                P.job('v_readfirstlane_b32 s100, v%d' % F)
                for m in range(12, 15): dma_wo(m, start[n, 6] + 2 + (m - 12) * GL, GL / 2.0, [b1])
                flush_plan()
                tmpblk = [SBLK[a, b] for a in range(4) for b in range(4)][4 * (6 - opt.get('se', 2)):] + [PBLK[0, a, b] for a in range(2) for b in range(4)] + [NEGM[2]] + ([] if opt.get('ls') else [NEGM[3]])
                tt = {}
        for g in range(12):
            k = n * 12 + g
            st = start[n, g]
            pre = k < 3
            deps = [(bar[n], 0)]
            lo = max(prev_end(n, g, 4), 0)
            rj = [P.job(x, lo=lo, hi=lo + GL + 2, deps=deps, pre=pre) for x in reads_txt(n, g)]
            cover = [x.ins for x in rj]
            wd = list(rj)
            xq = g // 2 if (kind == 'W' and g % 2 == 0 and g // 2 < NQ and n + 1 <= 9) else None
            xd = g // 2 - 1 if (kind == 'W' and g % 2 == 0 and 0 <= g // 2 - 1 < NQ and n + 1 <= 9) else None
            if k == 0:
                for qt in range(NQ): cover += [x.ins for x in xr[0, qt]]
            if xd is not None: cover += [x.ins for x in xr[n + 1, xd]]; wd += xr[n + 1, xd]
            if g == 9 and n + 1 < 42: cover += dmas[TILES[n + 1]]
            if xq is not None and k > 0: cover += dmas['X%d_%d' % (n + 1, xq)]
            wj = P.job(WAIT(cover), lo=st - 1, hi=st - 1, deps=wd, first=True, pre=(k == 0), name='W%d' % g)
            waitjob[n, g] = wj
            if g == 0 and 7 <= n < 7 + XB:
                dma_first(('K', n - 7), st, P.job('s_barrier', lo=st, hi=st, deps=[(wj, 0)], name='XB'))
            if g == 1 and 11 <= n <= 40: advance('V' if kind == 'K' else 'K', st, n >= 40)
            if g == 9 and n + 1 < 42:
                bar[n + 1] = P.job('s_barrier', lo=st - 1, hi=st - 1, deps=[(wj, 0)])
                tl = after_bar[n + 1]
                span = opt.get('spw', 5) if n + 1 < 8 else opt.get('sp8', 3 if XB else 11) if n + 1 == 8 else opt.get('sp9', 11) if n + 1 == 9 else opt.get('spa', 11)
                for i, t in enumerate(tl):
                    if KD and t in first6: dma_first(t, st, bar[n + 1]); continue
                    spc = span * GL / (6.0 * len(tl))
                    dma_tile(t, st + 4 + i * 6 * spc + (opt.get('sh', 0) * GL if n >= 11 else 0), spc, [bar[n + 1]], dyn=(n < 7 or n >= 11))
                if opt.get('sw') and 1 <= n <= 6:
                    dma_group('warm', None, ['s_add_u32 s101, s101, 1280'], ['buffer_load_dword v18, v19, s[48:51], s101 offen%s' % opt.get('wmpol', '')], st + 1, 1, [])
                if opt.get('pfk') and 1 <= n <= 6 and n % 2 == opt.get('pfp', 0):
                    dma_group('warm', None, ['s_add_u32 s100, s100, %d' % (opt['pfk'] * 512)], ['buffer_load_dword v18, v31, s[28:31], s100 offen%s' % opt.get('pfpol', '')], st + 2, 1, [])
                if str(n) in str(opt.get('op', '')).split(','):
                    dma_group('warm', None, ['s_add_u32 s101, s101, 2048'], ['buffer_load_dword v18, v19, s[36:39], s101 offen%s' % opt.get('wmpol', '')], st + 1, 1, [])
                if str(n) in str(opt.get('wp', '')).split(','):
                    if n >= 9: dma_group('warm', None, ['s_mov_b32 m0, %d' % (FLAG + 1024), 's_add_u32 s101, s101, %d' % (WROWS * 1280)],
                                         ['buffer_load_dword v11, s[48:51], s101 offen%s lds' % opt.get('wmpol', '')], st + 1, 1, [])
                    else: dma_group('warm', None, ['s_add_u32 s101, s101, %d' % (WROWS * 1280)],
                                    ['buffer_load_dword v18, v11, s[48:51], s101 offen%s' % opt.get('wmpol', '')], st + 1, 1, [])
                if n == 40:
                    for m in range(9, 12): dma_wo(m, st + 2 + (m - 9) * GL, GL / 2.0, [bar[n + 1]])
                if n >= 9: flush_plan()
            if xq is not None:
                wx = wj
                if k == 0: wx = P.job(WAIT(dmas['X1_0']), lo=GL - 3, hi=GL - 3, name='WX')
                xr[n + 1, xq] = x_reads(n + 1, xq, st - 1, st + GL + 2, [(wx, 0)])
            if k == 0:
                sp0 = GL / 2.0; at = 1; P.phase = -5
                if not PW1: sp0 = GL / 3.0; dma_tile(('W', 1), at, sp0, dyn=False); at += 6 * sp0
                for qt in range(NQ): dma_x(2, qt, at, sp0); at += 2 * sp0
                if EARLY < 2: dma_tile(('W', 2), at, sp0, dyn=False); at += 6 * sp0
                x3at = at; P.phase = 0
            if xd is not None and n + 3 <= 9:
                if n == 0:
                    x3at = max(x3at, st + 4); dma_x(3, xd, x3at, 2, [wj]); x3at += 4
                else: dma_x(n + 3, xd, st + 4, GL if xd < 3 else GL // 2, [wj])
            sl = str(opt.get('sl', '0,10,12,41')).split(',')
            if g == 0 and str(n) in sl: stamp(1 + sl.index(str(n)), st)
            if opt.get('ktrace') and g == 0 and n <= 40:
                a_ = P.job('s_memrealtime s[90:91]', lo=st, hi=st); a_.cls = 's'
                b_ = P.job('s_waitcnt lgkmcnt(0)', lo=st, hi=st, deps=[(a_, 0)])
                P.job('s_lshl_b32 s90, s90, 6', lo=st, hi=st + 1, deps=[(b_, 0)])
                P.job('s_or_b32 s90, s90, s98', lo=st, hi=st + 1)
                P.job('v_writelane_b32 v11, s90, s90', lo=st, hi=st + 2)
                P.job('s_add_u32 s98, s98, 1', lo=st, hi=st + 3)
                if n == 40: P.job('v_accvgpr_write_b32 a244, v11')
            rb = RING + (g % 4) * 8
            for qt in range(NQ):
                for e in range(2):
                    A = ar(rb + 4 * e)
                    if kind == 'W':
                        d = vr(qacc(g, qt)); P.mfma(d, A, ar(xfrag(n, e, qt)), '0' if (n == 0 and e == 0) else d)
                    elif kind == 'K':
                        kt, sp = g // 3, g % 3
                        d = vr(SBLK[kt, qt]); c = d
                        if sp == 0 and e == 0: c = '0' if (j == 0 and kt < SUBKT) else vr(NEGM[qt])
                        P.mfma(d, A, vr(qfrag(2 * sp + e, qt)), c)
                    else:
                        d = ar(oacc(g, qt)); P.mfma(d, A, vr(PBLK[j & 1, e, qt]), '0' if (j == 0 and e == 0) else d)
            if n == 9:
                for qt in range(NQ):
                    b = qacc(g, qt)
                    if opt.get('pk'):
                        for r in (0, 2): P.job('v_pk_mul_f32 %s, s[44:45], %s op_sel_hi:[0,1]' % (vr(b + r, 2), vr(b + r, 2)), dlat=5)
                    else:
                        for r in range(4): P.job('v_mul_f32 v%d, s44, v%d' % (b + r, b + r), dlat=5)
                    for h in range(2): P.job('v_cvt_pk_bf16_f32 v%d, v%d, v%d' % (qfrag(g >> 1, qt) + 2 * (g & 1) + h, b + 2 * h, b + 2 * h + 1))
            if n == 10 and g == 2:
                for qt in range(NQ):
                    sb = SBLK[0, qt]; t = PBLK[1, 0, qt]
                    P.job('v_max3_f32 v%d, v%d, v%d, v%d' % (t, sb, sb + 1, sb + 2), dlat=5)
                    P.job('v_max_f32 v%d, v%d, v%d' % (t, t, sb + 3), dlat=5)
                    P.job('v_mov_b32 v%d, v%d' % (t + 1, t))
                    P.job('v_permlane32_swap_b32 v%d, v%d' % (t, t + 1))
                    P.job('v_max_f32 v%d, v%d, v%d' % (t, t, t + 1))
                    P.job('v_mov_b32 v%d, v%d' % (t + 1, t))
                    P.job('v_permlane16_swap_b32 v%d, v%d' % (t, t + 1))
                    P.job('v_max_f32 v%d, v%d, v%d' % (t, t, t + 1))
                    for r in range(4): P.job('v_sub_f32 v%d, 0, v%d' % (NEGM[qt] + r, t))
            if n == 41:
                for qt in range(NQ):
                    if (g & 1) == 0:
                        tt[qt] = t = t0 = late_blk(opt, g >> 1, qt) or tmpblk.pop(0)
                        if (g >> 1) < opt.get('se', 2): tmpblk.append(t)
                    else: t0 = tt[qt]; t = tmpblk.pop(0); tmpblk.append(t)
                    for r in range(4): P.job('v_accvgpr_read_b32 v%d, a%d' % (t + r, oacc(g, qt) + r), dlat=5)
                    if opt.get('pk'):
                        for r in (0, 2): P.job('v_pk_mul_f32 %s, %s, %s op_sel:[0,%d] op_sel_hi:[1,%d]' % (vr(t + r, 2), vr(t + r, 2), vr(NEGM[0] + (qt & 2), 2), qt & 1, qt & 1))
                    else:
                        for r in range(4): P.job('v_mul_f32 v%d, v%d, v%d' % (t + r, t + r, NEGM[0] + qt))
                    for h in range(2): P.job('v_cvt_pk_bf16_f32 v%d, v%d, v%d' % (t0 + 2 * (g & 1) + h, t + 2 * h, t + 2 * h + 1))
                    if (g & 1) and (g >> 1) < opt.get('se', 2):
                        s = g >> 1
                        P.job('buffer_store_dwordx4 %s, v10, s[36:39], s%d offen offset:%d%s' % (vr(t0), 56 + 2 * qt + (s >> 2), (s & 3) * 1024, opt.get('opol', ' sc1')))
        if kind == 'K': softmax(j, SUBKT if j == 0 else 0)
    assert P.n() == total
    w0i = waitjob[0, 0].ins
    P.pre.remove(w0i); P.pre.append(w0i)
    P.start = start
    P.wo = {m: dmas['WO', m] for m in range(15)}
    return P

def k1_body(NQ, opt):
    dense = opt.get('dense', 5)
    def run(P, regions):
        slots_fn = lambda g: dense if g >= P.start[41, 1] else 2
        return schedule(P.mf, P.jobs, verbose=opt.get('verbose'), slots_fn=slots_fn, regions=regions)
    P1 = k1_build(NQ, opt); run(P1, ())
    st = P1.start
    P = k1_build(NQ, opt)
    regions = []
    for n0, pn, n1, ref in LOOPS:
        L0 = st[n0]; T = st[n0 + pn] - L0; L1 = st[n1]
        regions.append((L0, L1))
        cls = {}
        for j in P1.jobs:
            if L0 + ref * T <= j.gap < L0 + (ref + 1) * T:
                ph, nm, c = j.key
                k = ((ph - n0) % pn, nm, c)
                assert k not in cls, ('duplicate class', k)
                cls[k] = (j.gap - L0 - ((ph - n0) // pn) * T, j.ord)
        for j in P.jobs:
            if j.gap is not None: continue
            ph, nm, c = j.key
            if not (n0 - pn <= ph < n1 + pn): continue
            k = ((ph - n0) % pn, nm, c)
            if k in cls:
                p = L0 + ((ph - n0) // pn) * T + cls[k][0]
                if L0 <= p < L1: j.pin = (p, cls[k][1]); j.lo = j.hi = p
                elif p < L0: j.hi = min(j.hi, L0 - 1)
                else: j.lo = max(j.lo, L1)
            else:
                assert not (n0 <= ph < n1), ('no class for', j.key)
        for j in P.jobs:
            if j.gap is None and j.pin is None:
                if j.key[0] < n0: j.hi = min(j.hi, L0 - 1) if j.lo < L1 else j.hi
                elif j.key[0] >= n1: j.lo = max(j.lo, L1)
    for j in P.jobs:
        if j.dummy and j.pin is None: j.gap = -10
    body, left, over = run(P, regions)
    errs = verify(P.jobs)
    for e in errs[:20]: print('ERR', e)
    assert not errs
    marks = []
    idx = {id(m): i for i, m in enumerate(P.mf)}
    seq = []
    want = {}
    for li, (n0, pn, n1, ref) in enumerate(LOOPS):
        L0 = st[n0]; T = st[n0 + pn] - L0; L1 = st[n1]
        ex = (L1 - L0) % T
        for p in range(L0, L1 + 1, T):
            want.setdefault(p, []).append((li, 'it'))
            if ex and p + ex <= L1: want.setdefault(p + ex, []).append((li, 'ex'))
    for x in body:
        i = idx.get(id(x))
        if i is not None and i in want:
            for li, w in want[i]:
                m = I('; L%d %s' % (li, w)); m.mark = (li, w); seq.append(m)
        seq.append(x)
    return P.pre + seq + left, over, P.wo

def fold(seq, tag):
    out = list(seq)
    for li, (n0, pn, n1, ref) in enumerate(LOOPS):
        pos = [i for i, x in enumerate(out) if getattr(x, 'mark', None) == (li, 'it')]
        exs = [i for i, x in enumerate(out) if getattr(x, 'mark', None) == (li, 'ex')]
        segs = [out[pos[i]:pos[i + 1]] for i in range(len(pos) - 1)]
        end = pos[-1]
        if exs: segs.append(out[pos[-1]:exs[-1]]); end = exs[-1]
        for s in segs[1:]:
            for a, b in zip(segs[0], s): assert a.txt == b.txt, (tag, li, a.txt, b.txt)
            assert len(s) == len(segs[0]) or (exs and s is segs[-1])
        nit = len(pos) - 1
        lab = '%s_L%d' % (tag, li)
        body = segs[0][1:]
        if exs:
            e = exs[0] - pos[0] - 1
            body = body[:e] + [I('s_cmp_eq_u32 s3, %d' % nit), I('s_cbranch_scc1 %s_x' % lab), I('s_add_u32 s3, s3, 1')] + body[e + 1:] + [I('s_branch %s' % lab), I('%s_x:' % lab)]
        else:
            body = body + [I('s_add_u32 s3, s3, 1'), I('s_cmp_lg_u32 s3, %d' % nit), I('s_cbranch_scc1 %s' % lab)]
        out = out[:pos[0]] + [I('s_mov_b32 s3, 0'), I('%s:' % lab)] + body + out[end + 1:]
    return out

def unify(seq):
    for li in range(len(LOOPS)):
        pos = [i for i, x in enumerate(seq) if getattr(x, 'mark', None) == (li, 'it')]
        exs = [i for i, x in enumerate(seq) if getattr(x, 'mark', None) == (li, 'ex')]
        ends = pos[1:] + ([exs[-1]] if exs else [])
        segs = [seq[a:b] for a, b in zip(pos, ends)]
        for k in range(len(segs[0])):
            col = [s[k] for s in segs if k < len(s)]
            if getattr(col[0], 'cover', None) is None: continue
            c = {}
            for x in col:
                for nm, v in re.findall(r'(vmcnt|lgkmcnt)\((\d+)\)', x.txt): c[nm] = min(c.get(nm, 99), int(v))
            t = 's_waitcnt ' + ' '.join('%s(%d)' % (nm, c[nm]) for nm in ('vmcnt', 'lgkmcnt') if nm in c) if c else 's_nop 0'
            if len(set(x.txt for x in col)) > 1: print('   unified', sorted(set(x.txt for x in col)), '->', t)
            for x in col: x.txt = t; x.parse()

def k1_prologue(opt):
    L = []
    a = lambda t: L.extend(I(x) for x in t.strip().split('\n'))
    a('''s_cmp_lt_u32 s2, 256
s_cbranch_scc1 K1_go
s_endpgm
K1_go:
s_load_dwordx8 s[4:11], s[0:1], 0
s_load_dwordx2 s[18:19], s[0:1], 56
s_load_dwordx2 s[48:49], s[0:1], 32''')
    if opt.get('stamps'): a('s_memrealtime s[64:65]\ns_memtime s[68:69]')
    a('''v_lshrrev_b32 v29, 6, v0
v_and_b32 v30, 63, v0
v_readfirstlane_b32 s40, v29''')
    if opt.get('map', 0) == 0:
        a('s_and_b32 s46, s2, 7\ns_lshr_b32 s47, s2, 3')
    else:
        a('''s_and_b32 s46, s2, 1
s_lshl_b32 s46, s46, 2
s_bfe_u32 s52, s2, 0x20003
s_or_b32 s46, s46, s52
s_bfe_u32 s47, s2, 0x20001
s_lshl_b32 s47, s47, 3
s_lshr_b32 s52, s2, 5
s_or_b32 s47, s47, s52''')
    if not opt.get('qrot', 1): a('s_mov_b32 s13, 0')
    elif opt.get('map', 0) == 0: a('s_mul_i32 s52, s47, 26\ns_lshr_b32 s52, s52, 8\ns_mul_i32 s52, s52, 10\ns_sub_u32 s13, s47, s52')
    else: a('''s_bfe_u32 s53, s2, 0x10003
s_mul_i32 s53, s53, ''' + str(opt.get('qa', 5 - opt.get('q0', 0) // 2)) + '''
s_add_u32 s52, s52, s53
s_bfe_u32 s53, s2, 0x10004
s_mul_i32 s53, s53, ''' + str(opt.get('qb', 2)) + '''
s_add_u32 s52, s52, s53
s_sub_u32 s53, s52, %d
s_min_u32 s13, s52, s53''' % (10 - opt.get('q0', 0)))
    a('s_lshl_b32 s14, s13, 7\ns_mul_i32 s13, s13, %d' % WSTEP)
    a('''v_lshrrev_b32 v31, 3, v30
v_and_b32 v32, 6, v31
v_and_b32 v33, 7, v30
v_xor_b32 v32, v32, v33
v_lshl_add_u32 v31, v29, 6, v31
v_mul_u32_u24 v31, 1280, v31
v_lshl_add_u32 v25, v32, 4, v31
v_add_u32 v26, 9216, v25
v_add_u32 v27, 18432, v25
v_add_u32 v28, 27648, v25''')
    a('v_mul_u32_u24 v34, 6144, v29\nv_lshlrev_b32 v35, 4, v29')
    for t in range(3):
        a('''v_add_u32 v31, %d, v30
v_mul_u32_u24 v32, 171, v31
v_lshrrev_b32 v32, 12, v32
v_mul_u32_u24 v33, 24, v32
v_sub_u32 v33, v31, v33
v_lshlrev_b32 v36, 1, v32
v_and_b32 v36, 4, v36
v_xor_b32 v33, v33, v36
v_add_u32 v36, v35, v32
v_mul_u32_u24 v36, 12288, v36
v_lshl_add_u32 v33, v33, 4, v36
v_subrev_u32 v%d, %d, v33
v_and_b32 v32, 6, v32
v_xor_b32 v32, v32, v30
v_lshl_add_u32 v%d, v32, 4, v34''' % (64 * t, 22 + t, 1024 * t, 7 + t))
    a('''s_mul_i32 s41, s40, 6144
s_lshl_b32 s42, s40, 13
s_add_u32 s42, s42, %d
s_mul_i32 s52, s46, 307200
s_mul_i32 s53, s47, 384
s_lshl_b32 s54, s46, 5
s_add_u32 s54, s54, s47
s_mul_i32 s54, s54, 393216
s_mul_i32 s55, s46, 2880
s_mul_i32 s56, s47, 6
s_add_u32 s55, s55, s56
s_lshl_b32 s55, s55, 10
s_mov_b32 s22, 307200
s_mov_b32 s23, 0x00020000
s_sub_u32 s26, 7864320, s53
s_mov_b32 s27, 0x00020000
s_mov_b32 s30, 393216
s_mov_b32 s31, 0x00020000
s_mov_b32 s34, 393216
s_mov_b32 s35, 0x00020000
s_sub_u32 s38, 23592960, s55
s_mov_b32 s39, 0x00020000
s_waitcnt lgkmcnt(0)
s_add_u32 s20, s4, s52
s_addc_u32 s21, s5, 0
s_add_u32 s24, s10, s53
s_addc_u32 s25, s11, 0
s_add_u32 s28, s6, s54
s_addc_u32 s29, s7, 0
s_add_u32 s32, s8, s54
s_addc_u32 s33, s9, 0
s_add_u32 s36, s18, s55
s_addc_u32 s37, s19, 0''' % XB0)
    mid = '''s_add_u32 s52, s18, %d
s_addc_u32 s53, s19, 0
s_load_dword s45, s[52:53], 1024
s_mov_b32 s54, 2048
s_mov_b32 s55, 0x00020000
''' % k2f.OBYTES + k2f.inner(opt, 's56', 's57', 's58') + '''
s_lshl_b32 s59, s56, 6
''' + ('s_lshl_b32 s57, s57, 1' if opt.get('k2') == 2 else k2f.outer(opt, 's56', 's57', 's58')) + '''
s_lshl_b32 s57, s57, 7
s_add_u32 s48, s48, s57
s_addc_u32 s49, s49, 0
s_sub_u32 s50, 7864320, s57
s_mov_b32 s51, 0x00020000
s_mov_b32 s101, %d
v_lshrrev_b32 v31, 4, v0
v_min_u32 v31, 14, v31
v_mul_u32_u24 v31, 196608, v31
v_and_b32 v32, 15, v0
v_lshl_add_u32 v19, v32, 7, v31
''' % (-2048 if opt.get('op') else -(384 if opt.get('kmap', 1) else 192) * 1280) + '''v_lshrrev_b32 v31, 3, v30
v_and_b32 v32, 6, v31
v_and_b32 v33, 7, v30
v_xor_b32 v32, v32, v33
v_mul_u32_u24 v33, 1536, v29
v_add_u32 v31, v33, v31
v_mul_u32_u24 v31, 1280, v31
v_lshl_add_u32 v14, v32, 4, v31
v_add_u32 v15, 9216, v14
v_add3_u32 v11, v33, s59, v30
v_mul_u32_u24 v11, 1280, v11
'''
    if opt.get('k2') == 2:
        mid = mid[:mid.index('s_mov_b32 s101')] + k2g.wo_addr(14, 30, 29, 31) + '\n'
    mid += '''v_lshrrev_b32 v31, 4, v30
v_and_b32 v32, 15, v30
v_and_b32 v33, 6, v32
v_xor_b32 v33, v33, v31
v_lshlrev_b32 v33, 4, v33
v_lshl_add_u32 v20, v32, 7, v33
v_add_u32 v20, s42, v20
v_xor_b32 v21, 64, v20
v_mul_u32_u24 v1, 384, v32
v_add_u32 v1, v1, v33
v_add_u32 v1, %d, v1
v_xor_b32 v2, 64, v1
v_bfe_u32 v32, v30, 2, 2
v_lshl_add_u32 v33, v31, 3, v32
v_mul_u32_u24 v33, 384, v33
v_lshlrev_b32 v32, 1, v32
v_and_b32 v32, 4, v32
v_and_b32 v34, 3, v30
v_xor_b32 v32, v32, v34
v_lshl_add_u32 v16, v32, 4, v33
v_xor_b32 v17, 64, v16
v_lshrrev_b32 v31, 2, v30
v_and_b32 v32, 6, v31
v_lshrrev_b32 v33, 1, v34
v_xor_b32 v32, v32, v33
v_lshlrev_b32 v32, 4, v32
v_and_b32 v33, 1, v30
v_lshl_add_u32 v32, v33, 3, v32
v_mul_u32_u24 v31, 384, v31
v_add_u32 v3, v31, v32
v_add_u32 v3, %d, v3
v_xor_b32 v4, 32, v3
v_xor_b32 v5, 64, v3
v_xor_b32 v6, 96, v3
v_mul_u32_u24 v10, 786432, v29
v_lshl_add_u32 v10, v30, 4, v10
v_lshlrev_b32 v12, 2, v29
v_add_u32 v12, %d, v12
v_mov_b32 v13, %d
v_mov_b32 v31, 0x3f803f80
v_accvgpr_write_b32 a240, v31
v_accvgpr_write_b32 a241, v31
v_accvgpr_write_b32 a242, v31
v_accvgpr_write_b32 a243, v31
s_mov_b32 s44, 0x%08x
s_mov_b32 s4, 98304
s_mov_b32 s5, 49152
s_mov_b32 s6, 73728
s_mov_b32 s7, 49152
s_add_u32 s12, s41, 49152
s_add_u32 s15, s41, s12''' % (2 * TS, 2 * TS, FLAG, FLAG, f2u(math.log2(math.e) / math.sqrt(192.0)))
    if opt.get('sw'):
        mid += '''
v_mul_u32_u24 v31, 60, v29
v_add_u32 v31, v31, v30
v_lshlrev_b32 v19, 7, v31
v_subrev_u32 v31, 10, v30
v_not_b32 v31, v31
v_and_b32 v31, 0x40000000, v31
v_or_b32 v19, v19, v31
s_mul_i32 s101, s2, 30720
s_add_u32 s101, s101, s50
s_sub_u32 s101, s101, %d''' % (7864320 + 1280)
    if opt.get('pfk'):
        mid += '''
v_mul_u32_u24 v31, %d, v29
v_add_u32 v31, v31, v30
v_lshlrev_b32 v31, 7, v31
v_subrev_u32 v32, %d, v30
v_not_b32 v32, v32
v_and_b32 v32, 0x40000000, v32
v_or_b32 v31, v31, v32
s_mov_b32 s100, %d''' % (opt['pfk'], opt['pfk'], -opt['pfk'] * 512)
    mid = mid.split('\n')
    for qt in range(4):
        for hh in range(2): mid.append('s_mov_b32 s%d, %d' % (56 + 2 * qt + hh, qt * 196608 + hh * 4096))
    if opt.get('ktrace'): mid.append('s_mov_b32 s98, 0')
    if opt.get('ls'):
        for r in range(4): mid += ['v_accvgpr_write_b32 a%d, v%d' % (248 + r, 12 + r), 'v_mov_b32 v%d, v%d' % (NEGM[3] + r, 12 + r), 'v_mov_b32 v%d, 0' % (12 + r)]
    mid += ['s_cmp_eq_u32 s40, 3', 's_cselect_b32 s62, 0x7ff00000, s62', 's_cselect_b32 s63, 0x7ff00000, s63']
    return L, mid

def stamp_code(label, nst, tmp=96):
    L = []
    a = lambda t: L.extend(I(x) for x in t.strip().split('\n'))
    a('s_waitcnt vmcnt(0)\ns_memrealtime s[66:67]\ns_memtime s[70:71]\ns_memrealtime s[%d:%d]\ns_memtime s[%d:%d]\ns_waitcnt lgkmcnt(0)' % (72 + 4 * nst, 73 + 4 * nst, 74 + 4 * nst, 75 + 4 * nst))
    a('s_mov_b64 s[72:73], s[64:65]\ns_mov_b64 s[74:75], s[68:69]')
    a('''s_add_u32 s96, s18, 0x%x
s_addc_u32 s97, s19, 0
s_mov_b32 s98, 0x1000000
s_mov_b32 s99, 0x00020000
s_cmp_lg_u32 s40, 0
s_cbranch_scc1 %s
s_lshl_b32 s4, s2, 8
s_add_u32 s4, s4, 0x100000
v_lshlrev_b32 v11, 2, v0
v_lshlrev_b32 v14, 6, v255
s_nop 1
buffer_store_dword v14, v11, s[96:99], s4 offen
s_mul_i32 s4, s2, 128
v_mov_b32 v11, s4
s_mov_b64 exec, 1''' % (STAMP_OFF, label))
    regs = [64, 66, 68, 70] + [72 + 2 * i for i in range(2 * nst + 2)]
    for i, r in enumerate(regs):
        a('v_mov_b32 v14, s%d\nv_mov_b32 v15, s%d\nbuffer_store_dwordx2 v[14:15], v11, s[96:99], 0 offen offset:%d\ns_nop 1' % (r, r + 1, 8 * i))
    a('s_waitcnt vmcnt(0)\n%s:' % label)
    return L

def k1_fallback(opt):
    L = []
    a = lambda t: L.extend(I(x) for x in t.strip().split('\n'))
    MX = 12
    a('K1_fb:\ns_waitcnt vmcnt(0) lgkmcnt(0)\ns_barrier')
    a('s_sub_u32 s6, s6, %d\ns_sub_u32 s7, s7, %d' % (4 * TS, 4 * TS))
    for r in (1, 2): a('v_subrev_u32 v%d, s6, v%d' % (r, r))
    for r in (3, 4, 5, 6): a('v_subrev_u32 v%d, s7, v%d' % (r, r))
    for qt in range(4):
        a('v_mov_b32 v%d, 0xff7fffff' % (MX + qt))
        for r in range(4): a('v_mov_b32 v%d, 0' % (NEGM[qt] + r))
    a('s_mov_b32 s4, 0\nK1_fb_pass:\ns_mov_b32 s5, 0')
    for i in range(208): a('v_accvgpr_write_b32 a%d, 0' % i)
    a('K1_fb_loop:')
    def load(srd):
        for half in range(2):
            a('s_add_u32 m0, s41, %d\ns_add_u32 s43, s5, %d' % (4 * TS + half * 3072, half * 3072))
            for t in range(3): a('buffer_load_dwordx4 v%d, %s, s43 offen offset:%d lds' % (7 + t, srd, 1024 * t))
        a('s_waitcnt vmcnt(0)\ns_barrier')
    load('s[28:31]')
    for kt in range(4):
        for s in range(6): a('ds_read_b128 %s, v%d offset:%d' % (ar(RING + 4 * s), 1 + (s & 1), 128 * (s >> 1) + 6144 * kt))
        a('s_waitcnt lgkmcnt(0)')
        for qt in range(4):
            for s in range(6):
                d = vr(SBLK[kt, qt])
                a('v_mfma_f32_16x16x32_bf16 %s, %s, %s, %s' % (d, ar(RING + 4 * s), vr(qfrag(s, qt)), vr(NEGM[qt]) if s == 0 else d))
    a('s_nop 7\ns_cmp_lg_u32 s4, 0\ns_cbranch_scc1 K1_fb_pv')
    for kt in range(4):
        for qt in range(4):
            sb = SBLK[kt, qt]
            a('v_max3_f32 v%d, v%d, v%d, v%d\nv_max3_f32 v%d, v%d, v%d, v%d' % (MX + qt, MX + qt, sb, sb + 1, MX + qt, MX + qt, sb + 2, sb + 3))
    a('s_branch K1_fb_next\nK1_fb_pv:\ns_barrier')
    load('s[32:35]')
    for kt in range(4):
        for qt in range(4):
            sb = SBLK[kt, qt]
            for r in range(4): a('v_exp_f32 v%d, v%d' % (sb + r, sb + r))
    a('s_nop 0')
    for kt in range(4):
        for qt in range(4):
            sb = SBLK[kt, qt]; pb = PBLK[0, kt >> 1, qt] + 2 * (kt & 1)
            for h in range(2): a('v_cvt_pk_bf16_f32 v%d, v%d, v%d' % (pb + h, sb + 2 * h, sb + 2 * h + 1))
    a('s_nop 1')
    for qt in range(4):
        for kp in range(2): a('v_mfma_f32_16x16x32_bf16 %s, %s, %s, %s' % (ar(LACC + 4 * qt), ar(ONES), vr(PBLK[0, kp, qt]), ar(LACC + 4 * qt)))
    for dt in range(12):
        for kp in range(2):
            for hh in range(2): a('ds_read_b64_tr_b16 %s, v%d offset:%d' % (ar(RING + 4 * kp + 2 * hh, 2), 3 + (dt & 3), 128 * (dt >> 2) + 6144 * hh + 12288 * kp))
        a('s_waitcnt lgkmcnt(0)')
        for qt in range(4):
            for kp in range(2): a('v_mfma_f32_16x16x32_bf16 %s, %s, %s, %s' % (ar(oacc(dt, qt)), ar(RING + 4 * kp), vr(PBLK[0, kp, qt]), ar(oacc(dt, qt))))
    a('''K1_fb_next:
s_nop 7
s_barrier
s_add_u32 s5, s5, %d
s_cmp_lt_u32 s5, %d
s_cbranch_scc1 K1_fb_loop
s_cmp_lg_u32 s4, 0
s_cbranch_scc1 K1_fb_out''' % (TS, 16 * TS))
    for qt in range(4):
        t = MX + qt; u = PBLK[0, 0, 0]
        a('''v_mov_b32 v%d, v%d
s_nop 1
v_permlane32_swap_b32 v%d, v%d
v_max_f32 v%d, v%d, v%d
v_mov_b32 v%d, v%d
s_nop 1
v_permlane16_swap_b32 v%d, v%d
v_max_f32 v%d, v%d, v%d''' % (u, t, t, u, t, t, u, u, t, t, u, t, t, u))
        for r in range(4): a('v_sub_f32 v%d, 0, v%d' % (NEGM[qt] + r, t))
    a('s_mov_b32 s4, 1\ns_branch K1_fb_pass\nK1_fb_out:')
    for qt in range(4):
        a('v_accvgpr_read_b32 v11, a%d\ns_nop 0\nv_rcp_f32 v11, v11\ns_nop 0' % (LACC + 4 * qt))
        for s in range(6):
            t = 16 + 8 * (s & 1); d = late_blk(opt, s, qt) or t
            for e in range(2):
                for r in range(4): a('v_accvgpr_read_b32 v%d, a%d' % (t + 4 * e + r, oacc(2 * s + e, qt) + r))
            for r in range(8): a('v_mul_f32 v%d, v%d, v11' % (t + r, t + r))
            for h in range(4): a('v_cvt_pk_bf16_f32 v%d, v%d, v%d' % (d + h, t + 2 * h, t + 2 * h + 1))
            if d == t: a('buffer_store_dwordx4 %s, v10, s[36:39], s%d offen offset:%d%s' % (vr(t), 56 + 2 * qt + (s >> 2), (s & 3) * 1024, opt.get('opol', ' sc1')))
    a('s_waitcnt vmcnt(0)\ns_branch K1_done')
    return L

def finish(seq, name, verbose=False):
    resolve_waits(seq)
    if any(hasattr(x, 'mark') for x in seq): unify(seq)
    seq, nn = fix_hazards(seq, verbose)
    errs, info = check(seq, name)
    for e in errs[:20]: print('ERR', e)
    assert not errs, '%d errors' % len(errs)
    return seq, info, nn

def sizes(seq):
    import subprocess, tempfile, os
    ins = [x for x in seq if x.kind != 'label']
    d = tempfile.mkdtemp()
    open(d + '/a.s', 'w').write('.amdgcn_target "amdgcn-amd-amdhsa--gfx950"\n.text\n' + '\n'.join(x.txt for x in seq) + '\ns_endpgm\n')
    subprocess.check_call(['clang', '-x', 'assembler', '-target', 'amdgcn-amd-amdhsa', '-mcpu=gfx950', '-c', d + '/a.s', '-o', d + '/a.o'])
    o = subprocess.check_output(['llvm-objdump', '-d', d + '/a.o'], text=True)
    offs = [int(m.group(1), 16) for m in re.finditer(r'// ([0-9A-F]{12}):', o)]
    assert len(offs) == len(ins) + 1, (len(offs), len(ins))
    for x, a, b in zip(ins, offs, offs[1:]): x.size = b - a

def add_touch(seq, tag, opt):
    NC = opt.get('ncls', 1); STEP = opt.get('pstep', 4096 // NC)
    chains = []
    for mark, lab in (('; touch', tag + '_tr'), ('; touch2', tag + '_ts')):
        if mark not in [x.txt for x in seq]: continue
        t = [x.txt for x in seq].index(mark)
        chain = [I('s_mov_b64 vcc, 1')]
        leaves = {}
        if NC == 1:
            for w in range(4):
                leaves[0, w] = I('s_cbranch_scc1 %s' % lab)
                chain += [I('s_cmp_eq_u32 s40, %d' % w), leaves[0, w]]
        else:
            bits = [('s40', 0), ('s40', 1)] + [('s2', 3 + i) for i in range(NC.bit_length() - 1)]
            def tree(level, val):
                if level == len(bits) - 1:
                    r, b = bits[level]
                    v1 = val | (1 << level)
                    l1 = I('s_cbranch_scc1 %s' % lab); l0 = I('s_branch %s' % lab)
                    leaves[v1 >> 2, v1 & 3] = l1; leaves[val >> 2, val & 3] = l0
                    return [I('s_bitcmp1_b32 %s, %d' % (r, b)), l1, l0]
                r, b = bits[level]
                nm = '%s_n%d_%d' % (lab, level, val)
                return [I('s_bitcmp1_b32 %s, %d' % (r, b)), I('s_cbranch_scc1 %s' % nm)] + tree(level + 1, val) + [I(nm + ':')] + tree(level + 1, val | (1 << level))
            chain += tree(0, 0)
        chain += [I('%s:' % lab), I('s_mov_b64 vcc, 0')]
        seq = seq[:t] + chain + seq[t + 1:]
        chains.append((chain, lab, leaves))
    l3 = None; p3 = []
    if '; touch3' in [x.txt for x in seq]:
        t = [x.txt for x in seq].index('; touch3')
        l3 = [I('s_cbranch_scc1 K2_t3') for w in range(4)]
        c3 = [I('s_mov_b64 vcc, 1')] + sum(([I('s_cmp_eq_u32 s40, %d' % w), l3[w]] for w in range(4)), []) + [I('K2_t3:'), I('s_mov_b64 vcc, 0')]
        seq = seq[:t] + c3 + seq[t + 1:]
    sizes(seq)
    end0 = 0
    for x in seq:
        if x.kind != 'label': end0 += x.size
        if x is chains[0][0][-1]: break
    out = []; off = 0; nxt = 4096 if NC == 1 else (end0 // STEP + 1) * STEP; pads = []; cold = False
    def pad():
        nonlocal off
        b = I('s_cbranch_vccnz %s' % chains[0][1]); pads.append((off, b)); out.append(I('%s_p%d:' % (tag, len(pads) - 1))); out.append(b); off += 4
    inchain = set(id(x) for c in chains for x in c[0][1:])
    if l3: inchain |= set(id(x) for x in c3[1:])
    n3 = None; S3 = opt.get('s3', 4096)
    for x in seq:
        if x.txt == '; cold': cold = True; print('   hot code bytes', off)
        if x.txt == '; pad':
            if off % 4096 > 64 and NC == 1: pad()
            continue
        if l3 and x is c3[-1]: n3 = (off // S3 + 1) * S3
        if x.kind != 'label':
            if n3 is not None and off >= n3 and not cold:
                p3.append(I('s_cbranch_vccnz K2_t3')); out += [I('K2_q%d:' % (len(p3) - 1)), p3[-1]]; off += 4; n3 += S3
            if off >= nxt and not cold and id(x) not in inchain:
                pad()
                while nxt <= off: nxt += STEP
            off += x.size
        out.append(x)
    pos = {id(x): i for i, x in enumerate(out)}
    split = next((i for i, x in enumerate(out) if x.txt == 'K1_w3:'), None)
    done = next(i for i, x in enumerate(out) if x.txt == 'K1_done:')
    if split is None: split = done
    split2 = pos[id(chains[1][0][0])] if len(chains) > 1 else len(out)
    for c in range(NC):
        my = [i for i, (o, b) in enumerate(pads) if NC == 1 or (o // STEP) % NC == c]
        if opt.get('pmax'): my = my[:opt['pmax']]
        first = [i for i in my if pos[id(pads[i][1])] < split]
        second = [i for i in my if split <= pos[id(pads[i][1])] < min(done, split2)]
        tl = [i for i in my if min(done, split2) <= pos[id(pads[i][1])] < split2]
        third = [i for i in my if split2 <= pos[id(pads[i][1])]]
        order = []
        for k in range(max(len(first), len(second))):
            if k < len(second): order.append(second[k])
            if k < len(first): order.append(first[k])
        order += tl
        for (chain, lab, leaves), order in zip(chains, (order, third)):
            for w in range(4):
                mine = order[w::4]
                if not mine: continue
                br = leaves[c, w]
                br.txt = br.txt.split()[0] + ' %s_p%d' % (tag, mine[0])
                for a, b in zip(mine, mine[1:] + [None]):
                    pads[a][1].txt = 's_cbranch_vccnz ' + ('%s_p%d' % (tag, b) if b is not None else lab)
    for i, b in enumerate(p3):
        if i < 4: l3[i].txt = 's_cbranch_scc1 K2_q%d' % i
        if i + 4 < len(p3): b.txt = 's_cbranch_vccnz K2_q%d' % (i + 4)
    print('   page pads', len(p3))
    print('   pads', len(pads), [o for o, b in pads][:40])
    return out

def gen_k1(opt):
    pro, mid = k1_prologue(opt)
    opt = dict(opt); opt['mid'] = mid
    out = []; infos = []
    pro, _ = fix_hazards(pro)
    sl = str(opt.get('sl', '0,10,12,41')).split(',')
    def stamp(nm):
        if not opt.get('stamps') or nm not in sl: return []
        k = 1 + sl.index(nm)
        return [I('s_memrealtime s[%d:%d]' % (72 + 4 * k, 73 + 4 * k)), I('s_memtime s[%d:%d]' % (74 + 4 * k, 75 + 4 * k)), I('s_waitcnt lgkmcnt(0)')]
    tails = []
    for NQ in ((4,) if opt.get('one') else (4, 3)):
        seq, over, wo = k1_body(NQ, opt)
        seq += [I('s_cmp_lg_u32 s100, 0'), I('s_cbranch_scc1 K1_fb'), WAIT(sum((wo[m] for m in range(12)), []))]
        seq += (k2g if opt.get('k2') == 2 else k2f).tail(opt, wo, stamp, late_stores(opt), [x for x in seq if x.op.startswith('buffer_store')][-1:])
        full, info, nn = finish(pro + seq, 'K1/NQ%d' % NQ, opt.get('verbose'))
        assert full[:len(pro)] == pro
        print('K1 NQ=%d: %d instrs, overflow %d, nops %d, est cycles %d' % (NQ, len(full), over, nn, est_cycles(full)))
        infos.append(info)
        if opt.get('fold', 1): full = fold(full, 'K1q%d' % NQ)
        print('   folded: %d instrs' % len(full))
        d = [x.txt for x in full].index('K1_done:')
        tails.append(full[d:]); full = full[:d]
        t = [x.txt for x in full].index('; touch')
        if opt.get('one'): out += full
        elif NQ == 4:
            common = [x.txt for x in full[:t]]
            out += full[:t + 1] + [I('s_cmp_eq_u32 s40, 3'), I('s_cbranch_scc1 K1_w3')] + full[t + 1:] + [I('s_branch K1_done'), I('K1_w3:'), I('; pad')]
        else:
            assert common == [x.txt for x in full[:t]]
            out += full[t + 1:]
    ce = cross_check(infos)
    for e in ce: print('ERR', e)
    assert not ce
    assert len(tails[0]) == len(tails[-1])
    for x, y in zip(tails[0], tails[-1]):
        if x.txt != y.txt:
            c = [int(re.fullmatch(r's_waitcnt vmcnt\((\d+)\)', z.txt).group(1)) for z in (x, y)]
            print('   tail wait', c); x.txt = 's_waitcnt vmcnt(%d)' % min(c); x.parse()
    out += (k2g if opt.get('k2') == 2 else k2f).patch(tails[0])
    if opt.get('k2') == 2: out += [I('s_branch K2_st' if opt.get('stamps') else 's_endpgm')] + k2g.slow(opt) + [I('K2_st:')]
    out += [I('; cold')]
    if opt.get('stamps'): out += stamp_code('K1_st', 5)
    out += [I('s_endpgm')]
    fb, _, _ = finish(k1_fallback(opt), 'fb')
    out += k2f.rest(opt) + fb
    if opt.get('touch', 1): out = add_touch(out, 'K1', opt)
    return out

def kdesc(name, vgpr, sgpr, accum):
    return '''.section .rodata,"a"
.p2align 6
.amdhsa_kernel %s
  .amdhsa_next_free_vgpr %d
  .amdhsa_next_free_sgpr %d
  .amdhsa_accum_offset %d
  .amdhsa_group_segment_fixed_size 0
  .amdhsa_kernarg_size 64
  .amdhsa_user_sgpr_count 2
  .amdhsa_user_sgpr_kernarg_segment_ptr 1
  .amdhsa_system_sgpr_workgroup_id_x 1
.end_amdhsa_kernel
''' % (name, vgpr, sgpr, accum)

MACROS = {}
def compact(x):
    t = x.txt
    m = re.fullmatch(r'v_mfma_f32_16x16x32_bf16 ([va])\[(\d+):\d+\], ([va])\[(\d+):\d+\], ([va])\[(\d+):\d+\], (.*)', t)
    if m:
        dc, d, ac, a, bc, b, c = m.groups()
        o = lambda cl, n: '%s[\\%s:\\%s+3]' % (cl, n, n)
        if c == '0': suf, cs, extra = 'Z', '0', ''
        elif c == x.dreg: suf, cs, extra = '', o(dc, 'd'), ''
        else: suf, cs, extra = 'C', o(dc, 'c'), ',' + re.match(r'[va]\[(\d+)', c).group(1)
        nm = 'M' + dc + ac + bc + suf
        MACROS[nm] = '.macro %s d,a,b%s\nv_mfma_f32_16x16x32_bf16 %s, %s, %s, %s\n.endm\n' % (nm, ',c' if extra else '', o(dc, 'd'), o(ac, 'a'), o(bc, 'b'), cs)
        return '%s %s,%s,%s%s' % (nm, d, a, b, extra)
    m = re.fullmatch(r'ds_read_(b64_tr_b16|b128) ([va])\[(\d+):\d+\], v(\d+) offset:(\d+)', t)
    if m:
        k, dc, d, a, off = m.groups()
        nm = ('T' if k != 'b128' else 'R') + dc; w = 1 if k != 'b128' else 3
        MACROS[nm] = '.macro %s d,a,o\nds_read_%s %s[\\d:\\d+%d], v\\a offset:\\o\n.endm\n' % (nm, k, dc, w)
        return '%s %s,%s,%s' % (nm, d, a, off)
    m = re.fullmatch(r'v_exp_f32 v(\d+), v(\d+)', t)
    if m and m.group(1) == m.group(2):
        MACROS['EX'] = '.macro EX d\nv_exp_f32 v\\d, v\\d\n.endm\n'
        return 'EX %s' % m.group(1)
    m = re.fullmatch(r'v_cvt_pk_bf16_f32 v(\d+), v(\d+), v(\d+)', t)
    if m:
        MACROS['CV'] = '.macro CV d,a,b\nv_cvt_pk_bf16_f32 v\\d, v\\a, v\\b\n.endm\n'
        return 'CV %s,%s,%s' % m.groups()
    m = re.fullmatch(r's_waitcnt lgkmcnt\((\d+)\)', t)
    if m:
        MACROS['WL'] = '.macro WL n\ns_waitcnt lgkmcnt(\\n)\n.endm\n'
        return 'WL %s' % m.group(1)
    return t.replace(', ', ',')

def emit(kernels, comp=True):
    s = ''
    for name, grid, lds, seq, vg, acc in kernels:
        s += '; @launch grid=(%d,1,1) block=(256,1,1) lds=%d\n' % (grid, lds)
    s += '.amdgcn_target "amdgcn-amd-amdhsa--gfx950"\n'
    body = ''
    for name, grid, lds, seq, vg, acc in kernels:
        body += '.text\n.globl %s\n.p2align 12\n.p2align 8\n.type %s,@function\n%s:\n' % (name, name, name)
        body += '\n'.join((compact(x) if comp else x.txt) for x in seq) + '\n'
        body += kdesc(name, vg, 102, acc)
    return s + ''.join(MACROS.values()) + body

if __name__ == '__main__':
    opt = {}
    outp = sys.argv[1]
    for a in sys.argv[2:]:
        k, v = a.split('=')
        try: v = int(v)
        except ValueError: v = v.replace('_', ' ')
        opt[k] = v
    ks = []
    if opt.get('fixw'): k2f.WSTEP = 0
    if opt.get('k1', 1): ks.append(('standalone__gqa_block_cached__near_ridge_kernel', 256, 163840, gen_k1(opt), 512, 256))
    txt = emit(ks, opt.get('comp', 1))
    open(outp, 'w').write(txt)
    print(outp, len(txt), 'bytes')
```

```python
from sched import *
from k2f import TS, SLOTORD, OBYTES, WSTEP, vr, ar, haddr, inner

IBOFF = OBYTES + 65536
IBSIZE = 256 * 131072
def sreg(st, tag):
    s = SLOTORD[st % 6]
    return (s * TS, (s + 1) * TS, True, tag, None)
def hreg(m): return sreg(m // 3, ('WO', m // 3))
def wrap(reg, step, n):
    return ['s_add_u32 s10, %s, %d' % (reg, step), 's_sub_u32 s11, s10, %d' % (n * step), 's_min_u32 %s, s10, s11' % reg]

def rotation(opt):
    return (inner(opt, 's15', 's12', 's13') + '''
s_mul_i32 s15, s15, %d
s_mul_i32 s12, s12, %d
s_add_u32 s15, s15, s12
s_and_b32 s15, s15, 15
s_mul_i32 s12, s15, 3
s_add_u32 s12, s12, 12
s_sub_u32 s13, s12, 48
s_min_u32 s12, s12, s13
s_mul_i32 s14, s12, %d''' % (opt.get('ra', 3), opt.get('rc', 3), WSTEP)).split('\n')

def wo_addr(d, lane, wave, t):
    return '''s_bfe_u32 s4, s2, 0x20001
s_mul_i32 s4, s4, 1536
v_lshrrev_b32 v%(a)d, 3, v%(l)d
v_and_b32 v%(b)d, 6, v%(a)d
v_and_b32 v%(c)d, 7, v%(l)d
v_xor_b32 v%(b)d, v%(b)d, v%(c)d
v_and_b32 v%(c)d, 1, v%(w)d
v_lshl_add_u32 v%(a)d, v%(c)d, 4, v%(a)d
v_add_u32 v%(a)d, s4, v%(a)d
v_mul_u32_u24 v%(a)d, 1280, v%(a)d
v_lshl_add_u32 v%(a)d, v%(b)d, 4, v%(a)d
v_lshrrev_b32 v%(c)d, 1, v%(w)d
v_lshl_add_u32 v%(d)d, v%(c)d, 7, v%(a)d
v_add_u32 v%(e)d, 9216, v%(d)d''' % dict(d=d, e=d + 1, l=lane, w=wave, a=t, b=t + 1, c=t + 2)

def tail(opt, W0, stamp, late, early):
    L = []
    a = lambda t: L.extend(I(x) for x in t.strip().split('\n'))
    GP = opt.get('gp', 5); GQ = opt.get('gq', 9); KC = opt.get('kc', 11); LD = opt.get('ld', 4); SP = opt.get('sp', 10) / 10.0
    FD = opt.get('fd', 15); FL = opt.get('fl', 12); GA = opt.get('ga', 106); GB = opt.get('gb', 116)
    wpol = opt.get('k2w', '')
    SH = 15 if opt.get('tg') else 14
    FS = opt.get('fs', 2); P1 = opt.get('p1', 1)
    WM = opt.get('wm', 1)
    global XO
    XO = opt.get('xo', 0)
    ACC = 24; KEEP = 56; RG = 60; AV = 124
    SQ = ['s8', 's9', 's12', 's13']
    def afrag(s, n, w=4, o=0): return ar(8 * (s - 12) + 4 * n + o, w) if 12 <= s < 44 else vr(AV + 8 * (s % 32) + 4 * n + o, w)
    ND = opt.get('nd', 0); NJ = 16 - ND
    CH = [(p, q) for p in range(5) for q in range(4)]
    if ND: CH[:8] = [(0, 1), (0, 2), (0, 3), (1, 1), (1, 2), (1, 3), (0, 0), (1, 0)]; assert LD == 2 and 2 <= ND <= 4
    pend = {6 * (1 + max(c for c in range(20) if CH[c][0] == p)): p for p in range(4)}
    def oset(c): return NJ + (0, 1, 4, 5)[c % 4] if ND else c + 16
    def wset(g): return g if g < NJ else NJ + 2 + (g - NJ) % 2
    wad = lambda m: haddr(3 * (wset(m // 3) % 6) + m % 3)
    wreg = lambda m: sreg(wset(m // 3), ('WO', m // 3))
    def acc(p, t): return KEEP if (p, t) == (0, 0) else ACC + 16 * (p & 1) + 4 * t
    def inb(p, t): return AV + ((p - 1) * 5 + t) * 4
    W = {g: sum((W0[m] for m in range(3 * g, 3 * g + 3)), []) for g in range(5)}; T = {}; O = {}
    def dma_w(g):
        W[g] = []; out = []
        for m in range(3 * g, 3 * g + 3):
            x = [I('buffer_load_dwordx4 v%d, s[48:51], s14 offen offset:%d%s lds' % (6 + t, 1024 * t, wpol), lds=wreg(m)) for t in range(2)]
            W[g] += x
            out += [[I('s_add_u32 m0, s41, %d' % wad(m))], [x[0]], [x[1]] + ([I(t) for t in wrap('s14', WSTEP, 48)] if m < 47 else [])]
        return out
    def tr(g):
        T[g] = []
        for m in range(3 * g, 3 * g + 3):
            ad = wad(m); st = ad // (3 * TS)
            for n in range(2):
                for hh in range(2):
                    T[g].append(I('ds_read_b64_tr_b16 %s, v%d offset:%d' % (afrag((m + 12) % 48, n, 2, 2 * hh), 12 + 2 * st + n, ad - st * 3 * TS + hh * 6144), lds=wreg(m)))
        return T[g]
    def dma_o(c, split=False):
        p, q = CH[c]; so = SLOTORD[oset(c) % 6] * TS
        O[c] = []; out = []
        for e in range(2):
            for i in range(3):
                x = I('buffer_load_dwordx4 v%d, s[20:23], s43 offen offset:%d sc1 lds' % (1 + e, 1024 * i), lds=sreg(oset(c), ('O', c)))
                O[c].append(x); pre = []
                if (e, i) == (0, 0):
                    if c == 0 or CH[c - 1][0] != p: pre += ['s_mov_b32 s16, %d' % (4 * 393216)] if p == 0 else ['s_xor_b32 s16, s44, %d' % (p & 3), 's_mul_i32 s16, s16, 393216']
                    pre += ['s_add_u32 s43, s16, %s' % SQ[q]]
                if i == 0: pre += ['s_add_u32 m0, s41, %d' % (so + e * 3072)]
                if split and pre: out.append([I(t) for t in pre]); pre = []
                out.append([I(t) for t in pre] + [x])
        return out
    def reads(G):
        c = G // 6; sl = SLOTORD[oset(c) % 6]; out = []
        for u in range(2):
            j = 2 * (G % 6) + u
            for e in range(2):
                out.append(I('ds_read_b128 %s, v%d offset:%d' % (vr(RG + (G % 4) * 16 + (2 * u + e) * 4), 3 + sl // 2, (sl & 1) * TS + (j // 3) * 6144 + e * 3072 + (j % 3) * 1024), lds=sreg(oset(c), ('O', c))))
        return out
    tn = [0]
    def trace():
        if opt.get('trace') and tn[0] < 64:
            a('s_memrealtime s[90:91]\ns_waitcnt lgkmcnt(0)\nv_writelane_b32 v255, s90, %d' % tn[0]); tn[0] += 1
    a('K1_done:')
    if opt.get('ktrace'): a('v_accvgpr_read_b32 v255, a244\ns_nop 1\nv_lshrrev_b32 v255, 6, v255')
    trace()
    L += stamp('j')
    late = [I(t) for t in late]; stores = list(late)
    for _ in range(min(opt.get('s0', 4), len(stores))): L.append(stores.pop(0))
    a('''s_load_dwordx2 s[28:29], s[0:1], 40
s_bfe_u32 s44, s2, 0x20001
s_lshr_b32 s4, s40, 1
s_mul_i32 s4, s4, 12288
s_lshl_b32 s5, s40, 1
s_xor_b32 s5, s5, s44
s_and_b32 s6, s44, 2
s_xor_b32 s5, s5, s6
s_and_b32 s5, s5, 3
s_lshl_b32 s5, s5, 5
v_and_b32 v24, 63, v0
v_lshrrev_b32 v25, 2, v24
v_and_b32 v26, 6, v25
v_bfe_u32 v27, v24, 1, 1
v_xor_b32 v26, v26, v27
v_lshlrev_b32 v26, 4, v26
v_lshl_add_u32 v26, v25, 7, v26
v_and_b32 v27, 1, v24
v_lshl_add_u32 v26, v27, 3, v26
v_xor_b32 v26, s5, v26
v_add_u32 v12, s4, v26
v_xor_b32 v13, 32, v12
v_add_u32 v14, %d, v12
v_add_u32 v15, %d, v13
v_lshrrev_b32 v28, 6, v0''' % (3 * TS, 3 * TS))
    a(wo_addr(6, 24, 28, 25))
    a('s_waitcnt lgkmcnt(0)')
    setup = ('''s_lshl_b32 s4, s46, 12
s_and_b32 s5, s47, 24
s_lshl_b32 s5, s5, 7
s_add_u32 s4, s4, s5
s_and_b32 s5, s47, 7
s_lshl_b32 s5, s5, ''' + str(FS) + '''
s_add_u32 s4, s4, s5
v_mov_b32 v20, s4
v_mov_b32 v21, s45
''' + inner(opt, 's46', 's47', 's4') + '''
s_and_b32 s4, s2, 1
s_mul_i32 s4, s4, 6
s_add_u32 s46, s46, s4
s_mul_i32 s4, s46, 1966080
s_mul_i32 s5, s44, 49152
s_add_u32 s4, s4, s5
s_sub_u32 s22, %(ob)d, s4
s_add_u32 s20, s18, s4
s_addc_u32 s21, s19, 0
s_lshl_b32 s5, s47, 8
s_mul_i32 s6, s46, 204800
s_add_u32 s6, s6, s5
s_sub_u32 s30, 2457600, s6
s_add_u32 s28, s28, s6
s_addc_u32 s29, s29, 0
s_add_u32 s24, s18, %(ib)d
s_addc_u32 s25, s19, 0
s_mov_b32 s26, %(ibs)d
s_lshr_b32 s4, s44, 1
s_mul_i32 s4, s4, 196608
s_sub_u32 s5, 196608, s4
v_lshlrev_b32 v3, 4, v24
v_add_u32 v1, s4, v3
v_add_u32 v2, s5, v3
v_add_u32 v4, %(t2)d, v3
v_add_u32 v5, %(t4)d, v3
s_lshl_b32 s4, s46, 1
v_bfe_u32 v22, v24, 3, 1
v_add_u32 v22, s4, v22
v_mul_u32_u24 v22, 43, v22
v_and_b32 v22, 0x380, v22
v_and_b32 v25, 7, v24
s_lshl_b32 s4, s44, 5
v_add_lshl_u32 v22, s4, v22, 5
v_lshl_add_u32 v22, v25, %(fs)d, v22
s_min_u32 s4, s40, %(one)d
s_lshl_b32 s4, s4, 30
v_add_u32 v22, s4, v22
s_mov_b32 s7, %(spin)d''' % dict(fs=FS, one=P1, ob=OBYTES, ib=IBOFF, ibs=1024 << SH, t2=2 * TS, t4=4 * TS, spin=opt.get('spin', 40000)))
    setup2 = '''s_add_u32 s4, s15, s40
''' + ''.join('s_add_u32 s5, s4, %d\ns_and_b32 s5, s5, 15\ns_mul_i32 %s, s5, 3072\n' % (4 * q, SQ[q]) for q in range(4)) + '''s_lshl_b32 s4, s40, ''' + str(SH) + '''
s_lshl_b32 s42, s2, ''' + str(SH + 2) + '''
v_add_u32 v8, s4, v3
s_add_u32 s4, s4, 15360
v_mov_b32 v19, s4
v_and_b32 v25, ''' + ('3, v24\nv_min_u32 v25, 2, v25' if opt.get('mg') or opt.get('tg') else '1, v24') + '''
v_lshl_add_u32 v9, v25, 7, v19
v_min_u32 v25, 1, v24
v_lshl_add_u32 v17, v25, 30, v19'''
    poll = None; nc = 0; nd = 0
    def check():
        L.append(WAIT([poll]))
        L.extend(stamp('e'))
        if P1: a('s_cmp_lg_u32 s40, 0\ns_cbranch_scc1 K2_go')
        a('; spin K2 v23 v22 s[52:55] 0 0')
        L.extend(stamp('f'))
    for g in range(NJ):
        cov = (W[g] if g >= 4 else [])
        if g == GP:
            assert not stores
            cov = cov + (late or early)
        if cov: L.append(WAIT(cov))
        a('s_barrier')
        if g == GP:
            a('''s_cmp_lg_u32 s40, 0
s_cbranch_scc1 K2_pub
s_mov_b64 exec, 1
; flagstore
s_mov_b64 exec, -1
K2_pub:
s_cmp_ge_u32 s2, 240
s_cbranch_scc1 K2_rest''')
            L.extend(stamp('p'))
        if g == GQ:
            assert GQ >= GP
            poll = I('buffer_load_dword v23, v22, s[52:55], 0 offen sc1'); L.append(poll)
        if g >= 10: assert not stores
        if g or not opt.get('so'): L += tr(g)
        if g == 0 and not opt.get('so'): a(setup)
        if g == 1 and not opt.get('so'): a(setup2)
        if g + 5 < NJ:
            for x in dma_w(g + 5):
                if x[0].kind == 'vmem':
                    nd += 1
                    while stores and len(late) - len(stores) < opt.get('s0', 4) + nd / SP: L.append(stores.pop(0))
                L += x
                if g == 0 and nd == opt.get('so') and x[0].kind == 'vmem': L += tr(g)
        if g == 0 and opt.get('so'): a(setup)
        if g == 2 and opt.get('so'): a(setup2)
        if g == KC and not P1: check()
        while g >= KC + P1 and nc < LD and oset(nc) <= g + 5:
            for x in dma_o(nc): L += x
            nc += 1
        if ND and WM == 1 and g + 5 in (NJ + 2, NJ + 3):
            for x in dma_w(g + 3): L += x
        if g == opt.get('t3'): a('; touch3')
        if g == KC and P1: check()
        L.append(WAIT(T[g]))
        if not opt.get('tg0'): trace()
    if KC + P1 >= NJ:
        if KC >= NJ: check()
        if P1: a('s_barrier')
        while nc < LD:
            for x in dma_o(nc): L += x
            nc += 1
    if ND and WM == 2:
        for x in dma_w(NJ): L += x
    R = {}; tq = []
    L.append(WAIT(O[0])); a('s_barrier')
    for G in range(3): R[G] = reads(G); L += R[G]
    L += stamp('g')
    vq = dma_o(LD, True)
    S = {}; IN = {}; pa = pb = None; adds = []; xq = []; sq = []
    assert 100 <= GA and (GA < GB or opt.get('mg') or opt.get('tg'))
    def ld_in(p):
        IN[p] = [I('buffer_load_dwordx4 %s, v8, s[24:27], s%d offen offset:%d sc1' % (vr(inb(p, t)), 4 + t // 4, 1024 * (t & 3))) for t in range(5)]
        return [[I('s_add_u32 s4, s42, %d' % ((p - 1) * 5120)), I('s_add_u32 s5, s4, 4096'), IN[p][0]]] + [[x] for x in IN[p][1:]]
    def dest(p, off): return [I('s_xor_b32 s17, s42, %d' % (p << SH + 3))] + ([I('s_add_u32 s17, s17, %d' % off)] if off else [])
    GC = opt.get('gc', 114)
    assert GB < GC or opt.get('tg')
    MG = opt.get('mg'); TG = opt.get('tg')
    add12 = ['v_add_f32 v%d, v%d, v%d' % (inb(1, 0) + r, inb(1, 0) + r, inb(2, 0) + r) for r in range(20)]
    add12 += ['v_add_f32 v%d, v%d, v%d' % (inb(1, 4) + r, inb(1, 4) + r, KEEP + r) for r in range(4)]
    if TG: add12 += ['v_add_f32 v%d, v%d, v%d' % (inb(1, 4) + r, inb(1, 4) + r, inb(3, 4) + r) for r in range(4)]
    def chk(nm): return [[I('v_cmp_ne_u32 s[100:101], s45, v16')], [I('s_cmp_eq_u64 s[100:101], 0'), I('s_cbranch_scc0 %s_slow' % nm), I('%s_go:' % nm)]]
    for G in range(120):
        c = G // 6; p, q = CH[c]
        if G % opt.get('tgs', 6) == 0 and G >= opt.get('tg0', 0): trace()
        cov = list(R[G])
        if G % 6 == 3 and c + 1 < 20: cov += O[c + 1]
        gw = {WM: NJ, WM + 1: NJ + 1, WM + 3: NJ + 2, WM + 4: NJ + 3}
        if G % 6 == 3 and ND:
            if gw.get(c + 1, 16) < 16: cov += W[gw[c + 1]]
            if gw.get(c, 16) < 16: cov += T[gw[c]]
        for pp in (1, 2, 3):
            if TG and pp == 3:
                if pend.get(G - FD) == 0:
                    cov += S[0]
                    xq.insert(0, dest(pp, 0) + [I('buffer_store_dword v21, v17, s[24:27], s17 offen offset:%d sc1' % (128 * (pp - 1)))])
            elif pend.get(G - (FD if pp < 3 else FL)) == pp:
                cov += S[pp]
                xq.insert(0, dest(pp, 0) + [I('buffer_store_dword v21, v17, s[24:27], s17 offen offset:%d sc1' % (128 * (pp - 1)))])
        if G == GA: cov.append(pa); xq += chk('KA'); sq += ld_in(1) + ld_in(2) + (ld_in(3) + [[I('KB_go:')]] if MG else [])
        if G == GA and TG:
            IN[2].append(I('buffer_load_dwordx4 %s, v8, s[24:27], s5 offen sc1' % vr(inb(3, 4))))
            sq.append([I('s_add_u32 s5, s42, %d' % (2 * 5120 + 4096)), IN[2][-1]])
        if G == GC and TG:
            IN[3] = [I(t) for t in LDT]
            xq += [[I('s_add_u32 s61, s42, %d' % (2 * 5120)), I('s_add_u32 s62, s42, 16384')]] + [[x] for x in IN[3]]
        elif G == GC and not MG: cov.append(pb); xq += chk('KB') + ld_in(3)
        if G == GA + opt.get('gd', 8): cov += IN[1] + IN[2]; adds += add12
        if G == 107:
            adds += ['s_lshr_b32 s8, s44, 1', 's_and_b32 s9, s44, 1', 's_lshl_b32 s9, s9, 5', 's_mul_i32 s12, s44, 40960', 's_mul_i32 s8, s8, 20480', 's_add_u32 s60, s8, s9']
            for t in range(4): adds += ['s_xor_b32 s10, s8, %d' % (20480 * (t >> 1)), 's_xor_b32 s11, s9, %d' % (32 * (t & 1)), 's_add_u32 s10, s10, s11', 's_add_u32 s%d, s10, s12' % (56 + t)]
            adds += ['s_add_u32 s60, s60, %d' % (8 * 20480), 's_lshl_b32 s10, s40, 6', 'v_and_b32 v7, 15, v0', 'v_mul_u32_u24 v7, 1280, v7',
                     'v_bfe_u32 v6, v0, 4, 2', 'v_lshl_add_u32 v7, v6, 3, v7', 'v_add_u32 v6, s10, v7', 's_nop 0']
        L.append(WAIT(cov))
        if G % 6 == 3 and c + 1 < 20:
            a('s_barrier')
            if c + 1 + LD < 20: assert not vq; vq = dma_o(c + 1 + LD, True)
            VN = 1
            if ND and gw.get(c + 1, 16) < 16: tq = list(tr(gw[c + 1]))
            if ND and NJ + 3 - WM <= gw.get(c + 3, 16) < 16:
                w = dma_w(gw[c + 3]); vq = vq[:4] + w[:3] + vq[4:] + w[3:]; VN = 2
        if G in pend:
            pp = pend[G]
            if pp == 0:
                S[0] = [I('buffer_store_dwordx4 %s, v8, s[24:27], s17 offen sc1' % vr(acc(0, t))) for t in (1, 2, 3)]
                sq += [dest(t, (t - 1) * 5120 + 4096) + [S[0][t - 1]] for t in (1, 2, 3)]
            elif pp == 3 and TG:
                mv = lambda t: [I('v_mov_b32 v%d, v%d' % ((12, 13, 14, 20)[t ^ 3], acc(3, t) + 3)), I('v_mov_b32 v%d, v21' % (acc(3, t) + 3))]
                st = lambda t: I('buffer_store_dwordx4 %s, v8, s[24:27], s17 offen offset:%d sc1' % (vr(acc(3, t)), 1024 * (t ^ 3)))
                xq += [mv(0) + dest(3, 2 * 5120), mv(1)]
                sq += [[st(0)] + mv(2), [st(1)] + mv(3), [st(2)], [st(3)] + dest(3, 16384)]
                sq += [[I('buffer_store_dwordx4 %s, v8, s[24:27], s17 offen offset:%d sc1' % (vr(b), o))] for b, o in ((12, 0), (20, 1024))]
            else:
                S[pp] = [I('buffer_store_dwordx4 %s, v8, s[24:27], s17 offen offset:%d sc1' % (vr(acc(pp, t)), 1024 * (t ^ pp))) for t in range(4)]
                sq += [dest(pp, (pp - 1) * 5120) + [S[pp][0]]] + [[x] for x in S[pp][1:]]
        if G == GA - opt.get('gl', 6): pa = I('buffer_load_dword v16, v9, s[24:27], s42 offen sc1'); xq.append([pa])
        if G == GB and not MG and not TG: pb = I('buffer_load_dword v16, v19, s[24:27], s42 offen offset:256 sc1'); xq.insert(0, [pb])
        if G + 3 < 120: R[G + 3] = reads(G + 3)
        rq = list(R.get(G + 3, []))
        for _ in range(opt.get('sr', 1) if G < 96 else opt.get('sr4', 2) if G < GA else opt.get('sr5', 2)):
            if sq: xq.append(sq.pop(0))
        for _ in range(2 if G < 3 else VN):
            if vq and vq[0][0].kind == 'salu': xq.append(vq.pop(0))
            if vq: xq.append(vq.pop(0))
        s0 = 12 * q + 2 * (G % 6); k = 0; z = G % 6 == 0 and p not in [x for x, _ in CH[:c]]
        for t in range(4):
            e, n = t >> 1, t & 1; d = vr(acc(p, t))
            for u in range(2):
                L.append(I('v_mfma_f32_16x16x32_bf16 %s, %s, %s, %s' % (d, afrag(s0 + u, n), vr(RG + (G % 4) * 16 + (2 * u + e) * 4), '0' if z and not u else d)))
                if k % 2 == 0 and rq: L += [rq.pop(0)] + ([tq.pop(0)] if tq and k else [])
                elif xq: L += xq.pop(0)
                elif adds: L += [I(adds.pop(0)), I(adds.pop(0))]
                k += 1
    if GC >= 120 and not MG: L.append(WAIT([pb])); xq += chk('KB') + ld_in(3)
    for x in xq + sq: L += x
    if GA + opt.get('gd', 8) >= 120: L.append(WAIT(IN[1] + IN[2])); adds += add12
    L += [I(t) for t in adds]
    assert not vq
    L += stamp('m')
    trace()
    for t in range(4):
        for r in range(4): a('v_add_f32 v%d, v%d, v%d' % (inb(1, t) + r, inb(1, t) + r, acc(4, t) + r))
    if TG: L.append(WAIT(IN[3])); a(CHT + '\ns_cbranch_scc0 KB_slow\nKB_go:')
    for t in ((4, 0, 1, 2, 3) if TG else range(5)):
        b = inb(1, t)
        if not TG: L.append(WAIT([IN[3][t]]))
        for r in range(4):
            if not TG or t < 4: a('v_add_f32 v%d, v%d, v%d' % (b + r, b + r, inb(3, 5) + (t if t < 3 else 4) if TG and r == 3 else inb(3, t) + r))
        for h in range(2): a('v_cvt_pk_bf16_f32 v%d, v%d, v%d' % (b + h, b + 2 * h, b + 2 * h + 1))
        a('buffer_store_dwordx2 %s, v6, s[28:31], s%d offen' % (vr(b, 2), 56 + t))
    trace()
    a('K2_end:')
    return L

I3 = 124 + 40
LDT = ['buffer_load_dwordx4 %s, v8, s[24:27], s61 offen offset:%d sc1' % (vr(I3 + 4 * t), 1024 * t) for t in range(4)]
LDT += ['buffer_load_dwordx4 %s, v8, s[24:27], s62 offen offset:%d sc1' % (vr(I3 + 20 + 4 * t), 1024 * t) for t in range(2)]
CHT = '\n'.join('v_%s3_u32 v%d, v%d, v%d, v%d' % (m, d, x, y, z) for m, d in (('min', 10), ('max', 11))
                for x, y, z in ((21, I3 + 3, I3 + 7), (d, I3 + 11, I3 + 15), (d, I3 + 23, I3 + 25))) + '\nv_cmp_ne_u32 s[100:101], v10, v11\ns_nop 0\ns_cmp_eq_u64 s[100:101], 0'
def slow(opt):
    out = []
    if opt.get('tg'):
        out += [I(t) for t in ['KB_slow:', 's_mov_b32 s7, 40000', 'KB_again:'] + LDT + ['s_waitcnt vmcnt(0)'] + CHT.split('\n') +
                ['s_cbranch_scc1 KB_go', 's_sub_u32 s7, s7, 1', 's_cbranch_scc0 KB_again', 's_branch KB_go']]
    for nm, ad, off in (('KA', 'v9', 0), ('KB', 'v19', 256))[:1 if opt.get('tg') else 2]:
        out += [I(t) for t in ('''%(n)s_slow:
s_mov_b32 s7, 40000
%(n)s_again:
buffer_load_dword v16, %(a)s, s[24:27], s42 offen offset:%(f)d sc1
s_waitcnt vmcnt(0)
v_cmp_ne_u32 s[100:101], s45, v16
s_nop 0
s_cmp_eq_u64 s[100:101], 0
s_cbranch_scc1 %(n)s_go
s_sub_u32 s7, s7, 1
s_cbranch_scc0 %(n)s_again
s_branch %(n)s_go''' % dict(n=nm, a=ad, f=off)).split('\n')]
    return out

XO = 0
def patch(seq):
    out = []; main = False
    for x in seq:
        if x.kind == 'mfma': main = True
        if main:
            if XO & 1 and x.txt.startswith('s_add_u32 s43'): x = I('s_mov_b32 s43, 0')
            if XO & 2 and x.txt.endswith(' lds'): continue
            if XO & 4 and x.kind == 'ds': continue
            if XO & 8 and x.kind == 'bar': continue
            if XO & 16 and ('_slow' in x.txt or 's[24:27]' in x.txt): continue
            if XO & 32 and x.txt.endswith('sc1 lds'): x = I(x.txt.replace('sc1 ', ''))
        if x.txt == '; flagstore': out.append(I('buffer_store_dword v21, v20, s[52:55], 0 offen sc1'))
        elif x.txt.startswith('; spin'):
            nm, d, ad, srd, so, off = x.txt.split()[2:]
            out += [I(t) for t in ('''s_mov_b32 s7, 40000
%(n)s_chk:
v_cmp_ne_u32 s[100:101], s45, %(d)s
s_nop 0
s_cmp_eq_u64 s[100:101], 0
s_cbranch_scc1 %(n)s_go
s_sub_u32 s7, s7, 1
s_cbranch_scc1 %(n)s_go
buffer_load_dword %(d)s, %(a)s, %(s)s, %(o)s offen offset:%(f)s sc1
s_waitcnt vmcnt(0)
s_branch %(n)s_chk
%(n)s_go:''' % dict(n=nm, d=d, a=ad, s=srd, o=so, f=off)).split('\n')]
        else: out.append(x)
    return out

def rest(opt):
    fs = opt.get('fs', 2)
    return [I(t) for t in ('''K2_rest:
s_waitcnt vmcnt(0)
s_cmp_lg_u32 s2, 240
s_cbranch_scc1 K2_end
s_cmp_lg_u32 s40, 0
s_cbranch_scc1 K2_end
v_lshrrev_b32 v22, 1, v0
v_lshlrev_b32 v22, 10, v22
v_and_b32 v32, 1, v0
v_lshl_add_u32 v22, v32, %d, v22
s_mov_b32 s4, 32768
K2_all:
buffer_load_dword v32, v22, s[52:55], 0 offen sc1
buffer_load_dword v33, v22, s[52:55], 0 offen offset:%d sc1
buffer_load_dword v34, v22, s[52:55], 0 offen offset:%d sc1
buffer_load_dword v35, v22, s[52:55], 0 offen offset:%d sc1
s_waitcnt vmcnt(0)
v_xor_b32 v32, s45, v32
v_xor_b32 v33, s45, v33
v_xor_b32 v34, s45, v34
v_xor_b32 v35, s45, v35
v_or_b32 v32, v32, v33
v_or3_b32 v32, v32, v34, v35
v_cmp_ne_u32 s[100:101], 0, v32
s_nop 0
s_cmp_eq_u64 s[100:101], 0
s_cbranch_scc1 K2_ret
s_sub_u32 s7, s7, 1
s_cbranch_scc0 K2_all
K2_ret:
s_mov_b64 exec, 1
buffer_store_dword v21, v22, s[52:55], s4 offen sc1
s_mov_b64 exec, -1
s_branch K2_end''' % (fs + 2, 1 << fs, 2 << fs, 3 << fs)).split('\n')]
```

```python
import sys, math, struct
from sched import *
import k2f, k2g

INF = 10 ** 6
TS = 24576
XB0 = 98304
FLAG = 147456
STAMP_OFF = 0x10000000
def f2u(f): return struct.unpack('<I', struct.pack('<f', f))[0]
def vr(b, n=4): return 'v[%d:%d]' % (b, b + n - 1)
def ar(b, n=4): return 'a[%d:%d]' % (b, b + n - 1)

class Prog:
    def __init__(self, dlat=8):
        self.mf = []; self.jobs = []; self.lastw = {}; self.rds = {}; self.dlat = dlat
        self.pre = []; self.phase = -1; self.occ = {}
    def _conf(self, ins):
        c = []
        for r in ins.rd:
            if r in self.lastw: c.append((self.lastw[r], 'raw', r))
        for r in ins.wr:
            if r in self.lastw: c.append((self.lastw[r], 'waw', r))
            for x in self.rds.get(r, ()): c.append((x, 'war', r))
        return c
    def _rec(self, ins, who):
        for r in ins.rd: self.rds.setdefault(r, []).append(who)
        for r in ins.wr: self.lastw[r] = who; self.rds[r] = []
    def mfma(self, d, a, b, c):
        ins = I('v_mfma_f32_16x16x32_bf16 %s, %s, %s, %s' % (d, a, b, c))
        m = len(self.mf)
        for x, ty, r in self._conf(ins):
            if isinstance(x, Job):
                lim = m - 1
                if ty == 'raw' and x.cls in ('valu', 'trans'): lim = m - 3
                x.hi = min(x.hi, lim); x.hard = min(x.hard, m - 1)
        self.mf.append(ins); self._rec(ins, m)
        return m
    def job(self, ins, lo=0, hi=INF, deps=(), first=False, pre=False, dlat=None, name=None, phase=None, dummy=False, **kw):
        ins = ins if isinstance(ins, I) else I(ins, **kw)
        j = Job(ins, lo, hi, deps, first)
        ph = self.phase if phase is None else phase
        nm = name or ins.txt
        c = self.occ.get((ph, nm), 0); self.occ[ph, nm] = c + 1
        j.key = (ph, nm, c); j.dummy = dummy
        seen = set(id(d) for d, _ in j.deps)
        for x, ty, r in self._conf(ins):
            if isinstance(x, Job):
                if id(x) in seen: continue
                seen.add(id(x))
                dist = 1
                if x.cls == 'valu' and j.cls == 'valu': dist = 0
                if 'permlane' in ins.op and ty == 'raw': dist = 2
                if x.cls == 's' and j.cls == 's': dist = 0
                if ty == 'war' and hasattr(x.ins, 'sdata'): dist = 2
                j.deps.append((x, dist))
            else:
                y = self.mf[x]
                j.lo0 = max(j.lo0, x)
                if ty in ('raw', 'waw'): j.lo = max(j.lo, x + (dlat if dlat is not None else self.dlat))
                elif r in y.cr and j.cls in ('valu', 'trans'): j.lo = max(j.lo, x + 3)
                else: j.lo = max(j.lo, x)
        self._rec(ins, j)
        if pre:
            j.gap = -10; self.pre.append(ins)
        self.jobs.append(j)
        return j
    def n(self): return len(self.mf)

RING = 208; ONES = 240; LACC = 192
def qacc(T, qt): return 64 + ((T >> 1) * 4 + qt) * 8 + 4 * (T & 1)
def qfrag(s, qt): return 64 + (s * 4 + qt) * 8
_lows = [32 + 4 * k for k in range(8)] + [16 + 4 * k for k in range(4)]
_ups = [64 + 8 * k + 4 for k in range(24)]
SBLK = {}; PBLK = {}; NEGM = {}
for kt in range(4):
    for qt in range(4): SBLK[kt, qt] = _lows[kt * 4 + qt] if kt < 2 else _ups[4 + (kt - 2) * 4 + qt]
for qt in range(4): NEGM[qt] = _ups[qt]
_rest = _ups[12:] + _lows[8:]
for i, key in enumerate([(bf, kp, qt) for bf in range(2) for kp in range(2) for qt in range(4)]): PBLK[key] = _rest[i]
def oacc(dt, qt): return dt * 16 + qt * 4
def late_blk(opt, s, qt):
    se = opt.get('se', 2)
    return SBLK[s - se, qt] if s >= se else None
def late_stores(opt):
    return ['buffer_store_dwordx4 %s, v10, s[36:39], s%d offen offset:%d%s' % (vr(late_blk(opt, s, qt)), 56 + 2 * qt + (s >> 2), (s & 3) * 1024, opt.get('opol', ' sc1'))
            for s in range(opt.get('se', 2), 6) for qt in range(4)]

TILES = [('W', n) for n in range(10)] + [('K', 0)]
for j in range(15): TILES += [('K', j + 1), ('V', j)]
TILES += [('V', 15)]
def slot_of(kind, j):
    if kind == 'W': return j % 4
    if kind == 'K': return 2 if j == 0 else (2 * j + 1) % 6
    return (2 * j + 4) % 6
WSTEP = 64 * 12288
LOOPS = [(1, 2, 7, 1), (13, 4, 40, 3)]

def wrap(reg, step, n):
    return ['s_add_u32 s10, %s, %d' % (reg, step), 's_sub_u32 s11, s10, %d' % (n * step), 's_min_u32 %s, s10, s11' % reg]

def k1_build(NQ, opt):
    P = Prog()
    nt = opt.get('kvp', ' nt') if opt.get('nt', 1) else ''
    wpol = opt.get('wpol', '')
    GL = 2 * NQ
    XV = NEGM[3] if opt.get('ls') else 12
    dmas = {}; plan = []
    def dma_group(tag, region, sc, lst, at, spc, deps, dummy=False):
        ins = [I(t, lds=region) for t in lst]
        dmas.setdefault(tag, []).extend(ins)
        if at is None:
            for t in sc: P.job(t, pre=True)
            for x in ins: P.job(x, pre=True)
        else: plan.append((at, len(plan), sc, ins, spc, deps, P.phase, dummy))
    def flush_plan():
        for at, _, sc, ins, spc, deps, ph, dummy in sorted(plan, key=lambda e: e[:2]):
            for t in sc: P.job(t, lo=max(at - 6, 0), phase=ph, dummy=dummy)
            for i, x in enumerate(ins):
                t = int(at + i * spc)
                P.job(x, lo=t, hi=t + 2, deps=deps, phase=ph, dummy=dummy)
        plan.clear()
    def dma_tile(tile, at, spc=0, deps=(), dyn=True):
        kind, j = tile; so = slot_of(kind, j) * TS
        reg = (so, so + TS, True, tile, None)
        for half in range(2):
            if kind == 'W':
                lst = ['buffer_load_dwordx4 v%d, s[24:27], s43 offen offset:%d%s lds' % (22 + t, 1024 * t, wpol) for t in range(3)]
                m0 = 's_add_u32 m0, s12, %d' % ((j & 1) * TS + half * 3072) if dyn else 's_add_u32 m0, s41, %d' % (so + half * 3072)
                Q0 = opt.get('q0', 0)
                sc = [m0, 's_add_u32 s43, s13, %d' % (half * 8 * 12288 + Q0 * WSTEP) if j >= Q0 else 's_mov_b32 s43, %d' % (half * 8 * 12288 + j * WSTEP)]
                if half:
                    if j >= Q0: sc += wrap('s13', WSTEP, 10 - Q0)
                    if dyn and (j & 1): sc += ['s_sub_u32 s12, s15, s12']
            else:
                srd = 's[28:31]' if kind == 'K' else 's[32:35]'
                lst = ['buffer_load_dwordx4 v%d, %s, s43 offen offset:%d%s lds' % (7 + t, srd, 1024 * t, nt) for t in range(3)]
                if dyn:
                    dst, off = ('s16', 's4') if kind == 'K' else ('s17', 's5')
                    sc = ['s_add_u32 m0, %s, %d' % (dst, half * 3072), 's_add_u32 s43, %s, %d' % (off, half * 3072)]
                    if half: sc += ['s_add_u32 %s, %s, %d' % (off, off, TS)]
                else:
                    sc = ['s_add_u32 m0, s41, %d' % (so + half * 3072), 's_mov_b32 s43, %d' % (j * TS + half * 3072)]
            dma_group(tile, reg, sc, lst, None if at is None else int(at + half * 3 * spc), spc, deps, dummy=(j > 15))
    def dma_wo(m, at, spc, deps=()):
        hh = m & 1
        lst = ['buffer_load_dwordx4 v%d, s[48:51], s43 offen offset:%d%s lds' % (XV + 2 + t, 1024 * t, opt.get('k2w', '')) for t in range(2)]
        if opt.get('k2') == 2:
            sc = ['s_add_u32 m0, s41, %d' % k2f.haddr(m), 's_mov_b32 s43, s14'] + wrap('s14', k2f.WSTEP, 48)
            return dma_group(('WO', m), k2g.hreg(m), sc, lst, at, spc, deps)
        sc = ['s_add_u32 m0, s41, %d' % k2f.haddr(m), 's_add_u32 s43, s14, %d' % (hh * 20480)]
        if hh: sc += wrap('s14', k2f.WSTEP, opt.get('win', 12))
        dma_group(('WO', m), k2f.hreg(m, m), sc, lst, at, spc, deps)
    def xreg(n, qt): return (XB0 + (n & 1) * 32768, XB0 + (n & 1) * 32768 + 32768, False, 'X%d_%d' % (n, qt), qt)
    def dma_x(n, qt, at, spc=0, deps=(), last=NQ - 1):
        half = qt >> 1
        lst = ['buffer_load_dwordx4 v%d, s[20:23], s43 offen offset:%d%s lds' % (25 + t, 1024 * t, wpol) for t in (2 * (qt & 1), 2 * (qt & 1) + 1)]
        Q0 = opt.get('q0', 0)
        sc = ['s_add_u32 m0, s42, %d' % ((n & 1) * 32768 + half * 4096), 's_add_u32 s43, s14, %d' % (half * 40960 + Q0 * 128) if n >= Q0 else 's_mov_b32 s43, %d' % (half * 40960 + n * 128)]
        if qt == last and n >= Q0: sc += wrap('s14', 128, 10 - Q0)
        dma_group('X%d_%d' % (n, qt), xreg(n, qt), sc, lst, at, spc, deps)
    def xfrag(n, u, qt): return (n & 1) * 32 + (u * 4 + qt) * 4
    def x_reads(n, qt, lo, hi, deps, pre=False):
        return [P.job(I('ds_read_b128 %s, v%d offset:%d' % (ar(xfrag(n, u, qt)), 20 + u, (n & 1) * 32768 + qt * 2048), lds=xreg(n, qt)), lo=lo, hi=hi, deps=deps, pre=pre) for u in range(2)]
    def reads_txt(n, g):
        kind, j = TILES[n]; so = slot_of(kind, j) * TS; rb = RING + (g % 4) * 8
        reg = (so, so + TS, True, TILES[n], None); out = []
        if kind == 'W':
            s, e = g >> 1, g & 1
            areg = 16 + (s & 1); o = (j & 1) * TS + 128 * (s >> 1) + 8 * e
            for u in range(2):
                for hh in range(2):
                    out.append(I('ds_read_b64_tr_b16 %s, v%d offset:%d' % (ar(rb + 4 * u + 2 * hh, 2), areg, o + 1536 * hh + 12288 * u), lds=reg))
        elif kind == 'K':
            kt, sp = g // 3, g % 3
            for e in range(2):
                out.append(I('ds_read_b128 %s, v%d offset:%d' % (ar(rb + 4 * e), 1 + e, 128 * sp + 6144 * kt), lds=reg))
        else:
            for kp in range(2):
                for hh in range(2):
                    out.append(I('ds_read_b64_tr_b16 %s, v%d offset:%d' % (ar(rb + 4 * kp + 2 * hh, 2), 3 + (g & 3), 128 * (g >> 2) + 6144 * hh + 12288 * kp), lds=reg))
        return out

    start = {}; pos = 0
    for n, (kind, j) in enumerate(TILES):
        start[n] = pos
        if kind == 'V' and not opt.get('ls'): pos += GL
        for g in range(12): start[n, g] = pos; pos += GL
    total = pos; start[42] = pos
    def prev_end(n, g, back):
        k = n * 12 + g - back
        if k < 0: return -1
        return start[k // 12, k % 12] + GL - 1

    def pstamp(k):
        if opt.get('sstamp'):
            for t in ('s_memrealtime s[%d:%d]' % (72 + 4 * k, 73 + 4 * k), 's_memtime s[%d:%d]' % (74 + 4 * k, 75 + 4 * k), 's_waitcnt lgkmcnt(0)'): P.job(t, pre=True)
    pstamp(1)
    for qt in range(4): dma_x(0, qt, None, last=3)
    dma_tile(('W', 0), None, dyn=False)
    EARLY = opt.get('early', 0)
    if EARLY:
        for qt in range(NQ): dma_x(1, qt, None)
        dma_tile(('W', 1), None, dyn=False)
    if EARLY > 1: dma_tile(('W', 2), None, dyn=False)
    for t in opt['mid']: P.job(t, pre=True)
    if opt.get('mw'):
        for t in ('v_lshlrev_b32 v40, 7, v0', 's_lshl_b32 s43, s2, 15', 's_add_u32 s43, s43, s50', 's_sub_u32 s43, s43, 7864320',
                  'buffer_load_dword v41, v40, s[48:51], s43 offen' + opt.get('wmpol', '')): P.job(t, pre=True)
    if opt.get('tlb'):
        n_ = opt['tlb']
        for t in ('v_mul_u32_u24 v40, %d, v29' % n_, 'v_add_u32 v40, v40, v30', 'v_mul_u32_u24 v40, %d, v40' % (393216 // (4 * n_)),
                  'v_subrev_u32 v41, %d, v30' % n_, 'v_not_b32 v41, v41', 'v_and_b32 v41, 0x40000000, v41', 'v_or_b32 v40, v40, v41',
                  'buffer_load_dword v41, v40, s[28:31], 0 offen nt', 'buffer_load_dword v42, v40, s[32:35], 0 offen nt'): P.job(t, pre=True)
    pstamp(2)
    P.job('; touch', pre=True)
    for t in ('s_waitcnt lgkmcnt(0)', 's_mul_i32 s45, s45, 0x9e3779b1', 's_add_u32 s45, s45, 0x7f4a7c15'): P.job(t, pre=True)
    pstamp(3)
    PW1 = opt.get('pw1', 1)
    if not EARLY:
        for qt in range(NQ): dma_x(1, qt, None)
        if PW1: dma_tile(('W', 1), None, dyn=False)
    P.job(WAIT(sum((dmas['X0_%d' % qt] for qt in range(NQ)), [])), pre=True)
    xr = {(0, qt): x_reads(0, qt, 0, 0, [], pre=True) for qt in range(NQ)}
    P.job(WAIT(dmas['W', 0]), pre=True)
    bar = {0: P.job('s_barrier', pre=True)}
    after_bar = {n: [('W', n + 2)] for n in range(1, 8)}
    after_bar[8] = [('K', 0), ('V', 0)]; after_bar[9] = [('K', 1), ('K', 2)]; after_bar[10] = [('V', 1)]; after_bar[11] = [('K', 3)]
    XB = opt.get('xb', 0)
    if XB >= 1: after_bar[8] = [('V', 0)]
    if XB >= 2: after_bar[9] = [('K', 2)]
    KD = opt.get('kd', 0) / 10.0
    first6 = [('K', 0), ('V', 0), ('K', 1), ('K', 2), ('V', 1), ('K', 3)]
    kat = [0]
    def dma_first(t, st, dep):
        at = max(st + 4, kat[0]); kat[0] = at + KD * GL
        dma_tile(t, at, KD * GL / 6.0, [dep], dyn=False)
    for n in range(12, 42):
        kind, j = TILES[n - 1]
        after_bar[n] = [('V', j + 1) if kind == 'K' else ('K', j + 4)]
    after_bar[41] = []
    waitjob = {}
    stamps = opt.get('stamps')
    def stamp(k, at):
        if stamps:
            a = P.job('s_memrealtime s[%d:%d]' % (72 + 4 * k, 73 + 4 * k), lo=at, hi=at); a.cls = 's'
            b = P.job('s_memtime s[%d:%d]' % (74 + 4 * k, 75 + 4 * k), lo=at, hi=at, deps=[(a, 0)]); b.cls = 's'
            P.job('s_waitcnt lgkmcnt(0)', lo=at, hi=at, deps=[(b, 0)])

    def softmax(j, sub_kt=0):
        for kt in range(4):
            for qt in range(NQ):
                sb = SBLK[kt, qt]; pb = PBLK[j & 1, kt >> 1, qt] + 2 * (kt & 1)
                if kt < sub_kt:
                    if opt.get('pk'):
                        for r in (0, 2): P.job('v_pk_add_f32 %s, %s, %s' % (vr(sb + r, 2), vr(sb + r, 2), vr(NEGM[qt], 2)))
                    else:
                        for r in range(4): P.job('v_add_f32 v%d, v%d, v%d' % (sb + r, sb + r, NEGM[qt]))
                for r in range(4): P.job('v_exp_f32 v%d, v%d' % (sb + r, sb + r))
                if opt.get('ls'):
                    for r in range(4): P.job('v_add_f32 v%d, v%d, v%d' % (12 + qt, 12 + qt, sb + r))
                for h in range(2): P.job('v_cvt_pk_bf16_f32 v%d, v%d, v%d' % (pb + h, sb + 2 * h, sb + 2 * h + 1))
    def advance(ring, lo, dummy):
        pos, dst, dl, regs = ('s6', 's16', 's8', (1, 2)) if ring == 'K' else ('s7', 's17', 's9', (3, 4, 5, 6))
        for t in ['s_add_u32 %s, s41, %s' % (dst, pos), 's_add_u32 s10, %s, %d' % (pos, 2 * TS), 's_sub_u32 s11, s10, %d' % (6 * TS),
                  's_min_u32 s10, s10, s11', 's_sub_u32 %s, s10, %s' % (dl, pos), 's_mov_b32 %s, s10' % pos]:
            P.job(t, lo=lo, dummy=dummy)
        for r in regs: P.job('v_add_u32 v%d, %s, v%d' % (r, dl, r), lo=lo, dummy=dummy)
    SUBKT = opt.get('subkt', 3)
    WROWS = 384 if opt.get('kmap', 1) else 192
    tmpblk = []
    for n, (kind, j) in enumerate(TILES):
        P.phase = n
        if kind == 'W' and n > 0 and n % 2 == 0:
            for r in (16, 17): P.job('v_xor_b32 v%d, 0xc000, v%d' % (r, r))
        if n == 11:
            for r in (1, 2): P.job('v_add_u32 v%d, %d, v%d' % (r, TS, r))
        if n == 10:
            for t in k2g.rotation(opt) if opt.get('k2') == 2 else (k2f.inner(opt, 's15', 's12', 's13') + '\n' + k2f.rotation(opt, 's15', 's12')).split('\n') + ['s_mul_i32 s14, s15, %d' % k2f.WSTEP, 's_lshl_b32 s15, s15, 10']:
                P.job(t, lo=start[10], hi=start[10, 8])
        if n == 10 and opt.get('wl'):
            P.job('s_mov_b32 s101, %d' % (-opt['wl'] * 128 * (1 + opt.get('wls', 0))), lo=start[10], hi=start[10, 8])
        if n == 40:
            if opt.get('ls'):
                for r in range(4): P.job('v_accvgpr_read_b32 v%d, a%d' % (XV + r, 248 + r), lo=start[40] - 2, hi=start[40])
            for m in range(9): dma_wo(m, start[40] + 2 + m * GL, GL / 2.0)
            for e in str(opt.get('lw', '')).split(','):
                if not e: continue
                w_, g_ = [int(z) for z in e.split('@')]
                dma_group('warm', None, ['s_mov_b32 m0, %d' % (FLAG + 1024), 's_mov_b32 s43, %d' % (w_ * WROWS * 1280)],
                          ['buffer_load_dword v11, s[48:51], s43 offen lds'], start[40] + g_ * GL, 1, [])
            flush_plan()
        if n == 41: advance('V', 0, False)
        if kind == 'V':
            for qt in range(NQ):
                for kp in range(0 if opt.get('ls') else 2):
                    P.mfma(ar(LACC + 4 * qt), ar(ONES), vr(PBLK[j & 1, kp, qt]), '0' if (j == 0 and kp == 0) else ar(LACC + 4 * qt))
            if j == 15:
                RL = NEGM[0]
                for qt in range(NQ):
                    if not opt.get('ls'): P.job('v_accvgpr_read_b32 v%d, a%d' % (RL + qt, LACC + 4 * qt), dlat=4); continue
                    t = 12 + qt; u = RL + qt
                    for x in ('v_mov_b32 v%(u)d, v%(t)d', 'v_permlane32_swap_b32 v%(t)d, v%(u)d', 'v_add_f32 v%(t)d, v%(t)d, v%(u)d', 'v_mov_b32 v%(u)d, v%(t)d',
                              'v_permlane16_swap_b32 v%(t)d, v%(u)d', 'v_add_f32 v%(u)d, v%(t)d, v%(u)d'): P.job(x % dict(t=t, u=u))
                for qt in range(1, NQ): P.job('v_add_f32 v11, v%d, v%d' % (RL if qt == 1 else 11, RL + qt))
                for qt in range(NQ): P.job('v_rcp_f32 v%d, v%d' % (RL + qt, RL + qt))
                P.job('s_mov_b32 s100, 0x%08x' % f2u(opt.get('limit', 2.0 ** 30)))
                P.job('v_cmp_nge_f32 s[100:101], s100, v11')
                P.job('s_or_b32 s100, s100, s101')
                P.job('v_mov_b32 v11, s100')
                freg = (FLAG, FLAG + 16, True, 'flag', None)
                fw = P.job(I('ds_write_b32 v%d, v11' % XV, lds=freg), hi=start[n, 4])
                w1 = P.job(WAIT([fw.ins]), lo=start[n, 6] - 1, hi=start[n, 6] - 1, deps=[fw])
                b1 = P.job('s_barrier', lo=start[n, 6] - 1, hi=start[n, 6] - 1, deps=[(w1, 0)])
                F = NEGM[1]
                fr = P.job(I('ds_read_b128 %s, v%d' % (vr(F), XV + 1), lds=freg), deps=[b1], hi=start[n, 7])
                w2 = P.job(WAIT([fr.ins]), lo=start[n, 9], deps=[(fr, 8)])
                P.job('v_or_b32 v%d, v%d, v%d' % (F, F, F + 1), deps=[w2])
                P.job('v_or3_b32 v%d, v%d, v%d, v%d' % (F, F, F + 2, F + 3), deps=[w2])
                P.job('v_readfirstlane_b32 s100, v%d' % F)
                for m in range(12, 15): dma_wo(m, start[n, 6] + 2 + (m - 12) * GL, GL / 2.0, [b1])
                flush_plan()
                tmpblk = [SBLK[a, b] for a in range(4) for b in range(4)][4 * (6 - opt.get('se', 2)):] + [PBLK[0, a, b] for a in range(2) for b in range(4)] + [NEGM[2]] + ([] if opt.get('ls') else [NEGM[3]])
                tt = {}
        for g in range(12):
            k = n * 12 + g
            st = start[n, g]
            pre = k < 3
            deps = [(bar[n], 0)]
            lo = max(prev_end(n, g, 4), 0)
            rj = [P.job(x, lo=lo, hi=lo + GL + 2, deps=deps, pre=pre) for x in reads_txt(n, g)]
            cover = [x.ins for x in rj]
            wd = list(rj)
            xq = g // 2 if (kind == 'W' and g % 2 == 0 and g // 2 < NQ and n + 1 <= 9) else None
            xd = g // 2 - 1 if (kind == 'W' and g % 2 == 0 and 0 <= g // 2 - 1 < NQ and n + 1 <= 9) else None
            if k == 0:
                for qt in range(NQ): cover += [x.ins for x in xr[0, qt]]
            if xd is not None: cover += [x.ins for x in xr[n + 1, xd]]; wd += xr[n + 1, xd]
            if g == 9 and n + 1 < 42: cover += dmas[TILES[n + 1]]
            if xq is not None and k > 0: cover += dmas['X%d_%d' % (n + 1, xq)]
            wj = P.job(WAIT(cover), lo=st - 1, hi=st - 1, deps=wd, first=True, pre=(k == 0), name='W%d' % g)
            waitjob[n, g] = wj
            if g == 0 and 7 <= n < 7 + XB:
                dma_first(('K', n - 7), st, P.job('s_barrier', lo=st, hi=st, deps=[(wj, 0)], name='XB'))
            if g == 1 and 11 <= n <= 40: advance('V' if kind == 'K' else 'K', st, n >= 40)
            if g == 9 and n + 1 < 42:
                bar[n + 1] = P.job('s_barrier', lo=st - 1, hi=st - 1, deps=[(wj, 0)])
                tl = after_bar[n + 1]
                span = opt.get('spw', 5) if n + 1 < 8 else opt.get('sp8', 3 if XB else 11) if n + 1 == 8 else opt.get('sp9', 11) if n + 1 == 9 else opt.get('spa', 11)
                for i, t in enumerate(tl):
                    if KD and t in first6: dma_first(t, st, bar[n + 1]); continue
                    spc = span * GL / (6.0 * len(tl))
                    dma_tile(t, st + 4 + i * 6 * spc + (opt.get('sh', 0) * GL if n >= 11 else 0), spc, [bar[n + 1]], dyn=(n < 7 or n >= 11))
                if opt.get('sw') and 1 <= n <= 6:
                    dma_group('warm', None, ['s_add_u32 s101, s101, 1280'], ['buffer_load_dword v18, v19, s[48:51], s101 offen%s' % opt.get('wmpol', '')], st + 1, 1, [])
                if opt.get('pfk') and 1 <= n <= 6 and n % 2 == opt.get('pfp', 0):
                    dma_group('warm', None, ['s_add_u32 s100, s100, %d' % (opt['pfk'] * 512)], ['buffer_load_dword v18, v31, s[28:31], s100 offen%s' % opt.get('pfpol', '')], st + 2, 1, [])
                if str(n) in str(opt.get('op', '')).split(','):
                    dma_group('warm', None, ['s_add_u32 s101, s101, 2048'], ['buffer_load_dword v18, v19, s[36:39], s101 offen%s' % opt.get('wmpol', '')], st + 1, 1, [])
                if str(n) in str(opt.get('wp', '')).split(','):
                    if n >= 9: dma_group('warm', None, ['s_mov_b32 m0, %d' % (FLAG + 1024), 's_add_u32 s101, s101, %d' % (WROWS * 1280)],
                                         ['buffer_load_dword v11, s[48:51], s101 offen%s lds' % opt.get('wmpol', '')], st + 1, 1, [])
                    else: dma_group('warm', None, ['s_add_u32 s101, s101, %d' % (WROWS * 1280)],
                                    ['buffer_load_dword v18, v11, s[48:51], s101 offen%s' % opt.get('wmpol', '')], st + 1, 1, [])
                if opt.get('wl') and 13 <= n < 40 and (n - 13) % 4 in [int(z) for z in str(opt.get('wlp', 1))]:
                    dma_group('warm', None, ['s_add_u32 s101, s101, %d' % (opt['wl'] * 128), 's_min_u32 s100, s101, 0x7ff00000'],
                              ['buffer_load_dword a245, v11, s[48:51], s100 offen%s' % opt.get('wmpol', '')], st + 1, 1, [])
                if n == 40:
                    for m in range(9, 12): dma_wo(m, st + 2 + (m - 9) * GL, GL / 2.0, [bar[n + 1]])
                if n >= 9: flush_plan()
            if xq is not None:
                wx = wj
                if k == 0: wx = P.job(WAIT(dmas['X1_0']), lo=GL - 3, hi=GL - 3, name='WX')
                xr[n + 1, xq] = x_reads(n + 1, xq, st - 1, st + GL + 2, [(wx, 0)])
            if k == 0:
                sp0 = GL / 2.0; at = 1; P.phase = -5
                if not PW1: sp0 = GL / 3.0; dma_tile(('W', 1), at, sp0, dyn=False); at += 6 * sp0
                for qt in range(NQ): dma_x(2, qt, at, sp0); at += 2 * sp0
                if EARLY < 2: dma_tile(('W', 2), at, sp0, dyn=False); at += 6 * sp0
                x3at = at; P.phase = 0
            if xd is not None and n + 3 <= 9:
                if n == 0:
                    x3at = max(x3at, st + 4); dma_x(3, xd, x3at, 2, [wj]); x3at += 4
                else: dma_x(n + 3, xd, st + 4, GL if xd < 3 else GL // 2, [wj])
            sl = str(opt.get('sl', '0,10,12,41')).split(',')
            if g == 0 and str(n) in sl: stamp(1 + sl.index(str(n)), st)
            if opt.get('ktrace') and g == 0 and n <= 40:
                a_ = P.job('s_memrealtime s[90:91]', lo=st, hi=st); a_.cls = 's'
                b_ = P.job('s_waitcnt lgkmcnt(0)', lo=st, hi=st, deps=[(a_, 0)])
                P.job('s_lshl_b32 s90, s90, 6', lo=st, hi=st + 1, deps=[(b_, 0)])
                P.job('s_or_b32 s90, s90, s98', lo=st, hi=st + 1)
                P.job('v_writelane_b32 v11, s90, s90', lo=st, hi=st + 2)
                P.job('s_add_u32 s98, s98, 1', lo=st, hi=st + 3)
                if n == 40: P.job('v_accvgpr_write_b32 a244, v11')
            rb = RING + (g % 4) * 8
            for qt in range(NQ):
                for e in range(2):
                    A = ar(rb + 4 * e)
                    if kind == 'W':
                        d = vr(qacc(g, qt)); P.mfma(d, A, ar(xfrag(n, e, qt)), '0' if (n == 0 and e == 0) else d)
                    elif kind == 'K':
                        kt, sp = g // 3, g % 3
                        d = vr(SBLK[kt, qt]); c = d
                        if sp == 0 and e == 0: c = '0' if (j == 0 and kt < SUBKT) else vr(NEGM[qt])
                        P.mfma(d, A, vr(qfrag(2 * sp + e, qt)), c)
                    else:
                        d = ar(oacc(g, qt)); P.mfma(d, A, vr(PBLK[j & 1, e, qt]), '0' if (j == 0 and e == 0) else d)
            if n == 9:
                for qt in range(NQ):
                    b = qacc(g, qt)
                    if opt.get('pk'):
                        for r in (0, 2): P.job('v_pk_mul_f32 %s, s[44:45], %s op_sel_hi:[0,1]' % (vr(b + r, 2), vr(b + r, 2)), dlat=5)
                    else:
                        for r in range(4): P.job('v_mul_f32 v%d, s44, v%d' % (b + r, b + r), dlat=5)
                    for h in range(2): P.job('v_cvt_pk_bf16_f32 v%d, v%d, v%d' % (qfrag(g >> 1, qt) + 2 * (g & 1) + h, b + 2 * h, b + 2 * h + 1))
            if n == 10 and g == 2:
                for qt in range(NQ):
                    sb = SBLK[0, qt]; t = PBLK[1, 0, qt]
                    P.job('v_max3_f32 v%d, v%d, v%d, v%d' % (t, sb, sb + 1, sb + 2), dlat=5)
                    P.job('v_max_f32 v%d, v%d, v%d' % (t, t, sb + 3), dlat=5)
                    P.job('v_mov_b32 v%d, v%d' % (t + 1, t))
                    P.job('v_permlane32_swap_b32 v%d, v%d' % (t, t + 1))
                    P.job('v_max_f32 v%d, v%d, v%d' % (t, t, t + 1))
                    P.job('v_mov_b32 v%d, v%d' % (t + 1, t))
                    P.job('v_permlane16_swap_b32 v%d, v%d' % (t, t + 1))
                    P.job('v_max_f32 v%d, v%d, v%d' % (t, t, t + 1))
                    for r in range(4): P.job('v_sub_f32 v%d, 0, v%d' % (NEGM[qt] + r, t))
            if n == 41:
                for qt in range(NQ):
                    if (g & 1) == 0:
                        tt[qt] = t = t0 = late_blk(opt, g >> 1, qt) or tmpblk.pop(0)
                        if (g >> 1) < opt.get('se', 2): tmpblk.append(t)
                    else: t0 = tt[qt]; t = tmpblk.pop(0); tmpblk.append(t)
                    for r in range(4): P.job('v_accvgpr_read_b32 v%d, a%d' % (t + r, oacc(g, qt) + r), dlat=5)
                    if opt.get('pk'):
                        for r in (0, 2): P.job('v_pk_mul_f32 %s, %s, %s op_sel:[0,%d] op_sel_hi:[1,%d]' % (vr(t + r, 2), vr(t + r, 2), vr(NEGM[0] + (qt & 2), 2), qt & 1, qt & 1))
                    else:
                        for r in range(4): P.job('v_mul_f32 v%d, v%d, v%d' % (t + r, t + r, NEGM[0] + qt))
                    for h in range(2): P.job('v_cvt_pk_bf16_f32 v%d, v%d, v%d' % (t0 + 2 * (g & 1) + h, t + 2 * h, t + 2 * h + 1))
                    if (g & 1) and (g >> 1) < opt.get('se', 2):
                        s = g >> 1
                        P.job('buffer_store_dwordx4 %s, v10, s[36:39], s%d offen offset:%d%s' % (vr(t0), 56 + 2 * qt + (s >> 2), (s & 3) * 1024, opt.get('opol', ' sc1')))
        if kind == 'K': softmax(j, SUBKT if j == 0 else 0)
    assert P.n() == total
    w0i = waitjob[0, 0].ins
    P.pre.remove(w0i); P.pre.append(w0i)
    P.start = start
    P.wo = {m: dmas['WO', m] for m in range(15)}
    return P

def k1_body(NQ, opt):
    dense = opt.get('dense', 5)
    def run(P, regions):
        slots_fn = lambda g: dense if g >= P.start[41, 1] else 2
        return schedule(P.mf, P.jobs, verbose=opt.get('verbose'), slots_fn=slots_fn, regions=regions)
    P1 = k1_build(NQ, opt); run(P1, ())
    st = P1.start
    P = k1_build(NQ, opt)
    regions = []
    for n0, pn, n1, ref in LOOPS:
        L0 = st[n0]; T = st[n0 + pn] - L0; L1 = st[n1]
        regions.append((L0, L1))
        cls = {}
        for j in P1.jobs:
            if L0 + ref * T <= j.gap < L0 + (ref + 1) * T:
                ph, nm, c = j.key
                k = ((ph - n0) % pn, nm, c)
                assert k not in cls, ('duplicate class', k)
                cls[k] = (j.gap - L0 - ((ph - n0) // pn) * T, j.ord)
        for j in P.jobs:
            if j.gap is not None: continue
            ph, nm, c = j.key
            if not (n0 - pn <= ph < n1 + pn): continue
            k = ((ph - n0) % pn, nm, c)
            if k in cls:
                p = L0 + ((ph - n0) // pn) * T + cls[k][0]
                if L0 <= p < L1: j.pin = (p, cls[k][1]); j.lo = j.hi = p
                elif p < L0: j.hi = min(j.hi, L0 - 1)
                else: j.lo = max(j.lo, L1)
            else:
                assert not (n0 <= ph < n1), ('no class for', j.key)
        for j in P.jobs:
            if j.gap is None and j.pin is None:
                if j.key[0] < n0: j.hi = min(j.hi, L0 - 1) if j.lo < L1 else j.hi
                elif j.key[0] >= n1: j.lo = max(j.lo, L1)
    for j in P.jobs:
        if j.dummy and j.pin is None: j.gap = -10
    body, left, over = run(P, regions)
    errs = verify(P.jobs)
    for e in errs[:20]: print('ERR', e)
    assert not errs
    marks = []
    idx = {id(m): i for i, m in enumerate(P.mf)}
    seq = []
    want = {}
    for li, (n0, pn, n1, ref) in enumerate(LOOPS):
        L0 = st[n0]; T = st[n0 + pn] - L0; L1 = st[n1]
        ex = (L1 - L0) % T
        for p in range(L0, L1 + 1, T):
            want.setdefault(p, []).append((li, 'it'))
            if ex and p + ex <= L1: want.setdefault(p + ex, []).append((li, 'ex'))
    for x in body:
        i = idx.get(id(x))
        if i is not None and i in want:
            for li, w in want[i]:
                m = I('; L%d %s' % (li, w)); m.mark = (li, w); seq.append(m)
        seq.append(x)
    return P.pre + seq + left, over, P.wo

def fold(seq, tag):
    out = list(seq)
    for li, (n0, pn, n1, ref) in enumerate(LOOPS):
        pos = [i for i, x in enumerate(out) if getattr(x, 'mark', None) == (li, 'it')]
        exs = [i for i, x in enumerate(out) if getattr(x, 'mark', None) == (li, 'ex')]
        segs = [out[pos[i]:pos[i + 1]] for i in range(len(pos) - 1)]
        end = pos[-1]
        if exs: segs.append(out[pos[-1]:exs[-1]]); end = exs[-1]
        for s in segs[1:]:
            for a, b in zip(segs[0], s): assert a.txt == b.txt, (tag, li, a.txt, b.txt)
            assert len(s) == len(segs[0]) or (exs and s is segs[-1])
        nit = len(pos) - 1
        lab = '%s_L%d' % (tag, li)
        body = segs[0][1:]
        if exs:
            e = exs[0] - pos[0] - 1
            body = body[:e] + [I('s_cmp_eq_u32 s3, %d' % nit), I('s_cbranch_scc1 %s_x' % lab), I('s_add_u32 s3, s3, 1')] + body[e + 1:] + [I('s_branch %s' % lab), I('%s_x:' % lab)]
        else:
            body = body + [I('s_add_u32 s3, s3, 1'), I('s_cmp_lg_u32 s3, %d' % nit), I('s_cbranch_scc1 %s' % lab)]
        out = out[:pos[0]] + [I('s_mov_b32 s3, 0'), I('%s:' % lab)] + body + out[end + 1:]
    return out

def unify(seq):
    for li in range(len(LOOPS)):
        pos = [i for i, x in enumerate(seq) if getattr(x, 'mark', None) == (li, 'it')]
        exs = [i for i, x in enumerate(seq) if getattr(x, 'mark', None) == (li, 'ex')]
        ends = pos[1:] + ([exs[-1]] if exs else [])
        segs = [seq[a:b] for a, b in zip(pos, ends)]
        for k in range(len(segs[0])):
            col = [s[k] for s in segs if k < len(s)]
            if getattr(col[0], 'cover', None) is None: continue
            c = {}
            for x in col:
                for nm, v in re.findall(r'(vmcnt|lgkmcnt)\((\d+)\)', x.txt): c[nm] = min(c.get(nm, 99), int(v))
            t = 's_waitcnt ' + ' '.join('%s(%d)' % (nm, c[nm]) for nm in ('vmcnt', 'lgkmcnt') if nm in c) if c else 's_nop 0'
            if len(set(x.txt for x in col)) > 1: print('   unified', sorted(set(x.txt for x in col)), '->', t)
            for x in col: x.txt = t; x.parse()

def k1_prologue(opt):
    L = []
    a = lambda t: L.extend(I(x) for x in t.strip().split('\n'))
    a('''s_cmp_lt_u32 s2, 256
s_cbranch_scc1 K1_go
s_endpgm
K1_go:
s_load_dwordx8 s[4:11], s[0:1], 0
s_load_dwordx2 s[18:19], s[0:1], 56
s_load_dwordx2 s[48:49], s[0:1], 32''')
    if opt.get('stamps'): a('s_memrealtime s[64:65]\ns_memtime s[68:69]')
    a('''v_lshrrev_b32 v29, 6, v0
v_and_b32 v30, 63, v0
v_readfirstlane_b32 s40, v29''')
    if opt.get('map', 0) == 0:
        a('s_and_b32 s46, s2, 7\ns_lshr_b32 s47, s2, 3')
    else:
        a('''s_and_b32 s46, s2, 1
s_lshl_b32 s46, s46, 2
s_bfe_u32 s52, s2, 0x20003
s_or_b32 s46, s46, s52
s_bfe_u32 s47, s2, 0x20001
s_lshl_b32 s47, s47, 3
s_lshr_b32 s52, s2, 5
s_or_b32 s47, s47, s52''')
    if not opt.get('qrot', 1): a('s_mov_b32 s13, 0')
    elif opt.get('map', 0) == 0: a('s_mul_i32 s52, s47, 26\ns_lshr_b32 s52, s52, 8\ns_mul_i32 s52, s52, 10\ns_sub_u32 s13, s47, s52')
    else: a('''s_bfe_u32 s53, s2, 0x10003
s_mul_i32 s53, s53, ''' + str(opt.get('qa', 5 - opt.get('q0', 0) // 2)) + '''
s_add_u32 s52, s52, s53
s_bfe_u32 s53, s2, 0x10004
s_mul_i32 s53, s53, ''' + str(opt.get('qb', 2)) + '''
s_add_u32 s52, s52, s53
s_sub_u32 s53, s52, %d
s_min_u32 s13, s52, s53''' % (10 - opt.get('q0', 0)))
    a('s_lshl_b32 s14, s13, 7\ns_mul_i32 s13, s13, %d' % WSTEP)
    a('''v_lshrrev_b32 v31, 3, v30
v_and_b32 v32, 6, v31
v_and_b32 v33, 7, v30
v_xor_b32 v32, v32, v33
v_lshl_add_u32 v31, v29, 6, v31
v_mul_u32_u24 v31, 1280, v31
v_lshl_add_u32 v25, v32, 4, v31
v_add_u32 v26, 9216, v25
v_add_u32 v27, 18432, v25
v_add_u32 v28, 27648, v25''')
    a('v_mul_u32_u24 v34, 6144, v29\nv_lshlrev_b32 v35, 4, v29')
    for t in range(3):
        a('''v_add_u32 v31, %d, v30
v_mul_u32_u24 v32, 171, v31
v_lshrrev_b32 v32, 12, v32
v_mul_u32_u24 v33, 24, v32
v_sub_u32 v33, v31, v33
v_lshlrev_b32 v36, 1, v32
v_and_b32 v36, 4, v36
v_xor_b32 v33, v33, v36
v_add_u32 v36, v35, v32
v_mul_u32_u24 v36, 12288, v36
v_lshl_add_u32 v33, v33, 4, v36
v_subrev_u32 v%d, %d, v33
v_and_b32 v32, 6, v32
v_xor_b32 v32, v32, v30
v_lshl_add_u32 v%d, v32, 4, v34''' % (64 * t, 22 + t, 1024 * t, 7 + t))
    a('''s_mul_i32 s41, s40, 6144
s_lshl_b32 s42, s40, 13
s_add_u32 s42, s42, %d
s_mul_i32 s52, s46, 307200
s_mul_i32 s53, s47, 384
s_lshl_b32 s54, s46, 5
s_add_u32 s54, s54, s47
s_mul_i32 s54, s54, 393216
s_mul_i32 s55, s46, 2880
s_mul_i32 s56, s47, 6
s_add_u32 s55, s55, s56
s_lshl_b32 s55, s55, 10
s_mov_b32 s22, 307200
s_mov_b32 s23, 0x00020000
s_sub_u32 s26, 7864320, s53
s_mov_b32 s27, 0x00020000
s_mov_b32 s30, 393216
s_mov_b32 s31, 0x00020000
s_mov_b32 s34, 393216
s_mov_b32 s35, 0x00020000
s_sub_u32 s38, 23592960, s55
s_mov_b32 s39, 0x00020000
s_waitcnt lgkmcnt(0)
s_add_u32 s20, s4, s52
s_addc_u32 s21, s5, 0
s_add_u32 s24, s10, s53
s_addc_u32 s25, s11, 0
s_add_u32 s28, s6, s54
s_addc_u32 s29, s7, 0
s_add_u32 s32, s8, s54
s_addc_u32 s33, s9, 0
s_add_u32 s36, s18, s55
s_addc_u32 s37, s19, 0''' % XB0)
    mid = '''s_add_u32 s52, s18, %d
s_addc_u32 s53, s19, 0
s_load_dword s45, s[52:53], 1024
s_mov_b32 s54, 2048
s_mov_b32 s55, 0x00020000
''' % k2f.OBYTES + k2f.inner(opt, 's56', 's57', 's58') + '''
s_lshl_b32 s59, s56, 6
''' + ('s_lshl_b32 s57, s57, 1' if opt.get('k2') == 2 else k2f.outer(opt, 's56', 's57', 's58')) + '''
s_lshl_b32 s57, s57, 7
s_add_u32 s48, s48, s57
s_addc_u32 s49, s49, 0
s_sub_u32 s50, 7864320, s57
s_mov_b32 s51, 0x00020000
s_mov_b32 s101, %d
v_lshrrev_b32 v31, 4, v0
v_min_u32 v31, 14, v31
v_mul_u32_u24 v31, 196608, v31
v_and_b32 v32, 15, v0
v_lshl_add_u32 v19, v32, 7, v31
''' % (-2048 if opt.get('op') else -(384 if opt.get('kmap', 1) else 192) * 1280) + '''v_lshrrev_b32 v31, 3, v30
v_and_b32 v32, 6, v31
v_and_b32 v33, 7, v30
v_xor_b32 v32, v32, v33
v_mul_u32_u24 v33, 1536, v29
v_add_u32 v31, v33, v31
v_mul_u32_u24 v31, 1280, v31
v_lshl_add_u32 v14, v32, 4, v31
v_add_u32 v15, 9216, v14
v_add3_u32 v11, v33, s59, v30
v_mul_u32_u24 v11, 1280, v11
'''
    if opt.get('k2') == 2:
        mid = mid.replace('s[52:53], 1024', 's[52:53], 32768').replace('s_mov_b32 s54, 2048', 's_mov_b32 s54, 36864')
        mid = mid[:mid.index('s_mov_b32 s101')] + k2g.wo_addr(14, 30, 29, 31) + '\n'
    mid += '''v_lshrrev_b32 v31, 4, v30
v_and_b32 v32, 15, v30
v_and_b32 v33, 6, v32
v_xor_b32 v33, v33, v31
v_lshlrev_b32 v33, 4, v33
v_lshl_add_u32 v20, v32, 7, v33
v_add_u32 v20, s42, v20
v_xor_b32 v21, 64, v20
v_mul_u32_u24 v1, 384, v32
v_add_u32 v1, v1, v33
v_add_u32 v1, %d, v1
v_xor_b32 v2, 64, v1
v_bfe_u32 v32, v30, 2, 2
v_lshl_add_u32 v33, v31, 3, v32
v_mul_u32_u24 v33, 384, v33
v_lshlrev_b32 v32, 1, v32
v_and_b32 v32, 4, v32
v_and_b32 v34, 3, v30
v_xor_b32 v32, v32, v34
v_lshl_add_u32 v16, v32, 4, v33
v_xor_b32 v17, 64, v16
v_lshrrev_b32 v31, 2, v30
v_and_b32 v32, 6, v31
v_lshrrev_b32 v33, 1, v34
v_xor_b32 v32, v32, v33
v_lshlrev_b32 v32, 4, v32
v_and_b32 v33, 1, v30
v_lshl_add_u32 v32, v33, 3, v32
v_mul_u32_u24 v31, 384, v31
v_add_u32 v3, v31, v32
v_add_u32 v3, %d, v3
v_xor_b32 v4, 32, v3
v_xor_b32 v5, 64, v3
v_xor_b32 v6, 96, v3
v_mul_u32_u24 v10, 786432, v29
v_lshl_add_u32 v10, v30, 4, v10
v_lshlrev_b32 v12, 2, v29
v_add_u32 v12, %d, v12
v_mov_b32 v13, %d
v_mov_b32 v31, 0x3f803f80
v_accvgpr_write_b32 a240, v31
v_accvgpr_write_b32 a241, v31
v_accvgpr_write_b32 a242, v31
v_accvgpr_write_b32 a243, v31
s_mov_b32 s44, 0x%08x
s_mov_b32 s4, 98304
s_mov_b32 s5, 49152
s_mov_b32 s6, 73728
s_mov_b32 s7, 49152
s_add_u32 s12, s41, 49152
s_add_u32 s15, s41, s12''' % (2 * TS, 2 * TS, FLAG, FLAG, f2u(math.log2(math.e) / math.sqrt(192.0)))
    if opt.get('sw'):
        mid += '''
v_mul_u32_u24 v31, 60, v29
v_add_u32 v31, v31, v30
v_lshlrev_b32 v19, 7, v31
v_subrev_u32 v31, 10, v30
v_not_b32 v31, v31
v_and_b32 v31, 0x40000000, v31
v_or_b32 v19, v19, v31
s_mul_i32 s101, s2, 30720
s_add_u32 s101, s101, s50
s_sub_u32 s101, s101, %d''' % (7864320 + 1280)
    if opt.get('wl'):
        mid += '''
s_bfe_u32 s56, s2, 0x20001
s_lshl_b32 s56, s56, 5
s_lshr_b32 s57, s2, 3
s_add_u32 s56, s56, s57
s_mul_i32 s56, s56, 480
v_mul_u32_u24 v31, 120, v29
v_add3_u32 v31, v31, v30, s56
s_sub_u32 s56, s50, 7864320
v_lshl_add_u32 v11, v31, 7, s56
v_subrev_u32 v31, %d, v30
v_not_b32 v31, v31
v_and_b32 v31, 0x40000000, v31
v_or_b32 v11, v11, v31''' % opt['wl']
    if opt.get('pfk'):
        mid += '''
v_mul_u32_u24 v31, %d, v29
v_add_u32 v31, v31, v30
v_lshlrev_b32 v31, 7, v31
v_subrev_u32 v32, %d, v30
v_not_b32 v32, v32
v_and_b32 v32, 0x40000000, v32
v_or_b32 v31, v31, v32
s_mov_b32 s100, %d''' % (opt['pfk'], opt['pfk'], -opt['pfk'] * 512)
    mid = mid.split('\n')
    for qt in range(4):
        for hh in range(2): mid.append('s_mov_b32 s%d, %d' % (56 + 2 * qt + hh, qt * 196608 + hh * 4096))
    if opt.get('ktrace'): mid.append('s_mov_b32 s98, 0')
    if opt.get('ls'):
        for r in range(4): mid += ['v_accvgpr_write_b32 a%d, v%d' % (248 + r, 12 + r), 'v_mov_b32 v%d, v%d' % (NEGM[3] + r, 12 + r), 'v_mov_b32 v%d, 0' % (12 + r)]
    mid += ['s_cmp_eq_u32 s40, 3', 's_cselect_b32 s62, 0x7ff00000, s62', 's_cselect_b32 s63, 0x7ff00000, s63']
    return L, mid

def stamp_code(label, nst, tmp=96):
    L = []
    a = lambda t: L.extend(I(x) for x in t.strip().split('\n'))
    a('s_waitcnt vmcnt(0)\ns_memrealtime s[66:67]\ns_memtime s[70:71]\ns_memrealtime s[%d:%d]\ns_memtime s[%d:%d]\ns_waitcnt lgkmcnt(0)' % (72 + 4 * nst, 73 + 4 * nst, 74 + 4 * nst, 75 + 4 * nst))
    a('s_mov_b64 s[72:73], s[64:65]\ns_mov_b64 s[74:75], s[68:69]')
    a('''s_add_u32 s96, s18, 0x%x
s_addc_u32 s97, s19, 0
s_mov_b32 s98, 0x1000000
s_mov_b32 s99, 0x00020000
s_cmp_lg_u32 s40, 0
s_cbranch_scc1 %s
s_lshl_b32 s4, s2, 8
s_add_u32 s4, s4, 0x100000
v_lshlrev_b32 v11, 2, v0
v_lshlrev_b32 v14, 6, v255
s_nop 1
buffer_store_dword v14, v11, s[96:99], s4 offen
s_mul_i32 s4, s2, 128
v_mov_b32 v11, s4
s_mov_b64 exec, 1''' % (STAMP_OFF, label))
    regs = [64, 66, 68, 70] + [72 + 2 * i for i in range(2 * nst + 2)]
    for i, r in enumerate(regs):
        a('v_mov_b32 v14, s%d\nv_mov_b32 v15, s%d\nbuffer_store_dwordx2 v[14:15], v11, s[96:99], 0 offen offset:%d\ns_nop 1' % (r, r + 1, 8 * i))
    a('s_waitcnt vmcnt(0)\n%s:' % label)
    return L

def k1_fallback(opt):
    L = []
    a = lambda t: L.extend(I(x) for x in t.strip().split('\n'))
    MX = 12
    a('K1_fb:\ns_waitcnt vmcnt(0) lgkmcnt(0)\ns_barrier')
    a('s_sub_u32 s6, s6, %d\ns_sub_u32 s7, s7, %d' % (4 * TS, 4 * TS))
    for r in (1, 2): a('v_subrev_u32 v%d, s6, v%d' % (r, r))
    for r in (3, 4, 5, 6): a('v_subrev_u32 v%d, s7, v%d' % (r, r))
    for qt in range(4):
        a('v_mov_b32 v%d, 0xff7fffff' % (MX + qt))
        for r in range(4): a('v_mov_b32 v%d, 0' % (NEGM[qt] + r))
    a('s_mov_b32 s4, 0\nK1_fb_pass:\ns_mov_b32 s5, 0')
    for i in range(208): a('v_accvgpr_write_b32 a%d, 0' % i)
    a('K1_fb_loop:')
    def load(srd):
        for half in range(2):
            a('s_add_u32 m0, s41, %d\ns_add_u32 s43, s5, %d' % (4 * TS + half * 3072, half * 3072))
            for t in range(3): a('buffer_load_dwordx4 v%d, %s, s43 offen offset:%d lds' % (7 + t, srd, 1024 * t))
        a('s_waitcnt vmcnt(0)\ns_barrier')
    load('s[28:31]')
    for kt in range(4):
        for s in range(6): a('ds_read_b128 %s, v%d offset:%d' % (ar(RING + 4 * s), 1 + (s & 1), 128 * (s >> 1) + 6144 * kt))
        a('s_waitcnt lgkmcnt(0)')
        for qt in range(4):
            for s in range(6):
                d = vr(SBLK[kt, qt])
                a('v_mfma_f32_16x16x32_bf16 %s, %s, %s, %s' % (d, ar(RING + 4 * s), vr(qfrag(s, qt)), vr(NEGM[qt]) if s == 0 else d))
    a('s_nop 7\ns_cmp_lg_u32 s4, 0\ns_cbranch_scc1 K1_fb_pv')
    for kt in range(4):
        for qt in range(4):
            sb = SBLK[kt, qt]
            a('v_max3_f32 v%d, v%d, v%d, v%d\nv_max3_f32 v%d, v%d, v%d, v%d' % (MX + qt, MX + qt, sb, sb + 1, MX + qt, MX + qt, sb + 2, sb + 3))
    a('s_branch K1_fb_next\nK1_fb_pv:\ns_barrier')
    load('s[32:35]')
    for kt in range(4):
        for qt in range(4):
            sb = SBLK[kt, qt]
            for r in range(4): a('v_exp_f32 v%d, v%d' % (sb + r, sb + r))
    a('s_nop 0')
    for kt in range(4):
        for qt in range(4):
            sb = SBLK[kt, qt]; pb = PBLK[0, kt >> 1, qt] + 2 * (kt & 1)
            for h in range(2): a('v_cvt_pk_bf16_f32 v%d, v%d, v%d' % (pb + h, sb + 2 * h, sb + 2 * h + 1))
    a('s_nop 1')
    for qt in range(4):
        for kp in range(2): a('v_mfma_f32_16x16x32_bf16 %s, %s, %s, %s' % (ar(LACC + 4 * qt), ar(ONES), vr(PBLK[0, kp, qt]), ar(LACC + 4 * qt)))
    for dt in range(12):
        for kp in range(2):
            for hh in range(2): a('ds_read_b64_tr_b16 %s, v%d offset:%d' % (ar(RING + 4 * kp + 2 * hh, 2), 3 + (dt & 3), 128 * (dt >> 2) + 6144 * hh + 12288 * kp))
        a('s_waitcnt lgkmcnt(0)')
        for qt in range(4):
            for kp in range(2): a('v_mfma_f32_16x16x32_bf16 %s, %s, %s, %s' % (ar(oacc(dt, qt)), ar(RING + 4 * kp), vr(PBLK[0, kp, qt]), ar(oacc(dt, qt))))
    a('''K1_fb_next:
s_nop 7
s_barrier
s_add_u32 s5, s5, %d
s_cmp_lt_u32 s5, %d
s_cbranch_scc1 K1_fb_loop
s_cmp_lg_u32 s4, 0
s_cbranch_scc1 K1_fb_out''' % (TS, 16 * TS))
    for qt in range(4):
        t = MX + qt; u = PBLK[0, 0, 0]
        a('''v_mov_b32 v%d, v%d
s_nop 1
v_permlane32_swap_b32 v%d, v%d
v_max_f32 v%d, v%d, v%d
v_mov_b32 v%d, v%d
s_nop 1
v_permlane16_swap_b32 v%d, v%d
v_max_f32 v%d, v%d, v%d''' % (u, t, t, u, t, t, u, u, t, t, u, t, t, u))
        for r in range(4): a('v_sub_f32 v%d, 0, v%d' % (NEGM[qt] + r, t))
    a('s_mov_b32 s4, 1\ns_branch K1_fb_pass\nK1_fb_out:')
    for qt in range(4):
        a('v_accvgpr_read_b32 v11, a%d\ns_nop 0\nv_rcp_f32 v11, v11\ns_nop 0' % (LACC + 4 * qt))
        for s in range(6):
            t = 16 + 8 * (s & 1); d = late_blk(opt, s, qt) or t
            for e in range(2):
                for r in range(4): a('v_accvgpr_read_b32 v%d, a%d' % (t + 4 * e + r, oacc(2 * s + e, qt) + r))
            for r in range(8): a('v_mul_f32 v%d, v%d, v11' % (t + r, t + r))
            for h in range(4): a('v_cvt_pk_bf16_f32 v%d, v%d, v%d' % (d + h, t + 2 * h, t + 2 * h + 1))
            if d == t: a('buffer_store_dwordx4 %s, v10, s[36:39], s%d offen offset:%d%s' % (vr(t), 56 + 2 * qt + (s >> 2), (s & 3) * 1024, opt.get('opol', ' sc1')))
    a('s_waitcnt vmcnt(0)\ns_branch K1_done')
    return L

def finish(seq, name, verbose=False):
    resolve_waits(seq)
    if any(hasattr(x, 'mark') for x in seq): unify(seq)
    seq, nn = fix_hazards(seq, verbose)
    errs, info = check(seq, name)
    for e in errs[:20]: print('ERR', e)
    assert not errs, '%d errors' % len(errs)
    return seq, info, nn

def sizes(seq):
    import subprocess, tempfile, os
    ins = [x for x in seq if x.kind != 'label']
    d = tempfile.mkdtemp()
    open(d + '/a.s', 'w').write('.amdgcn_target "amdgcn-amd-amdhsa--gfx950"\n.text\n' + '\n'.join(x.txt for x in seq) + '\ns_endpgm\n')
    subprocess.check_call(['clang', '-x', 'assembler', '-target', 'amdgcn-amd-amdhsa', '-mcpu=gfx950', '-c', d + '/a.s', '-o', d + '/a.o'])
    o = subprocess.check_output(['llvm-objdump', '-d', d + '/a.o'], text=True)
    offs = [int(m.group(1), 16) for m in re.finditer(r'// ([0-9A-F]{12}):', o)]
    assert len(offs) == len(ins) + 1, (len(offs), len(ins))
    for x, a, b in zip(ins, offs, offs[1:]): x.size = b - a

def add_touch(seq, tag, opt):
    NC = opt.get('ncls', 1); STEP = opt.get('pstep', 4096 // NC)
    chains = []
    for mark, lab in (('; touch', tag + '_tr'), ('; touch2', tag + '_ts')):
        if mark not in [x.txt for x in seq]: continue
        t = [x.txt for x in seq].index(mark)
        chain = [I('s_mov_b64 vcc, 1')]
        leaves = {}
        if NC == 1:
            for w in range(4):
                leaves[0, w] = I('s_cbranch_scc1 %s' % lab)
                chain += [I('s_cmp_eq_u32 s40, %d' % w), leaves[0, w]]
        else:
            bits = [('s40', 0), ('s40', 1)] + [('s2', 3 + i) for i in range(NC.bit_length() - 1)]
            def tree(level, val):
                if level == len(bits) - 1:
                    r, b = bits[level]
                    v1 = val | (1 << level)
                    l1 = I('s_cbranch_scc1 %s' % lab); l0 = I('s_branch %s' % lab)
                    leaves[v1 >> 2, v1 & 3] = l1; leaves[val >> 2, val & 3] = l0
                    return [I('s_bitcmp1_b32 %s, %d' % (r, b)), l1, l0]
                r, b = bits[level]
                nm = '%s_n%d_%d' % (lab, level, val)
                return [I('s_bitcmp1_b32 %s, %d' % (r, b)), I('s_cbranch_scc1 %s' % nm)] + tree(level + 1, val) + [I(nm + ':')] + tree(level + 1, val | (1 << level))
            chain += tree(0, 0)
        chain += [I('%s:' % lab), I('s_mov_b64 vcc, 0')]
        seq = seq[:t] + chain + seq[t + 1:]
        chains.append((chain, lab, leaves))
    l3 = None; p3 = []
    if '; touch3' in [x.txt for x in seq]:
        t = [x.txt for x in seq].index('; touch3')
        l3 = [I('s_cbranch_scc1 K2_t3') for w in range(4)]
        c3 = [I('s_mov_b64 vcc, 1')] + sum(([I('s_cmp_eq_u32 s40, %d' % w), l3[w]] for w in range(4)), []) + [I('K2_t3:'), I('s_mov_b64 vcc, 0')]
        seq = seq[:t] + c3 + seq[t + 1:]
    sizes(seq)
    end0 = 0
    for x in seq:
        if x.kind != 'label': end0 += x.size
        if x is chains[0][0][-1]: break
    out = []; off = 0; nxt = 4096 if NC == 1 else (end0 // STEP + 1) * STEP; pads = []; cold = False
    def pad():
        nonlocal off
        b = I('s_cbranch_vccnz %s' % chains[0][1]); pads.append((off, b)); out.append(I('%s_p%d:' % (tag, len(pads) - 1))); out.append(b); off += 4
    inchain = set(id(x) for c in chains for x in c[0][1:])
    if l3: inchain |= set(id(x) for x in c3[1:])
    n3 = None; S3 = opt.get('s3', 4096)
    for x in seq:
        if x.txt == '; cold': cold = True; print('   hot code bytes', off)
        if x.txt == '; pad':
            if off % 4096 > 64 and NC == 1: pad()
            continue
        if l3 and x is c3[-1]: n3 = (off // S3 + 1) * S3
        if x.kind != 'label':
            if n3 is not None and off >= n3 and not cold:
                p3.append(I('s_cbranch_vccnz K2_t3')); out += [I('K2_q%d:' % (len(p3) - 1)), p3[-1]]; off += 4; n3 += S3
            if off >= nxt and not cold and id(x) not in inchain:
                pad()
                while nxt <= off: nxt += STEP
            off += x.size
        out.append(x)
    pos = {id(x): i for i, x in enumerate(out)}
    split = next((i for i, x in enumerate(out) if x.txt == 'K1_w3:'), None)
    done = next(i for i, x in enumerate(out) if x.txt == 'K1_done:')
    if split is None: split = done
    split2 = pos[id(chains[1][0][0])] if len(chains) > 1 else len(out)
    for c in range(NC):
        my = [i for i, (o, b) in enumerate(pads) if NC == 1 or (o // STEP) % NC == c]
        if opt.get('pmax'): my = my[:opt['pmax']]
        first = [i for i in my if pos[id(pads[i][1])] < split]
        second = [i for i in my if split <= pos[id(pads[i][1])] < min(done, split2)]
        tl = [i for i in my if min(done, split2) <= pos[id(pads[i][1])] < split2]
        third = [i for i in my if split2 <= pos[id(pads[i][1])]]
        order = []
        for k in range(max(len(first), len(second))):
            if k < len(second): order.append(second[k])
            if k < len(first): order.append(first[k])
        order += tl
        for (chain, lab, leaves), order in zip(chains, (order, third)):
            for w in range(4):
                mine = order[w::4]
                if not mine: continue
                br = leaves[c, w]
                br.txt = br.txt.split()[0] + ' %s_p%d' % (tag, mine[0])
                for a, b in zip(mine, mine[1:] + [None]):
                    pads[a][1].txt = 's_cbranch_vccnz ' + ('%s_p%d' % (tag, b) if b is not None else lab)
    for i, b in enumerate(p3):
        if i < 4: l3[i].txt = 's_cbranch_scc1 K2_q%d' % i
        if i + 4 < len(p3): b.txt = 's_cbranch_vccnz K2_q%d' % (i + 4)
    print('   page pads', len(p3))
    print('   pads', len(pads), [o for o, b in pads][:40])
    return out

def gen_k1(opt):
    pro, mid = k1_prologue(opt)
    opt = dict(opt); opt['mid'] = mid
    out = []; infos = []
    pro, _ = fix_hazards(pro)
    sl = str(opt.get('sl', '0,10,12,41')).split(',')
    def stamp(nm):
        if not opt.get('stamps') or nm not in sl: return []
        k = 1 + sl.index(nm)
        return [I('s_memrealtime s[%d:%d]' % (72 + 4 * k, 73 + 4 * k)), I('s_memtime s[%d:%d]' % (74 + 4 * k, 75 + 4 * k)), I('s_waitcnt lgkmcnt(0)')]
    tails = []
    for NQ in ((4,) if opt.get('one') else (4, 3)):
        seq, over, wo = k1_body(NQ, opt)
        seq += [I('s_cmp_lg_u32 s100, 0'), I('s_cbranch_scc1 K1_fb'), WAIT(sum((wo[m] for m in range(12)), []))]
        seq += (k2g if opt.get('k2') == 2 else k2f).tail(opt, wo, stamp, late_stores(opt), [x for x in seq if x.op.startswith('buffer_store')][-1:])
        full, info, nn = finish(pro + seq, 'K1/NQ%d' % NQ, opt.get('verbose'))
        assert full[:len(pro)] == pro
        print('K1 NQ=%d: %d instrs, overflow %d, nops %d, est cycles %d' % (NQ, len(full), over, nn, est_cycles(full)))
        infos.append(info)
        if opt.get('fold', 1): full = fold(full, 'K1q%d' % NQ)
        print('   folded: %d instrs' % len(full))
        d = [x.txt for x in full].index('K1_done:')
        tails.append(full[d:]); full = full[:d]
        t = [x.txt for x in full].index('; touch')
        if opt.get('one'): out += full
        elif NQ == 4:
            common = [x.txt for x in full[:t]]
            out += full[:t + 1] + [I('s_cmp_eq_u32 s40, 3'), I('s_cbranch_scc1 K1_w3')] + full[t + 1:] + [I('s_branch K1_done'), I('K1_w3:'), I('; pad')]
        else:
            assert common == [x.txt for x in full[:t]]
            out += full[t + 1:]
    ce = cross_check(infos)
    for e in ce: print('ERR', e)
    assert not ce
    assert len(tails[0]) == len(tails[-1])
    for x, y in zip(tails[0], tails[-1]):
        if x.txt != y.txt:
            c = [int(re.fullmatch(r's_waitcnt vmcnt\((\d+)\)', z.txt).group(1)) for z in (x, y)]
            print('   tail wait', c); x.txt = 's_waitcnt vmcnt(%d)' % min(c); x.parse()
    out += (k2g if opt.get('k2') == 2 else k2f).patch(tails[0])
    if opt.get('k2') == 2: out += [I('s_branch K2_st' if opt.get('stamps') else 's_endpgm')] + k2g.slow(opt) + [I('K2_st:')]
    out += [I('; cold')]
    if opt.get('stamps'): out += stamp_code('K1_st', 5)
    out += [I('s_endpgm')]
    fb, _, _ = finish(k1_fallback(opt), 'fb')
    out += (k2g if opt.get('k2') == 2 else k2f).rest(opt) + fb
    if opt.get('touch', 1): out = add_touch(out, 'K1', opt)
    return out

def kdesc(name, vgpr, sgpr, accum):
    return '''.section .rodata,"a"
.p2align 6
.amdhsa_kernel %s
  .amdhsa_next_free_vgpr %d
  .amdhsa_next_free_sgpr %d
  .amdhsa_accum_offset %d
  .amdhsa_group_segment_fixed_size 0
  .amdhsa_kernarg_size 64
  .amdhsa_user_sgpr_count 2
  .amdhsa_user_sgpr_kernarg_segment_ptr 1
  .amdhsa_system_sgpr_workgroup_id_x 1
.end_amdhsa_kernel
''' % (name, vgpr, sgpr, accum)

MACROS = {}
def compact(x):
    t = x.txt
    m = re.fullmatch(r'v_mfma_f32_16x16x32_bf16 ([va])\[(\d+):\d+\], ([va])\[(\d+):\d+\], ([va])\[(\d+):\d+\], (.*)', t)
    if m:
        dc, d, ac, a, bc, b, c = m.groups()
        o = lambda cl, n: '%s[\\%s:\\%s+3]' % (cl, n, n)
        if c == '0': suf, cs, extra = 'Z', '0', ''
        elif c == x.dreg: suf, cs, extra = '', o(dc, 'd'), ''
        else: suf, cs, extra = 'C', o(dc, 'c'), ',' + re.match(r'[va]\[(\d+)', c).group(1)
        nm = 'M' + dc + ac + bc + suf
        MACROS[nm] = '.macro %s d,a,b%s\nv_mfma_f32_16x16x32_bf16 %s, %s, %s, %s\n.endm\n' % (nm, ',c' if extra else '', o(dc, 'd'), o(ac, 'a'), o(bc, 'b'), cs)
        return '%s %s,%s,%s%s' % (nm, d, a, b, extra)
    m = re.fullmatch(r'ds_read_(b64_tr_b16|b128) ([va])\[(\d+):\d+\], v(\d+) offset:(\d+)', t)
    if m:
        k, dc, d, a, off = m.groups()
        nm = ('T' if k != 'b128' else 'R') + dc; w = 1 if k != 'b128' else 3
        MACROS[nm] = '.macro %s d,a,o\nds_read_%s %s[\\d:\\d+%d], v\\a offset:\\o\n.endm\n' % (nm, k, dc, w)
        return '%s %s,%s,%s' % (nm, d, a, off)
    m = re.fullmatch(r'v_exp_f32 v(\d+), v(\d+)', t)
    if m and m.group(1) == m.group(2):
        MACROS['EX'] = '.macro EX d\nv_exp_f32 v\\d, v\\d\n.endm\n'
        return 'EX %s' % m.group(1)
    m = re.fullmatch(r'v_cvt_pk_bf16_f32 v(\d+), v(\d+), v(\d+)', t)
    if m:
        MACROS['CV'] = '.macro CV d,a,b\nv_cvt_pk_bf16_f32 v\\d, v\\a, v\\b\n.endm\n'
        return 'CV %s,%s,%s' % m.groups()
    m = re.fullmatch(r's_waitcnt lgkmcnt\((\d+)\)', t)
    if m:
        MACROS['WL'] = '.macro WL n\ns_waitcnt lgkmcnt(\\n)\n.endm\n'
        return 'WL %s' % m.group(1)
    return t.replace(', ', ',')

def emit(kernels, comp=True):
    s = ''
    for name, grid, lds, seq, vg, acc in kernels:
        s += '; @launch grid=(%d,1,1) block=(256,1,1) lds=%d\n' % (grid, lds)
    s += '.amdgcn_target "amdgcn-amd-amdhsa--gfx950"\n'
    body = ''
    for name, grid, lds, seq, vg, acc in kernels:
        body += '.text\n.globl %s\n.p2align 12\n.p2align 8\n.type %s,@function\n%s:\n' % (name, name, name)
        body += '\n'.join((compact(x) if comp else x.txt) for x in seq) + '\n'
        body += kdesc(name, vg, 102, acc)
    return s + ''.join(MACROS.values()) + body

if __name__ == '__main__':
    opt = {}
    outp = sys.argv[1]
    for a in sys.argv[2:]:
        k, v = a.split('=')
        try: v = int(v)
        except ValueError: v = v.replace('_', ' ')
        opt[k] = v
    ks = []
    if opt.get('fixw'): k2f.WSTEP = 0
    if opt.get('k1', 1): ks.append(('standalone__gqa_block_cached__near_ridge_kernel', 256, 163840, gen_k1(opt), 512, 256))
    txt = emit(ks, opt.get('comp', 1))
    open(outp, 'w').write(txt)
    print(outp, len(txt), 'bytes')
```

```python
from sched import *
from k2f import TS, SLOTORD, OBYTES, WSTEP, vr, ar, haddr, inner

IBOFF = OBYTES + 65536
IBSIZE = 256 * 131072
def sreg(st, tag):
    s = SLOTORD[st % 6]
    return (s * TS, (s + 1) * TS, True, tag, None)
def hreg(m): return sreg(m // 3, ('WO', m // 3))
def wrap(reg, step, n):
    return ['s_add_u32 s10, %s, %d' % (reg, step), 's_sub_u32 s11, s10, %d' % (n * step), 's_min_u32 %s, s10, s11' % reg]

def rotation(opt):
    return (inner(opt, 's15', 's12', 's13') + '''
s_mul_i32 s15, s15, %d
s_mul_i32 s12, s12, %d
s_add_u32 s15, s15, s12
s_and_b32 s15, s15, 15
s_mul_i32 s12, s15, 3
s_add_u32 s12, s12, 12
s_sub_u32 s13, s12, 48
s_min_u32 s12, s12, s13
s_mul_i32 s14, s12, %d''' % (opt.get('ra', 3), opt.get('rc', 3), WSTEP)).split('\n')

def wo_addr(d, lane, wave, t):
    return '''s_bfe_u32 s4, s2, 0x20001
s_mul_i32 s4, s4, 1536
v_lshrrev_b32 v%(a)d, 3, v%(l)d
v_and_b32 v%(b)d, 6, v%(a)d
v_and_b32 v%(c)d, 7, v%(l)d
v_xor_b32 v%(b)d, v%(b)d, v%(c)d
v_and_b32 v%(c)d, 1, v%(w)d
v_lshl_add_u32 v%(a)d, v%(c)d, 4, v%(a)d
v_add_u32 v%(a)d, s4, v%(a)d
v_mul_u32_u24 v%(a)d, 1280, v%(a)d
v_lshl_add_u32 v%(a)d, v%(b)d, 4, v%(a)d
v_lshrrev_b32 v%(c)d, 1, v%(w)d
v_lshl_add_u32 v%(d)d, v%(c)d, 7, v%(a)d
v_add_u32 v%(e)d, 9216, v%(d)d''' % dict(d=d, e=d + 1, l=lane, w=wave, a=t, b=t + 1, c=t + 2)

def tail(opt, W0, stamp, late, early):
    L = []
    a = lambda t: L.extend(I(x) for x in t.strip().split('\n'))
    GP = opt.get('gp', 5); GQ = opt.get('gq', 9); KC = opt.get('kc', 11); LD = opt.get('ld', 4); SP = opt.get('sp', 10) / 10.0
    FD = opt.get('fd', 15); FL = opt.get('fl', 12); GA = opt.get('ga', 106); GB = opt.get('gb', 116)
    wpol = opt.get('k2w', '')
    SH = 15 if opt.get('tg') else 14
    FS = opt.get('fs', 2); P1 = opt.get('p1', 1)
    WM = opt.get('wm', 1)
    global XO
    XO = opt.get('xo', 0)
    ACC = 24; KEEP = 56; RG = 60; AV = 124
    SQ = ['s8', 's9', 's12', 's13']
    def afrag(s, n, w=4, o=0): return ar(8 * (s - 12) + 4 * n + o, w) if 12 <= s < 44 else vr(AV + 8 * (s % 32) + 4 * n + o, w)
    ND = opt.get('nd', 0); NJ = 16 - ND
    CH = [(p, q) for p in range(5) for q in range(4)]
    if ND: CH[:8] = [(0, 1), (0, 2), (0, 3), (1, 1), (1, 2), (1, 3), (0, 0), (1, 0)]; assert LD == 2 and 2 <= ND <= 4
    pend = {6 * (1 + max(c for c in range(20) if CH[c][0] == p)): p for p in range(4)}
    def oset(c): return NJ + (0, 1, 4, 5)[c % 4] if ND else c + 16
    def wset(g): return g if g < NJ else NJ + 2 + (g - NJ) % 2
    wad = lambda m: haddr(3 * (wset(m // 3) % 6) + m % 3)
    wreg = lambda m: sreg(wset(m // 3), ('WO', m // 3))
    def acc(p, t): return KEEP if (p, t) == (0, 0) else ACC + 16 * (p & 1) + 4 * t
    def inb(p, t): return AV + ((p - 1) * 5 + t) * 4
    W = {g: sum((W0[m] for m in range(3 * g, 3 * g + 3)), []) for g in range(5)}; T = {}; O = {}
    def dma_w(g):
        W[g] = []; out = []
        for m in range(3 * g, 3 * g + 3):
            x = [I('buffer_load_dwordx4 v%d, s[48:51], s14 offen offset:%d%s lds' % (6 + t, 1024 * t, wpol), lds=wreg(m)) for t in range(2)]
            W[g] += x
            out += [[I('s_add_u32 m0, s41, %d' % wad(m))], [x[0]], [x[1]] + ([I(t) for t in wrap('s14', WSTEP, 48)] if m < 47 else [])]
        return out
    def tr(g):
        T[g] = []
        for m in range(3 * g, 3 * g + 3):
            ad = wad(m); st = ad // (3 * TS)
            for n in range(2):
                for hh in range(2):
                    T[g].append(I('ds_read_b64_tr_b16 %s, v%d offset:%d' % (afrag((m + 12) % 48, n, 2, 2 * hh), 12 + 2 * st + n, ad - st * 3 * TS + hh * 6144), lds=wreg(m)))
        return T[g]
    def dma_o(c, split=False):
        p, q = CH[c]; so = SLOTORD[oset(c) % 6] * TS
        O[c] = []; out = []
        for e in range(2):
            for i in range(3):
                x = I('buffer_load_dwordx4 v%d, s[20:23], s43 offen offset:%d sc1 lds' % (1 + e, 1024 * i), lds=sreg(oset(c), ('O', c)))
                O[c].append(x); pre = []
                if (e, i) == (0, 0):
                    if c == 0 or CH[c - 1][0] != p: pre += ['s_mov_b32 s16, %d' % (4 * 393216)] if p == 0 else ['s_xor_b32 s16, s44, %d' % (p & 3), 's_mul_i32 s16, s16, 393216']
                    pre += ['s_add_u32 s43, s16, %s' % SQ[q]]
                if i == 0: pre += ['s_add_u32 m0, s41, %d' % (so + e * 3072)]
                if split and pre: out.append([I(t) for t in pre]); pre = []
                out.append([I(t) for t in pre] + [x])
        return out
    def reads(G):
        c = G // 6; sl = SLOTORD[oset(c) % 6]; out = []
        for u in range(2):
            j = 2 * (G % 6) + u
            for e in range(2):
                out.append(I('ds_read_b128 %s, v%d offset:%d' % (vr(RG + (G % 4) * 16 + (2 * u + e) * 4), 3 + sl // 2, (sl & 1) * TS + (j // 3) * 6144 + e * 3072 + (j % 3) * 1024), lds=sreg(oset(c), ('O', c))))
        return out
    tn = [0]
    def trace():
        if opt.get('trace') and tn[0] < 64:
            a('s_memrealtime s[90:91]\ns_waitcnt lgkmcnt(0)\nv_writelane_b32 v255, s90, %d' % tn[0]); tn[0] += 1
    a('K1_done:')
    if opt.get('ktrace'): a('v_accvgpr_read_b32 v255, a244\ns_nop 1\nv_lshrrev_b32 v255, 6, v255')
    trace()
    L += stamp('j')
    late = [I(t) for t in late]; stores = list(late)
    for _ in range(min(opt.get('s0', 4), len(stores))): L.append(stores.pop(0))
    a('''s_load_dwordx2 s[28:29], s[0:1], 40
s_bfe_u32 s44, s2, 0x20001
s_lshr_b32 s4, s40, 1
s_mul_i32 s4, s4, 12288
s_lshl_b32 s5, s40, 1
s_xor_b32 s5, s5, s44
s_and_b32 s6, s44, 2
s_xor_b32 s5, s5, s6
s_and_b32 s5, s5, 3
s_lshl_b32 s5, s5, 5
v_and_b32 v24, 63, v0
v_lshrrev_b32 v25, 2, v24
v_and_b32 v26, 6, v25
v_bfe_u32 v27, v24, 1, 1
v_xor_b32 v26, v26, v27
v_lshlrev_b32 v26, 4, v26
v_lshl_add_u32 v26, v25, 7, v26
v_and_b32 v27, 1, v24
v_lshl_add_u32 v26, v27, 3, v26
v_xor_b32 v26, s5, v26
v_add_u32 v12, s4, v26
v_xor_b32 v13, 32, v12
v_add_u32 v14, %d, v12
v_add_u32 v15, %d, v13
v_lshrrev_b32 v28, 6, v0''' % (3 * TS, 3 * TS))
    a(wo_addr(6, 24, 28, 25))
    a('s_waitcnt lgkmcnt(0)')
    setup = ('''s_lshl_b32 s4, s46, 12
s_and_b32 s5, s47, 24
s_lshl_b32 s5, s5, 7
s_add_u32 s4, s4, s5
s_and_b32 s5, s47, 7
s_lshl_b32 s5, s5, ''' + str(FS) + '''
s_add_u32 s4, s4, s5
v_mov_b32 v20, s4
v_mov_b32 v21, s45
''' + inner(opt, 's46', 's47', 's4') + '''
s_and_b32 s4, s2, 1
s_mul_i32 s4, s4, 6
s_add_u32 s46, s46, s4
s_mul_i32 s4, s46, 1966080
s_mul_i32 s5, s44, 49152
s_add_u32 s4, s4, s5
s_sub_u32 s22, %(ob)d, s4
s_add_u32 s20, s18, s4
s_addc_u32 s21, s19, 0
s_lshl_b32 s5, s47, 8
s_mul_i32 s6, s46, 204800
s_add_u32 s6, s6, s5
s_sub_u32 s30, 2457600, s6
s_add_u32 s28, s28, s6
s_addc_u32 s29, s29, 0
s_add_u32 s24, s18, %(ib)d
s_addc_u32 s25, s19, 0
s_mov_b32 s26, %(ibs)d
s_lshr_b32 s4, s44, 1
s_mul_i32 s4, s4, 196608
s_sub_u32 s5, 196608, s4
v_lshlrev_b32 v3, 4, v24
v_add_u32 v1, s4, v3
v_add_u32 v2, s5, v3
v_add_u32 v4, %(t2)d, v3
v_add_u32 v5, %(t4)d, v3
s_lshl_b32 s4, s46, 1
v_bfe_u32 v22, v24, 3, 1
v_add_u32 v22, s4, v22
v_mul_u32_u24 v22, 43, v22
v_and_b32 v22, 0x380, v22
v_and_b32 v25, 7, v24
s_lshl_b32 s4, s44, 5
v_add_lshl_u32 v22, s4, v22, 5
v_lshl_add_u32 v22, v25, %(fs)d, v22
s_min_u32 s4, s40, %(one)d
s_lshl_b32 s4, s4, 30
v_add_u32 v22, s4, v22
s_mov_b32 s7, %(spin)d''' % dict(fs=FS, one=P1, ob=OBYTES, ib=IBOFF, ibs=1024 << SH, t2=2 * TS, t4=4 * TS, spin=opt.get('spin', 40000)))
    setup2 = '''s_add_u32 s4, s15, s40
''' + ''.join('s_add_u32 s5, s4, %d\ns_and_b32 s5, s5, 15\ns_mul_i32 %s, s5, 3072\n' % (4 * q, SQ[q]) for q in range(4)) + '''s_lshl_b32 s4, s40, ''' + str(SH) + '''
s_lshl_b32 s42, s2, ''' + str(SH + 2) + '''
v_add_u32 v8, s4, v3
s_add_u32 s4, s4, 15360
v_mov_b32 v19, s4
v_and_b32 v25, ''' + ('3, v24\nv_min_u32 v25, 2, v25' if opt.get('mg') or opt.get('tg') else '1, v24') + '''
v_lshl_add_u32 v9, v25, 7, v19
v_min_u32 v25, 1, v24
v_lshl_add_u32 v17, v25, 30, v19'''
    poll = None; nc = 0; nd = 0
    def check():
        L.append(WAIT([poll]))
        L.extend(stamp('e'))
        if P1: a('s_cmp_lg_u32 s40, 0\ns_cbranch_scc1 K2_go')
        a('; spin K2 v23 v22 s[52:55] 0 0')
        L.extend(stamp('f'))
    if GP == 0:
        assert opt.get('so')
        a(setup); a(setup2)
    for g in range(NJ):
        cov = (W[g] if g >= 4 else [])
        if g == GP:
            assert not stores
            cov = cov + (late or early)
        if cov: L.append(WAIT(cov))
        a('s_barrier')
        if g == GP:
            a('''s_cmp_lg_u32 s40, 0
s_cbranch_scc1 K2_pub
s_mov_b64 exec, 1
; flagstore
s_mov_b64 exec, -1
K2_pub:
s_cmp_ge_u32 s2, 240
s_cbranch_scc1 K2_rest''')
            L.extend(stamp('p'))
        if g == GQ:
            assert GQ >= GP
            poll = I('buffer_load_dword v23, v22, s[52:55], 0 offen sc1'); L.append(poll)
        if g >= 10: assert not stores
        if g or not opt.get('so'): L += tr(g)
        if g == 0 and not opt.get('so'): a(setup)
        if g == 1 and not opt.get('so'): a(setup2)
        if g + 5 < NJ:
            for x in dma_w(g + 5):
                if x[0].kind == 'vmem':
                    nd += 1
                    while stores and len(late) - len(stores) < opt.get('s0', 4) + nd / SP: L.append(stores.pop(0))
                L += x
                if g == 0 and nd == opt.get('so') and x[0].kind == 'vmem': L += tr(g)
        if g == 0 and opt.get('so') and GP: a(setup)
        if g == 2 and opt.get('so') and GP: a(setup2)
        if g == KC and not P1: check()
        while g >= KC + P1 and nc < LD and oset(nc) <= g + 5:
            for x in dma_o(nc): L += x
            nc += 1
        if ND and WM == 1 and g + 5 in (NJ + 2, NJ + 3):
            for x in dma_w(g + 3): L += x
        if g == opt.get('t3'): a('; touch3')
        if g == KC and P1: check()
        L.append(WAIT(T[g]))
        if not opt.get('tg0'): trace()
    if KC + P1 >= NJ:
        if KC >= NJ: check()
        if P1: a('s_barrier')
        while nc < LD:
            for x in dma_o(nc): L += x
            nc += 1
    if ND and WM == 2:
        for x in dma_w(NJ): L += x
    R = {}; tq = []
    L.append(WAIT(O[0])); a('s_barrier')
    for G in range(3): R[G] = reads(G); L += R[G]
    L += stamp('g')
    vq = dma_o(LD, True)
    S = {}; IN = {}; pa = pb = None; adds = []; xq = []; sq = []
    assert 100 <= GA and (GA < GB or opt.get('mg') or opt.get('tg'))
    def ld_in(p):
        IN[p] = [I('buffer_load_dwordx4 %s, v8, s[24:27], s%d offen offset:%d sc1' % (vr(inb(p, t)), 4 + t // 4, 1024 * (t & 3))) for t in range(5)]
        return [[I('s_add_u32 s4, s42, %d' % ((p - 1) * 5120)), I('s_add_u32 s5, s4, 4096'), IN[p][0]]] + [[x] for x in IN[p][1:]]
    def dest(p, off): return [I('s_xor_b32 s17, s42, %d' % (p << SH + 3))] + ([I('s_add_u32 s17, s17, %d' % off)] if off else [])
    GC = opt.get('gc', 114)
    assert GB < GC or opt.get('tg')
    MG = opt.get('mg'); TG = opt.get('tg'); CHN = opt.get('ch', 0)
    add12 = ['v_add_f32 v%d, v%d, v%d' % (inb(1, 0) + r, inb(1, 0) + r, inb(2, 0) + r) for r in range(20)]
    add12 += ['v_add_f32 v%d, v%d, v%d' % (inb(1, 4) + r, inb(1, 4) + r, KEEP + r) for r in range(4)]
    if TG: add12 += ['v_add_f32 v%d, v%d, v%d' % (inb(1, 4) + r, inb(1, 4) + r, inb(3, 4) + r) for r in range(4)]
    def chk(nm): return [[I('v_cmp_ne_u32 s[100:101], s45, v16')], [I('s_cmp_eq_u64 s[100:101], 0'), I('s_cbranch_scc0 %s_slow' % nm), I('%s_go:' % nm)]]
    for G in range(120):
        c = G // 6; p, q = CH[c]
        if G % opt.get('tgs', 6) == 0 and G >= opt.get('tg0', 0): trace()
        cov = list(R[G])
        if CHN & 2 and G % 2 == 0: cov += R[G + 1]
        if G % 6 == 3 and c + 1 < 20: cov += O[c + 1]
        gw = {WM: NJ, WM + 1: NJ + 1, WM + 3: NJ + 2, WM + 4: NJ + 3}
        if G % 6 == 3 and ND:
            if gw.get(c + 1, 16) < 16: cov += W[gw[c + 1]]
        if G % 6 == (2 if CHN & 2 else 3) and ND and gw.get(c, 16) < 16: assert not tq; cov += T[gw[c]]
        for pp in (1, 2, 3):
            if TG and pp == 3:
                if pend.get(G - FD) == 0:
                    cov += S[0]
                    xq.insert(0, dest(pp, 0) + [I('buffer_store_dword v21, v17, s[24:27], s17 offen offset:%d sc1' % (128 * (pp - 1)))])
            elif pend.get(G - (FD if pp < 3 else FL)) == pp:
                cov += S[pp]
                xq.insert(0, dest(pp, 0) + [I('buffer_store_dword v21, v17, s[24:27], s17 offen offset:%d sc1' % (128 * (pp - 1)))])
        if G == GA: cov.append(pa); xq += chk('KA'); sq += ld_in(1) + ld_in(2) + (ld_in(3) + [[I('KB_go:')]] if MG else [])
        if G == GA and TG:
            IN[2].append(I('buffer_load_dwordx4 %s, v8, s[24:27], s5 offen sc1' % vr(inb(3, 4))))
            sq.append([I('s_add_u32 s5, s42, %d' % (2 * 5120 + 4096)), IN[2][-1]])
        if G == GC and TG:
            IN[3] = [I(t) for t in LDT]
            xq += [[I('s_add_u32 s61, s42, %d' % (2 * 5120)), I('s_add_u32 s62, s42, 16384')]] + [[x] for x in IN[3]]
        elif G == GC and not MG: cov.append(pb); xq += chk('KB') + ld_in(3)
        if G == GA + opt.get('gd', 8): cov += IN[1] + IN[2]; adds += add12
        if G == 107:
            adds += ['s_lshr_b32 s8, s44, 1', 's_and_b32 s9, s44, 1', 's_lshl_b32 s9, s9, 5', 's_mul_i32 s12, s44, 40960', 's_mul_i32 s8, s8, 20480', 's_add_u32 s60, s8, s9']
            for t in range(4): adds += ['s_xor_b32 s10, s8, %d' % (20480 * (t >> 1)), 's_xor_b32 s11, s9, %d' % (32 * (t & 1)), 's_add_u32 s10, s10, s11', 's_add_u32 s%d, s10, s12' % (56 + t)]
            adds += ['s_add_u32 s60, s60, %d' % (8 * 20480), 's_lshl_b32 s10, s40, 6', 'v_and_b32 v7, 15, v0', 'v_mul_u32_u24 v7, 1280, v7',
                     'v_bfe_u32 v6, v0, 4, 2', 'v_lshl_add_u32 v7, v6, 3, v7', 'v_add_u32 v6, s10, v7', 's_nop 0']
        L.append(WAIT(cov))
        if G % 6 == 3 and c + 1 < 20:
            a('s_barrier')
            if c + 1 + LD < 20: assert not vq; vq = dma_o(c + 1 + LD, True)
            VN = 1
            if ND and gw.get(c + 1, 16) < 16: tq = list(tr(gw[c + 1]))
            if ND and NJ + 3 - WM <= gw.get(c + 3, 16) < 16:
                w = dma_w(gw[c + 3]); vq = vq[:4] + w[:3] + vq[4:] + w[3:]; VN = 2
        if G in pend:
            pp = pend[G]
            if pp == 0:
                S[0] = [I('buffer_store_dwordx4 %s, v8, s[24:27], s17 offen sc1' % vr(acc(0, t))) for t in (1, 2, 3)]
                sq += [dest(t, (t - 1) * 5120 + 4096) + [S[0][t - 1]] for t in (1, 2, 3)]
            elif pp == 3 and TG:
                mv = lambda t: [I('v_mov_b32 v%d, v%d' % ((12, 13, 14, 20)[t ^ 3], acc(3, t) + 3)), I('v_mov_b32 v%d, v21' % (acc(3, t) + 3))]
                st = lambda t: I('buffer_store_dwordx4 %s, v8, s[24:27], s17 offen offset:%d sc1' % (vr(acc(3, t)), 1024 * (t ^ 3)))
                xq += [mv(0) + dest(3, 2 * 5120), mv(1)]
                sq += [[st(0)] + mv(2), [st(1)] + mv(3), [st(2)], [st(3)] + dest(3, 16384)]
                sq += [[I('buffer_store_dwordx4 %s, v8, s[24:27], s17 offen offset:%d sc1' % (vr(b), o))] for b, o in ((12, 0), (20, 1024))]
            else:
                S[pp] = [I('buffer_store_dwordx4 %s, v8, s[24:27], s17 offen offset:%d sc1' % (vr(acc(pp, t)), 1024 * (t ^ pp))) for t in range(4)]
                sq += [dest(pp, (pp - 1) * 5120) + [S[pp][0]]] + [[x] for x in S[pp][1:]]
        if G == GA - opt.get('gl', 6): pa = I('buffer_load_dword v16, v9, s[24:27], s42 offen sc1'); xq.append([pa])
        if G == GB and not MG and not TG: pb = I('buffer_load_dword v16, v19, s[24:27], s42 offen offset:256 sc1'); xq.insert(0, [pb])
        if CHN & 2:
            rq = []
            for H in ((G + 2, G + 3) if G % 2 == 0 else ()):
                if H < 120 and H not in R: R[H] = reads(H); rq += R[H]
        else:
            if G + 3 < 120: R[G + 3] = reads(G + 3)
            rq = list(R.get(G + 3, []))
        for _ in range(opt.get('sr', 1) if G < 96 else opt.get('sr4', 2) if G < GA else opt.get('sr5', 2)):
            if sq: xq.append(sq.pop(0))
        for _ in range(2 if G < 3 else VN):
            if vq and vq[0][0].kind == 'salu': xq.append(vq.pop(0))
            if vq: xq.append(vq.pop(0))
        k = 0; z = p not in [x for x, _ in CH[:c]]
        if CHN & 2:
            G0 = G & ~1; ts = (0, 1, 2, 3) if not (CHN & 1 and G0 % 4) else (3, 2, 1, 0)
            seq = [(t, G0 + u // 2, u & 1) for t in ts[2 * (G & 1):2 * (G & 1) + 2] for u in range(4)]
        else:
            seq = [(t, G, u) for t in ((3, 2, 1, 0) if CHN & 1 and G & 1 else range(4)) for u in range(2)]
        for t, H, u in seq:
            e, n = t >> 1, t & 1; d = vr(acc(p, t))
            L.append(I('v_mfma_f32_16x16x32_bf16 %s, %s, %s, %s' % (d, afrag(12 * q + 2 * (H % 6) + u, n), vr(RG + (H % 4) * 16 + (2 * u + e) * 4), '0' if z and not u and H % 6 == 0 else d)))
            if CHN & 2 and k % 2 == 0 and (rq or tq):
                for _ in range(2):
                    if rq: L.append(rq.pop(0))
                    elif tq: L.append(tq.pop(0))
            elif k % 2 == 0 and rq: L += [rq.pop(0)] + ([tq.pop(0)] if tq and k else [])
            elif xq: L += xq.pop(0)
            elif adds: L += [I(adds.pop(0)), I(adds.pop(0))]
            k += 1
    if GC >= 120 and not MG: L.append(WAIT([pb])); xq += chk('KB') + ld_in(3)
    for x in xq + sq: L += x
    if GA + opt.get('gd', 8) >= 120: L.append(WAIT(IN[1] + IN[2])); adds += add12
    L += [I(t) for t in adds]
    assert not vq
    L += stamp('m')
    trace()
    for t in range(4):
        for r in range(4): a('v_add_f32 v%d, v%d, v%d' % (inb(1, t) + r, inb(1, t) + r, acc(4, t) + r))
    if TG: L.append(WAIT(IN[3])); a(CHT + '\ns_cbranch_scc0 KB_slow\nKB_go:')
    for t in ((4, 0, 1, 2, 3) if TG else range(5)):
        b = inb(1, t)
        if not TG: L.append(WAIT([IN[3][t]]))
        for r in range(4):
            if not TG or t < 4: a('v_add_f32 v%d, v%d, v%d' % (b + r, b + r, inb(3, 5) + (t if t < 3 else 4) if TG and r == 3 else inb(3, t) + r))
        for h in range(2): a('v_cvt_pk_bf16_f32 v%d, v%d, v%d' % (b + h, b + 2 * h, b + 2 * h + 1))
        a('buffer_store_dwordx2 %s, v6, s[28:31], s%d offen' % (vr(b, 2), 56 + t))
    trace()
    a('K2_end:')
    return L

I3 = 124 + 40
LDT = ['buffer_load_dwordx4 %s, v8, s[24:27], s61 offen offset:%d sc1' % (vr(I3 + 4 * t), 1024 * t) for t in range(4)]
LDT += ['buffer_load_dwordx4 %s, v8, s[24:27], s62 offen offset:%d sc1' % (vr(I3 + 20 + 4 * t), 1024 * t) for t in range(2)]
CHT = '\n'.join('v_%s3_u32 v%d, v%d, v%d, v%d' % (m, d, x, y, z) for m, d in (('min', 10), ('max', 11))
                for x, y, z in ((21, I3 + 3, I3 + 7), (d, I3 + 11, I3 + 15), (d, I3 + 23, I3 + 25))) + '\nv_cmp_ne_u32 s[100:101], v10, v11\ns_nop 0\ns_cmp_eq_u64 s[100:101], 0'
def slow(opt):
    out = []
    if opt.get('tg'):
        out += [I(t) for t in ['KB_slow:', 's_mov_b32 s7, 40000', 'KB_again:'] + LDT + ['s_waitcnt vmcnt(0)'] + CHT.split('\n') +
                ['s_cbranch_scc1 KB_go', 's_sub_u32 s7, s7, 1', 's_cbranch_scc0 KB_again', 's_branch KB_go']]
    for nm, ad, off in (('KA', 'v9', 0), ('KB', 'v19', 256))[:1 if opt.get('tg') else 2]:
        out += [I(t) for t in ('''%(n)s_slow:
s_mov_b32 s7, 40000
%(n)s_again:
buffer_load_dword v16, %(a)s, s[24:27], s42 offen offset:%(f)d sc1
s_waitcnt vmcnt(0)
v_cmp_ne_u32 s[100:101], s45, v16
s_nop 0
s_cmp_eq_u64 s[100:101], 0
s_cbranch_scc1 %(n)s_go
s_sub_u32 s7, s7, 1
s_cbranch_scc0 %(n)s_again
s_branch %(n)s_go''' % dict(n=nm, a=ad, f=off)).split('\n')]
    return out

XO = 0
def patch(seq):
    out = []; main = False
    for x in seq:
        if x.kind == 'mfma': main = True
        if main:
            if XO & 1 and x.txt.startswith('s_add_u32 s43'): x = I('s_mov_b32 s43, 0')
            if XO & 2 and x.txt.endswith(' lds'): continue
            if XO & 4 and x.kind == 'ds': continue
            if XO & 8 and x.kind == 'bar': continue
            if XO & 16 and ('_slow' in x.txt or 's[24:27]' in x.txt): continue
            if XO & 32 and x.txt.endswith('sc1 lds'): x = I(x.txt.replace('sc1 ', ''))
        if x.txt == '; flagstore': out.append(I('buffer_store_dword v21, v20, s[52:55], 0 offen sc1'))
        elif x.txt.startswith('; spin'):
            nm, d, ad, srd, so, off = x.txt.split()[2:]
            out += [I(t) for t in ('''s_mov_b32 s7, 40000
%(n)s_chk:
v_cmp_ne_u32 s[100:101], s45, %(d)s
s_nop 0
s_cmp_eq_u64 s[100:101], 0
s_cbranch_scc1 %(n)s_go
s_sub_u32 s7, s7, 1
s_cbranch_scc1 %(n)s_go
buffer_load_dword %(d)s, %(a)s, %(s)s, %(o)s offen offset:%(f)s sc1
s_waitcnt vmcnt(0)
s_branch %(n)s_chk
%(n)s_go:''' % dict(n=nm, d=d, a=ad, s=srd, o=so, f=off)).split('\n')]
        else: out.append(x)
    return out

def rest(opt):
    fs = opt.get('fs', 2)
    return [I(t) for t in ('''K2_rest:
s_waitcnt vmcnt(0)
s_cmp_lg_u32 s2, 240
s_cbranch_scc1 K2_end
s_cmp_lg_u32 s40, 0
s_cbranch_scc1 K2_end
v_lshrrev_b32 v22, 1, v0
v_lshlrev_b32 v22, 10, v22
v_and_b32 v32, 1, v0
v_lshl_add_u32 v22, v32, %d, v22
s_mov_b32 s4, 32768
K2_all:
buffer_load_dword v32, v22, s[52:55], 0 offen sc1
buffer_load_dword v33, v22, s[52:55], 0 offen offset:%d sc1
buffer_load_dword v34, v22, s[52:55], 0 offen offset:%d sc1
buffer_load_dword v35, v22, s[52:55], 0 offen offset:%d sc1
s_waitcnt vmcnt(0)
v_xor_b32 v32, s45, v32
v_xor_b32 v33, s45, v33
v_xor_b32 v34, s45, v34
v_xor_b32 v35, s45, v35
v_or_b32 v32, v32, v33
v_or3_b32 v32, v32, v34, v35
v_cmp_ne_u32 s[100:101], 0, v32
s_nop 0
s_cmp_eq_u64 s[100:101], 0
s_cbranch_scc1 K2_ret
s_sub_u32 s7, s7, 1
s_cbranch_scc0 K2_all
K2_ret:
s_mov_b64 exec, 1
buffer_store_dword v21, v22, s[52:55], s4 offen sc1
s_mov_b64 exec, -1
s_branch K2_end''' % (fs + 2, 1 << fs, 2 << fs, 3 << fs)).split('\n')]
```

```python
import sys, math, struct
from sched import *
import k2f, k2g

INF = 10 ** 6
TS = 24576
XB0 = 98304
FLAG = 147456
STAMP_OFF = 0x10000000
def f2u(f): return struct.unpack('<I', struct.pack('<f', f))[0]
def vr(b, n=4): return 'v[%d:%d]' % (b, b + n - 1)
def ar(b, n=4): return 'a[%d:%d]' % (b, b + n - 1)

class Prog:
    def __init__(self, dlat=8):
        self.mf = []; self.jobs = []; self.lastw = {}; self.rds = {}; self.dlat = dlat
        self.pre = []; self.phase = -1; self.occ = {}
    def _conf(self, ins):
        c = []
        for r in ins.rd:
            if r in self.lastw: c.append((self.lastw[r], 'raw', r))
        for r in ins.wr:
            if r in self.lastw: c.append((self.lastw[r], 'waw', r))
            for x in self.rds.get(r, ()): c.append((x, 'war', r))
        return c
    def _rec(self, ins, who):
        for r in ins.rd: self.rds.setdefault(r, []).append(who)
        for r in ins.wr: self.lastw[r] = who; self.rds[r] = []
    def mfma(self, d, a, b, c):
        ins = I('v_mfma_f32_16x16x32_bf16 %s, %s, %s, %s' % (d, a, b, c))
        m = len(self.mf)
        for x, ty, r in self._conf(ins):
            if isinstance(x, Job):
                lim = m - 1
                if ty == 'raw' and x.cls in ('valu', 'trans'): lim = m - 3
                x.hi = min(x.hi, lim); x.hard = min(x.hard, m - 1)
        self.mf.append(ins); self._rec(ins, m)
        return m
    def job(self, ins, lo=0, hi=INF, deps=(), first=False, pre=False, dlat=None, name=None, phase=None, dummy=False, **kw):
        ins = ins if isinstance(ins, I) else I(ins, **kw)
        j = Job(ins, lo, hi, deps, first)
        ph = self.phase if phase is None else phase
        nm = name or ins.txt
        c = self.occ.get((ph, nm), 0); self.occ[ph, nm] = c + 1
        j.key = (ph, nm, c); j.dummy = dummy
        seen = set(id(d) for d, _ in j.deps)
        for x, ty, r in self._conf(ins):
            if isinstance(x, Job):
                if id(x) in seen: continue
                seen.add(id(x))
                dist = 1
                if x.cls == 'valu' and j.cls == 'valu': dist = 0
                if 'permlane' in ins.op and ty == 'raw': dist = 2
                if x.cls == 's' and j.cls == 's': dist = 0
                if ty == 'war' and hasattr(x.ins, 'sdata'): dist = 2
                j.deps.append((x, dist))
            else:
                y = self.mf[x]
                j.lo0 = max(j.lo0, x)
                if ty in ('raw', 'waw'): j.lo = max(j.lo, x + (dlat if dlat is not None else self.dlat))
                elif r in y.cr and j.cls in ('valu', 'trans'): j.lo = max(j.lo, x + 3)
                else: j.lo = max(j.lo, x)
        self._rec(ins, j)
        if pre:
            j.gap = -10; self.pre.append(ins)
        self.jobs.append(j)
        return j
    def n(self): return len(self.mf)

RING = 208; ONES = 240; LACC = 192
def qacc(T, qt): return 64 + ((T >> 1) * 4 + qt) * 8 + 4 * (T & 1)
def qfrag(s, qt): return 64 + (s * 4 + qt) * 8
_lows = [32 + 4 * k for k in range(8)] + [16 + 4 * k for k in range(4)]
_ups = [64 + 8 * k + 4 for k in range(24)]
SBLK = {}; PBLK = {}; NEGM = {}
for kt in range(4):
    for qt in range(4): SBLK[kt, qt] = _lows[kt * 4 + qt] if kt < 2 else _ups[4 + (kt - 2) * 4 + qt]
for qt in range(4): NEGM[qt] = _ups[qt]
_rest = _ups[12:] + _lows[8:]
for i, key in enumerate([(bf, kp, qt) for bf in range(2) for kp in range(2) for qt in range(4)]): PBLK[key] = _rest[i]
def oacc(dt, qt): return dt * 16 + qt * 4
def late_blk(opt, s, qt):
    se = opt.get('se', 2)
    return SBLK[s - se, qt] if s >= se else None
def late_stores(opt):
    return ['buffer_store_dwordx4 %s, v10, s[36:39], s%d offen offset:%d%s' % (vr(late_blk(opt, s, qt)), 56 + 2 * qt + (s >> 2), (s & 3) * 1024, opt.get('opol', ' sc1'))
            for s in range(opt.get('se', 2), 6) for qt in range(4)]

TILES = [('W', n) for n in range(10)] + [('K', 0)]
for j in range(15): TILES += [('K', j + 1), ('V', j)]
TILES += [('V', 15)]
def slot_of(kind, j):
    if kind == 'W': return j % 4
    if kind == 'K': return 2 if j == 0 else (2 * j + 1) % 6
    return (2 * j + 4) % 6
WSTEP = 64 * 12288
LOOPS = [(1, 2, 7, 1), (13, 4, 40, 3)]

def wrap(reg, step, n):
    return ['s_add_u32 s10, %s, %d' % (reg, step), 's_sub_u32 s11, s10, %d' % (n * step), 's_min_u32 %s, s10, s11' % reg]

def k1_build(NQ, opt):
    P = Prog()
    nt = opt.get('kvp', ' nt') if opt.get('nt', 1) else ''
    wpol = opt.get('wpol', '')
    GL = 2 * NQ
    XV = NEGM[3] if opt.get('ls') else 12
    dmas = {}; plan = []
    def dma_group(tag, region, sc, lst, at, spc, deps, dummy=False):
        ins = [I(t, lds=region) for t in lst]
        dmas.setdefault(tag, []).extend(ins)
        if at is None:
            for t in sc: P.job(t, pre=True)
            for x in ins: P.job(x, pre=True)
        else: plan.append((at, len(plan), sc, ins, spc, deps, P.phase, dummy))
    def flush_plan():
        for at, _, sc, ins, spc, deps, ph, dummy in sorted(plan, key=lambda e: e[:2]):
            for t in sc: P.job(t, lo=max(at - 6, 0), phase=ph, dummy=dummy)
            for i, x in enumerate(ins):
                t = int(at + i * spc)
                P.job(x, lo=t, hi=t + 2, deps=deps, phase=ph, dummy=dummy)
        plan.clear()
    def dma_tile(tile, at, spc=0, deps=(), dyn=True):
        kind, j = tile; so = slot_of(kind, j) * TS
        reg = (so, so + TS, True, tile, None)
        for half in range(2):
            if kind == 'W':
                lst = ['buffer_load_dwordx4 v%d, s[24:27], s43 offen offset:%d%s lds' % (22 + t, 1024 * t, wpol) for t in range(3)]
                m0 = 's_add_u32 m0, s12, %d' % ((j & 1) * TS + half * 3072) if dyn else 's_add_u32 m0, s41, %d' % (so + half * 3072)
                Q0 = opt.get('q0', 0)
                sc = [m0, 's_add_u32 s43, s13, %d' % (half * 8 * 12288 + Q0 * WSTEP) if j >= Q0 else 's_mov_b32 s43, %d' % (half * 8 * 12288 + j * WSTEP)]
                if half:
                    if j >= Q0: sc += wrap('s13', WSTEP, 10 - Q0)
                    if dyn and (j & 1): sc += ['s_sub_u32 s12, s15, s12']
            else:
                srd = 's[28:31]' if kind == 'K' else 's[32:35]'
                lst = ['buffer_load_dwordx4 v%d, %s, s43 offen offset:%d%s lds' % (7 + t, srd, 1024 * t, nt) for t in range(3)]
                if dyn:
                    dst, off = ('s16', 's4') if kind == 'K' else ('s17', 's5')
                    sc = ['s_add_u32 m0, %s, %d' % (dst, half * 3072), 's_add_u32 s43, %s, %d' % (off, half * 3072)]
                    if half: sc += ['s_add_u32 %s, %s, %d' % (off, off, TS)]
                else:
                    sc = ['s_add_u32 m0, s41, %d' % (so + half * 3072), 's_mov_b32 s43, %d' % (j * TS + half * 3072)]
            dma_group(tile, reg, sc, lst, None if at is None else int(at + half * 3 * spc), spc, deps, dummy=(j > 15))
    def dma_wo(m, at, spc, deps=()):
        hh = m & 1
        lst = ['buffer_load_dwordx4 v%d, s[48:51], s43 offen offset:%d%s lds' % (XV + 2 + t, 1024 * t, opt.get('k2w', '')) for t in range(2)]
        if opt.get('k2') == 2:
            sc = ['s_add_u32 m0, s41, %d' % k2f.haddr(m), 's_mov_b32 s43, s14'] + wrap('s14', k2f.WSTEP, 48)
            return dma_group(('WO', m), k2g.hreg(m), sc, lst, at, spc, deps)
        sc = ['s_add_u32 m0, s41, %d' % k2f.haddr(m), 's_add_u32 s43, s14, %d' % (hh * 20480)]
        if hh: sc += wrap('s14', k2f.WSTEP, opt.get('win', 12))
        dma_group(('WO', m), k2f.hreg(m, m), sc, lst, at, spc, deps)
    def xreg(n, qt): return (XB0 + (n & 1) * 32768, XB0 + (n & 1) * 32768 + 32768, False, 'X%d_%d' % (n, qt), qt)
    def dma_x(n, qt, at, spc=0, deps=(), last=NQ - 1):
        half = qt >> 1
        lst = ['buffer_load_dwordx4 v%d, s[20:23], s43 offen offset:%d%s lds' % (25 + t, 1024 * t, wpol) for t in (2 * (qt & 1), 2 * (qt & 1) + 1)]
        Q0 = opt.get('q0', 0)
        sc = ['s_add_u32 m0, s42, %d' % ((n & 1) * 32768 + half * 4096), 's_add_u32 s43, s14, %d' % (half * 40960 + Q0 * 128) if n >= Q0 else 's_mov_b32 s43, %d' % (half * 40960 + n * 128)]
        if qt == last and n >= Q0: sc += wrap('s14', 128, 10 - Q0)
        dma_group('X%d_%d' % (n, qt), xreg(n, qt), sc, lst, at, spc, deps)
    def xfrag(n, u, qt): return (n & 1) * 32 + (u * 4 + qt) * 4
    def x_reads(n, qt, lo, hi, deps, pre=False):
        return [P.job(I('ds_read_b128 %s, v%d offset:%d' % (ar(xfrag(n, u, qt)), 20 + u, (n & 1) * 32768 + qt * 2048), lds=xreg(n, qt)), lo=lo, hi=hi, deps=deps, pre=pre) for u in range(2)]
    def reads_txt(n, g):
        kind, j = TILES[n]; so = slot_of(kind, j) * TS; rb = RING + (g % 4) * 8
        reg = (so, so + TS, True, TILES[n], None); out = []
        if kind == 'W':
            s, e = g >> 1, g & 1
            areg = 16 + (s & 1); o = (j & 1) * TS + 128 * (s >> 1) + 8 * e
            for u in range(2):
                for hh in range(2):
                    out.append(I('ds_read_b64_tr_b16 %s, v%d offset:%d' % (ar(rb + 4 * u + 2 * hh, 2), areg, o + 1536 * hh + 12288 * u), lds=reg))
        elif kind == 'K':
            kt, sp = g // 3, g % 3
            for e in range(2):
                out.append(I('ds_read_b128 %s, v%d offset:%d' % (ar(rb + 4 * e), 1 + e, 128 * sp + 6144 * kt), lds=reg))
        else:
            for kp in range(2):
                for hh in range(2):
                    out.append(I('ds_read_b64_tr_b16 %s, v%d offset:%d' % (ar(rb + 4 * kp + 2 * hh, 2), 3 + (g & 3), 128 * (g >> 2) + 6144 * hh + 12288 * kp), lds=reg))
        return out

    start = {}; pos = 0
    for n, (kind, j) in enumerate(TILES):
        start[n] = pos
        if kind == 'V' and not opt.get('ls'): pos += GL
        for g in range(12): start[n, g] = pos; pos += GL
    total = pos; start[42] = pos
    def prev_end(n, g, back):
        k = n * 12 + g - back
        if k < 0: return -1
        return start[k // 12, k % 12] + GL - 1

    def pstamp(k):
        if opt.get('sstamp'):
            for t in ('s_memrealtime s[%d:%d]' % (72 + 4 * k, 73 + 4 * k), 's_memtime s[%d:%d]' % (74 + 4 * k, 75 + 4 * k), 's_waitcnt lgkmcnt(0)'): P.job(t, pre=True)
    pstamp(1)
    for qt in range(4): dma_x(0, qt, None, last=3)
    dma_tile(('W', 0), None, dyn=False)
    EARLY = opt.get('early', 0)
    if EARLY:
        for qt in range(NQ): dma_x(1, qt, None)
        dma_tile(('W', 1), None, dyn=False)
    if EARLY > 1: dma_tile(('W', 2), None, dyn=False)
    for t in opt['mid']: P.job(t, pre=True)
    if opt.get('mw'):
        for t in ('v_lshlrev_b32 v40, 7, v0', 's_lshl_b32 s43, s2, 15', 's_add_u32 s43, s43, s50', 's_sub_u32 s43, s43, 7864320',
                  'buffer_load_dword v41, v40, s[48:51], s43 offen' + opt.get('wmpol', '')): P.job(t, pre=True)
    if opt.get('tlb'):
        n_ = opt['tlb']
        for t in ('v_mul_u32_u24 v40, %d, v29' % n_, 'v_add_u32 v40, v40, v30', 'v_mul_u32_u24 v40, %d, v40' % (393216 // (4 * n_)),
                  'v_subrev_u32 v41, %d, v30' % n_, 'v_not_b32 v41, v41', 'v_and_b32 v41, 0x40000000, v41', 'v_or_b32 v40, v40, v41',
                  'buffer_load_dword v41, v40, s[28:31], 0 offen nt', 'buffer_load_dword v42, v40, s[32:35], 0 offen nt'): P.job(t, pre=True)
    pstamp(2)
    P.job('; touch', pre=True)
    for t in ('s_waitcnt lgkmcnt(0)', 's_mul_i32 s45, s45, 0x9e3779b1', 's_add_u32 s45, s45, 0x7f4a7c15'): P.job(t, pre=True)
    pstamp(3)
    PW1 = opt.get('pw1', 1)
    if not EARLY:
        for qt in range(NQ): dma_x(1, qt, None)
        if PW1: dma_tile(('W', 1), None, dyn=False)
    P.job(WAIT(sum((dmas['X0_%d' % qt] for qt in range(NQ)), [])), pre=True)
    xr = {(0, qt): x_reads(0, qt, 0, 0, [], pre=True) for qt in range(NQ)}
    P.job(WAIT(dmas['W', 0]), pre=True)
    bar = {0: P.job('s_barrier', pre=True)}
    after_bar = {n: [('W', n + 2)] for n in range(1, 8)}
    after_bar[8] = [('K', 0), ('V', 0)]; after_bar[9] = [('K', 1), ('K', 2)]; after_bar[10] = [('V', 1)]; after_bar[11] = [('K', 3)]
    XB = opt.get('xb', 0)
    if XB >= 1: after_bar[8] = [('V', 0)]
    if XB >= 2: after_bar[9] = [('K', 2)]
    KD = opt.get('kd', 0) / 10.0
    first6 = [('K', 0), ('V', 0), ('K', 1), ('K', 2), ('V', 1), ('K', 3)]
    kat = [0]
    def dma_first(t, st, dep):
        at = max(st + 4, kat[0]); kat[0] = at + KD * GL
        dma_tile(t, at, KD * GL / 6.0, [dep], dyn=False)
    for n in range(12, 42):
        kind, j = TILES[n - 1]
        after_bar[n] = [('V', j + 1) if kind == 'K' else ('K', j + 4)]
    after_bar[41] = []
    waitjob = {}
    stamps = opt.get('stamps')
    def stamp(k, at):
        if stamps:
            a = P.job('s_memrealtime s[%d:%d]' % (72 + 4 * k, 73 + 4 * k), lo=at, hi=at); a.cls = 's'
            b = P.job('s_memtime s[%d:%d]' % (74 + 4 * k, 75 + 4 * k), lo=at, hi=at, deps=[(a, 0)]); b.cls = 's'
            P.job('s_waitcnt lgkmcnt(0)', lo=at, hi=at, deps=[(b, 0)])

    def softmax(j, sub_kt=0):
        for kt in range(4):
            for qt in range(NQ):
                sb = SBLK[kt, qt]; pb = PBLK[j & 1, kt >> 1, qt] + 2 * (kt & 1)
                if kt < sub_kt:
                    if opt.get('pk') == 1:
                        for r in (0, 2): P.job('v_pk_add_f32 %s, %s, %s' % (vr(sb + r, 2), vr(sb + r, 2), vr(NEGM[qt], 2)))
                    else:
                        for r in range(4): P.job('v_add_f32 v%d, v%d, v%d' % (sb + r, sb + r, NEGM[qt]))
                for r in range(4): P.job('v_exp_f32 v%d, v%d' % (sb + r, sb + r))
                if opt.get('ls'):
                    for r in range(4): P.job('v_add_f32 v%d, v%d, v%d' % (12 + qt, 12 + qt, sb + r))
                for h in range(2): P.job('v_cvt_pk_bf16_f32 v%d, v%d, v%d' % (pb + h, sb + 2 * h, sb + 2 * h + 1))
    def advance(ring, lo, dummy):
        pos, dst, dl, regs = ('s6', 's16', 's8', (1, 2)) if ring == 'K' else ('s7', 's17', 's9', (3, 4, 5, 6))
        for t in ['s_add_u32 %s, s41, %s' % (dst, pos), 's_add_u32 s10, %s, %d' % (pos, 2 * TS), 's_sub_u32 s11, s10, %d' % (6 * TS),
                  's_min_u32 s10, s10, s11', 's_sub_u32 %s, s10, %s' % (dl, pos), 's_mov_b32 %s, s10' % pos]:
            P.job(t, lo=lo, dummy=dummy)
        for r in regs: P.job('v_add_u32 v%d, %s, v%d' % (r, dl, r), lo=lo, dummy=dummy)
    SUBKT = opt.get('subkt', 3)
    WROWS = 384 if opt.get('kmap', 1) else 192
    tmpblk = []
    for n, (kind, j) in enumerate(TILES):
        P.phase = n
        if kind == 'W' and n > 0 and n % 2 == 0:
            for r in (16, 17): P.job('v_xor_b32 v%d, 0xc000, v%d' % (r, r))
        if n == 11:
            for r in (1, 2): P.job('v_add_u32 v%d, %d, v%d' % (r, TS, r))
        if n == 10:
            for t in k2g.rotation(opt) if opt.get('k2') == 2 else (k2f.inner(opt, 's15', 's12', 's13') + '\n' + k2f.rotation(opt, 's15', 's12')).split('\n') + ['s_mul_i32 s14, s15, %d' % k2f.WSTEP, 's_lshl_b32 s15, s15, 10']:
                P.job(t, lo=start[10], hi=start[10, 8])
        if n == 10 and opt.get('wl'):
            P.job('s_mov_b32 s101, %d' % (-opt['wl'] * 128 * (1 + opt.get('wls', 0))), lo=start[10], hi=start[10, 8])
        if n == 40:
            if opt.get('ls'):
                for r in range(4): P.job('v_accvgpr_read_b32 v%d, a%d' % (XV + r, 248 + r), lo=start[40] - 2, hi=start[40])
            for m in range(9): dma_wo(m, start[40] + 2 + m * GL, GL / 2.0)
            for e in str(opt.get('lw', '')).split(','):
                if not e: continue
                w_, g_ = [int(z) for z in e.split('@')]
                dma_group('warm', None, ['s_mov_b32 m0, %d' % (FLAG + 1024), 's_mov_b32 s43, %d' % (w_ * WROWS * 1280)],
                          ['buffer_load_dword v11, s[48:51], s43 offen lds'], start[40] + g_ * GL, 1, [])
            flush_plan()
        if n == 41: advance('V', 0, False)
        if kind == 'V':
            for qt in range(NQ):
                for kp in range(0 if opt.get('ls') else 2):
                    P.mfma(ar(LACC + 4 * qt), ar(ONES), vr(PBLK[j & 1, kp, qt]), '0' if (j == 0 and kp == 0) else ar(LACC + 4 * qt))
            if j == 15:
                RL = NEGM[0]
                for qt in range(NQ):
                    if not opt.get('ls'): P.job('v_accvgpr_read_b32 v%d, a%d' % (RL + qt, LACC + 4 * qt), dlat=4); continue
                    t = 12 + qt; u = RL + qt
                    for x in ('v_mov_b32 v%(u)d, v%(t)d', 'v_permlane32_swap_b32 v%(t)d, v%(u)d', 'v_add_f32 v%(t)d, v%(t)d, v%(u)d', 'v_mov_b32 v%(u)d, v%(t)d',
                              'v_permlane16_swap_b32 v%(t)d, v%(u)d', 'v_add_f32 v%(u)d, v%(t)d, v%(u)d'): P.job(x % dict(t=t, u=u))
                for qt in range(1, NQ): P.job('v_add_f32 v11, v%d, v%d' % (RL if qt == 1 else 11, RL + qt))
                for qt in range(NQ): P.job('v_rcp_f32 v%d, v%d' % (RL + qt, RL + qt))
                P.job('s_mov_b32 s100, 0x%08x' % f2u(opt.get('limit', 2.0 ** 30)))
                P.job('v_cmp_nge_f32 s[100:101], s100, v11')
                P.job('s_or_b32 s100, s100, s101')
                P.job('v_mov_b32 v11, s100')
                freg = (FLAG, FLAG + 16, True, 'flag', None)
                fw = P.job(I('ds_write_b32 v%d, v11' % XV, lds=freg), hi=start[n, 4])
                w1 = P.job(WAIT([fw.ins]), lo=start[n, 6] - 1, hi=start[n, 6] - 1, deps=[fw])
                b1 = P.job('s_barrier', lo=start[n, 6] - 1, hi=start[n, 6] - 1, deps=[(w1, 0)])
                F = NEGM[1]
                fr = P.job(I('ds_read_b128 %s, v%d' % (vr(F), XV + 1), lds=freg), deps=[b1], hi=start[n, 7])
                w2 = P.job(WAIT([fr.ins]), lo=start[n, 9], deps=[(fr, 8)])
                P.job('v_or_b32 v%d, v%d, v%d' % (F, F, F + 1), deps=[w2])
                P.job('v_or3_b32 v%d, v%d, v%d, v%d' % (F, F, F + 2, F + 3), deps=[w2])
                P.job('v_readfirstlane_b32 s100, v%d' % F)
                for m in range(12, 15): dma_wo(m, start[n, 6] + 2 + (m - 12) * GL, GL / 2.0, [b1])
                flush_plan()
                tmpblk = [SBLK[a, b] for a in range(4) for b in range(4)][4 * (6 - opt.get('se', 2)):] + [PBLK[0, a, b] for a in range(2) for b in range(4)] + [NEGM[2]] + ([] if opt.get('ls') else [NEGM[3]])
                tt = {}
        for g in range(12):
            k = n * 12 + g
            st = start[n, g]
            pre = k < 3
            deps = [(bar[n], 0)]
            lo = max(prev_end(n, g, 4), 0)
            rj = [P.job(x, lo=lo, hi=lo + GL + 2, deps=deps, pre=pre) for x in reads_txt(n, g)]
            cover = [x.ins for x in rj]
            wd = list(rj)
            xq = g // 2 if (kind == 'W' and g % 2 == 0 and g // 2 < NQ and n + 1 <= 9) else None
            xd = g // 2 - 1 if (kind == 'W' and g % 2 == 0 and 0 <= g // 2 - 1 < NQ and n + 1 <= 9) else None
            if k == 0:
                for qt in range(NQ): cover += [x.ins for x in xr[0, qt]]
            if xd is not None: cover += [x.ins for x in xr[n + 1, xd]]; wd += xr[n + 1, xd]
            if g == 9 and n + 1 < 42: cover += dmas[TILES[n + 1]]
            if xq is not None and k > 0: cover += dmas['X%d_%d' % (n + 1, xq)]
            wj = P.job(WAIT(cover), lo=st - 1, hi=st - 1, deps=wd, first=True, pre=(k == 0), name='W%d' % g)
            waitjob[n, g] = wj
            if g == 0 and 7 <= n < 7 + XB:
                dma_first(('K', n - 7), st, P.job('s_barrier', lo=st, hi=st, deps=[(wj, 0)], name='XB'))
            if g == 1 and 11 <= n <= 40: advance('V' if kind == 'K' else 'K', st, n >= 40)
            if g == 9 and n + 1 < 42:
                bar[n + 1] = P.job('s_barrier', lo=st - 1, hi=st - 1, deps=[(wj, 0)])
                tl = after_bar[n + 1]
                span = opt.get('spw', 5) if n + 1 < 8 else opt.get('sp8', 3 if XB else 11) if n + 1 == 8 else opt.get('sp9', 11) if n + 1 == 9 else opt.get('spa', 11)
                for i, t in enumerate(tl):
                    if KD and t in first6: dma_first(t, st, bar[n + 1]); continue
                    spc = span * GL / (6.0 * len(tl))
                    dma_tile(t, st + 4 + i * 6 * spc + (opt.get('sh', 0) * GL if n >= 11 else 0), spc, [bar[n + 1]], dyn=(n < 7 or n >= 11))
                if opt.get('sk') and 1 <= n <= 6:
                    nl = 60 // (6 - opt['sk'] - opt.get('sz', 0))
                    dma_group('warm', None, ['s_add_u32 s101, s101, %d' % (nl * 128), 's_min_u32 s100, s101, 0x7ff00000'],
                              ['buffer_load_dword v18, v19, s[48:51], s100 offen%s' % opt.get('wmpol', '')], st + 1, 1, [])
                elif opt.get('sw') and 1 <= n <= 6:
                    dma_group('warm', None, ['s_add_u32 s101, s101, 1280'], ['buffer_load_dword v18, v19, s[48:51], s101 offen%s' % opt.get('wmpol', '')], st + 1, 1, [])
                if opt.get('pfk') and 1 <= n <= 6 and n % 2 == opt.get('pfp', 0):
                    dma_group('warm', None, ['s_add_u32 s100, s100, %d' % (opt['pfk'] * 512)], ['buffer_load_dword v18, v31, s[28:31], s100 offen%s' % opt.get('pfpol', '')], st + 2, 1, [])
                if str(n) in str(opt.get('op', '')).split(','):
                    dma_group('warm', None, ['s_add_u32 s101, s101, 2048'], ['buffer_load_dword v18, v19, s[36:39], s101 offen%s' % opt.get('wmpol', '')], st + 1, 1, [])
                if str(n) in str(opt.get('wp', '')).split(','):
                    if n >= 9: dma_group('warm', None, ['s_mov_b32 m0, %d' % (FLAG + 1024), 's_add_u32 s101, s101, %d' % (WROWS * 1280)],
                                         ['buffer_load_dword v11, s[48:51], s101 offen%s lds' % opt.get('wmpol', '')], st + 1, 1, [])
                    else: dma_group('warm', None, ['s_add_u32 s101, s101, %d' % (WROWS * 1280)],
                                    ['buffer_load_dword v18, v11, s[48:51], s101 offen%s' % opt.get('wmpol', '')], st + 1, 1, [])
                if opt.get('wl') and 13 <= n < 40 and (n - 13) % 4 in [int(z) for z in str(opt.get('wlp', 1))]:
                    dma_group('warm', None, ['s_add_u32 s101, s101, %d' % (opt['wl'] * 128), 's_min_u32 s100, s101, 0x7ff00000'],
                              ['buffer_load_dword a245, v11, s[48:51], s100 offen%s' % opt.get('wmpol', '')], st + 1, 1, [])
                if n == 40:
                    for m in range(9, 12): dma_wo(m, st + 2 + (m - 9) * GL, GL / 2.0, [bar[n + 1]])
                if n >= 9: flush_plan()
            if xq is not None:
                wx = wj
                if k == 0: wx = P.job(WAIT(dmas['X1_0']), lo=GL - 3, hi=GL - 3, name='WX')
                xr[n + 1, xq] = x_reads(n + 1, xq, st - 1, st + GL + 2, [(wx, 0)])
            if k == 0:
                sp0 = GL / 2.0; at = 1; P.phase = -5
                if not PW1: sp0 = GL / 3.0; dma_tile(('W', 1), at, sp0, dyn=False); at += 6 * sp0
                for qt in range(NQ): dma_x(2, qt, at, sp0); at += 2 * sp0
                if EARLY < 2: dma_tile(('W', 2), at, sp0, dyn=False); at += 6 * sp0
                x3at = at; P.phase = 0
            if xd is not None and n + 3 <= 9:
                if n == 0:
                    x3at = max(x3at, st + 4); dma_x(3, xd, x3at, 2, [wj]); x3at += 4
                else: dma_x(n + 3, xd, st + 4, GL if xd < 3 else GL // 2, [wj])
            sl = str(opt.get('sl', '0,10,12,41')).split(',')
            if g == 0 and str(n) in sl: stamp(1 + sl.index(str(n)), st)
            if opt.get('ktrace') and g == 0 and n <= 40:
                a_ = P.job('s_memrealtime s[90:91]', lo=st, hi=st); a_.cls = 's'
                b_ = P.job('s_waitcnt lgkmcnt(0)', lo=st, hi=st, deps=[(a_, 0)])
                P.job('s_lshl_b32 s90, s90, 6', lo=st, hi=st + 1, deps=[(b_, 0)])
                P.job('s_or_b32 s90, s90, s98', lo=st, hi=st + 1)
                P.job('v_writelane_b32 v11, s90, s90', lo=st, hi=st + 2)
                P.job('s_add_u32 s98, s98, 1', lo=st, hi=st + 3)
                if n == 40: P.job('v_accvgpr_write_b32 a244, v11')
            rb = RING + (g % 4) * 8
            EO = opt.get('eo', 0) >> {'W': 0, 'K': 2, 'V': 4}[kind] & 3
            if EO == 1: order_ = [(qt, e) for e in range(2) for qt in range(NQ)]
            elif EO == 2: order_ = [(qt, e) for e in range(2) for qt in (range(NQ) if e == 0 else range(NQ - 1, -1, -1))]
            elif EO == 3: order_ = [(qt, (e ^ qt) & 1) for qt in range(NQ) for e in range(2)]
            else: order_ = [(qt, e) for qt in range(NQ) for e in range(2)]
            if opt.get('serp') and kind == 'K' and g % 3 == 1:
                order_ = [(NQ - 1 - qt, e) for qt, e in order_]
            seen_ = set()
            for qt, e_ in order_:
                if 1:
                    A = ar(rb + 4 * e_); e = e_; fst_ = qt not in seen_; seen_.add(qt)
                    if kind == 'W':
                        d = vr(qacc(g, qt)); P.mfma(d, A, ar(xfrag(n, e, qt)), '0' if (n == 0 and fst_) else d)
                    elif kind == 'K':
                        kt, sp = g // 3, g % 3
                        d = vr(SBLK[kt, qt]); c = d
                        if sp == 0 and fst_: c = '0' if (j == 0 and kt < SUBKT) else vr(NEGM[qt])
                        P.mfma(d, A, vr(qfrag(2 * sp + e, qt)), c)
                    else:
                        d = ar(oacc(g, qt)); P.mfma(d, A, vr(PBLK[j & 1, e, qt]), '0' if (j == 0 and fst_) else d)
            if n == 9:
                for qt in range(NQ):
                    b = qacc(g, qt)
                    if opt.get('pk') and g >= opt.get('pkg', 0):
                        for r in (0, 2): P.job('v_pk_mul_f32 %s, s[44:45], %s op_sel_hi:[0,1]' % (vr(b + r, 2), vr(b + r, 2)), dlat=5)
                    else:
                        for r in range(4): P.job('v_mul_f32 v%d, s44, v%d' % (b + r, b + r), dlat=5)
                    for h in range(2): P.job('v_cvt_pk_bf16_f32 v%d, v%d, v%d' % (qfrag(g >> 1, qt) + 2 * (g & 1) + h, b + 2 * h, b + 2 * h + 1))
            if n == 10 and g == 2:
                for qt in range(NQ):
                    sb = SBLK[0, qt]; t = PBLK[1, 0, qt]
                    P.job('v_max3_f32 v%d, v%d, v%d, v%d' % (t, sb, sb + 1, sb + 2), dlat=5)
                    P.job('v_max_f32 v%d, v%d, v%d' % (t, t, sb + 3), dlat=5)
                    P.job('v_mov_b32 v%d, v%d' % (t + 1, t))
                    P.job('v_permlane32_swap_b32 v%d, v%d' % (t, t + 1))
                    P.job('v_max_f32 v%d, v%d, v%d' % (t, t, t + 1))
                    P.job('v_mov_b32 v%d, v%d' % (t + 1, t))
                    P.job('v_permlane16_swap_b32 v%d, v%d' % (t, t + 1))
                    P.job('v_max_f32 v%d, v%d, v%d' % (t, t, t + 1))
                    for r in range(4): P.job('v_sub_f32 v%d, 0, v%d' % (NEGM[qt] + r, t))
            if n == 41:
                for qt in range(NQ):
                    if (g & 1) == 0:
                        tt[qt] = t = t0 = late_blk(opt, g >> 1, qt) or tmpblk.pop(0)
                        if (g >> 1) < opt.get('se', 2): tmpblk.append(t)
                    else: t0 = tt[qt]; t = tmpblk.pop(0); tmpblk.append(t)
                    for r in range(4): P.job('v_accvgpr_read_b32 v%d, a%d' % (t + r, oacc(g, qt) + r), dlat=5)
                    if opt.get('pk') and g >= opt.get('pkg', 0):
                        for r in (0, 2): P.job('v_pk_mul_f32 %s, %s, %s op_sel:[0,%d] op_sel_hi:[1,%d]' % (vr(t + r, 2), vr(t + r, 2), vr(NEGM[0] + (qt & 2), 2), qt & 1, qt & 1))
                    else:
                        for r in range(4): P.job('v_mul_f32 v%d, v%d, v%d' % (t + r, t + r, NEGM[0] + qt))
                    for h in range(2): P.job('v_cvt_pk_bf16_f32 v%d, v%d, v%d' % (t0 + 2 * (g & 1) + h, t + 2 * h, t + 2 * h + 1))
                    if (g & 1) and (g >> 1) < opt.get('se', 2):
                        s = g >> 1
                        P.job('buffer_store_dwordx4 %s, v10, s[36:39], s%d offen offset:%d%s' % (vr(t0), 56 + 2 * qt + (s >> 2), (s & 3) * 1024, opt.get('opol', ' sc1')))
        if kind == 'K': softmax(j, SUBKT if j == 0 else 0)
    assert P.n() == total
    w0i = waitjob[0, 0].ins
    P.pre.remove(w0i); P.pre.append(w0i)
    P.start = start
    P.wo = {m: dmas['WO', m] for m in range(15)}
    return P

def k1_body(NQ, opt):
    dense = opt.get('dense', 5)
    def run(P, regions):
        slots_fn = lambda g: dense if g >= P.start[41, 1] else 2
        return schedule(P.mf, P.jobs, verbose=opt.get('verbose'), slots_fn=slots_fn, regions=regions)
    P1 = k1_build(NQ, opt); run(P1, ())
    st = P1.start
    P = k1_build(NQ, opt)
    regions = []
    for n0, pn, n1, ref in LOOPS:
        L0 = st[n0]; T = st[n0 + pn] - L0; L1 = st[n1]
        regions.append((L0, L1))
        cls = {}
        for j in P1.jobs:
            if L0 + ref * T <= j.gap < L0 + (ref + 1) * T:
                ph, nm, c = j.key
                k = ((ph - n0) % pn, nm, c)
                assert k not in cls, ('duplicate class', k)
                cls[k] = (j.gap - L0 - ((ph - n0) // pn) * T, j.ord)
        for j in P.jobs:
            if j.gap is not None: continue
            ph, nm, c = j.key
            if not (n0 - pn <= ph < n1 + pn): continue
            k = ((ph - n0) % pn, nm, c)
            if k in cls:
                p = L0 + ((ph - n0) // pn) * T + cls[k][0]
                if L0 <= p < L1: j.pin = (p, cls[k][1]); j.lo = j.hi = p
                elif p < L0: j.hi = min(j.hi, L0 - 1)
                else: j.lo = max(j.lo, L1)
            else:
                assert not (n0 <= ph < n1), ('no class for', j.key)
        for j in P.jobs:
            if j.gap is None and j.pin is None:
                if j.key[0] < n0: j.hi = min(j.hi, L0 - 1) if j.lo < L1 else j.hi
                elif j.key[0] >= n1: j.lo = max(j.lo, L1)
    for j in P.jobs:
        if j.dummy and j.pin is None: j.gap = -10
    body, left, over = run(P, regions)
    errs = verify(P.jobs)
    for e in errs[:20]: print('ERR', e)
    assert not errs
    marks = []
    idx = {id(m): i for i, m in enumerate(P.mf)}
    seq = []
    want = {}
    for li, (n0, pn, n1, ref) in enumerate(LOOPS):
        L0 = st[n0]; T = st[n0 + pn] - L0; L1 = st[n1]
        ex = (L1 - L0) % T
        for p in range(L0, L1 + 1, T):
            want.setdefault(p, []).append((li, 'it'))
            if ex and p + ex <= L1: want.setdefault(p + ex, []).append((li, 'ex'))
    for x in body:
        i = idx.get(id(x))
        if i is not None and i in want:
            for li, w in want[i]:
                m = I('; L%d %s' % (li, w)); m.mark = (li, w); seq.append(m)
        seq.append(x)
    return P.pre + seq + left, over, P.wo

def fold(seq, tag):
    out = list(seq)
    for li, (n0, pn, n1, ref) in enumerate(LOOPS):
        pos = [i for i, x in enumerate(out) if getattr(x, 'mark', None) == (li, 'it')]
        exs = [i for i, x in enumerate(out) if getattr(x, 'mark', None) == (li, 'ex')]
        segs = [out[pos[i]:pos[i + 1]] for i in range(len(pos) - 1)]
        end = pos[-1]
        if exs: segs.append(out[pos[-1]:exs[-1]]); end = exs[-1]
        for s in segs[1:]:
            for a, b in zip(segs[0], s): assert a.txt == b.txt, (tag, li, a.txt, b.txt)
            assert len(s) == len(segs[0]) or (exs and s is segs[-1])
        nit = len(pos) - 1
        lab = '%s_L%d' % (tag, li)
        body = segs[0][1:]
        if exs:
            e = exs[0] - pos[0] - 1
            body = body[:e] + [I('s_cmp_eq_u32 s3, %d' % nit), I('s_cbranch_scc1 %s_x' % lab), I('s_add_u32 s3, s3, 1')] + body[e + 1:] + [I('s_branch %s' % lab), I('%s_x:' % lab)]
        else:
            body = body + [I('s_add_u32 s3, s3, 1'), I('s_cmp_lg_u32 s3, %d' % nit), I('s_cbranch_scc1 %s' % lab)]
        out = out[:pos[0]] + [I('s_mov_b32 s3, 0'), I('%s:' % lab)] + body + out[end + 1:]
    return out

def unify(seq):
    for li in range(len(LOOPS)):
        pos = [i for i, x in enumerate(seq) if getattr(x, 'mark', None) == (li, 'it')]
        exs = [i for i, x in enumerate(seq) if getattr(x, 'mark', None) == (li, 'ex')]
        ends = pos[1:] + ([exs[-1]] if exs else [])
        segs = [seq[a:b] for a, b in zip(pos, ends)]
        for k in range(len(segs[0])):
            col = [s[k] for s in segs if k < len(s)]
            if getattr(col[0], 'cover', None) is None: continue
            c = {}
            for x in col:
                for nm, v in re.findall(r'(vmcnt|lgkmcnt)\((\d+)\)', x.txt): c[nm] = min(c.get(nm, 99), int(v))
            t = 's_waitcnt ' + ' '.join('%s(%d)' % (nm, c[nm]) for nm in ('vmcnt', 'lgkmcnt') if nm in c) if c else 's_nop 0'
            if len(set(x.txt for x in col)) > 1: print('   unified', sorted(set(x.txt for x in col)), '->', t)
            for x in col: x.txt = t; x.parse()

def k1_prologue(opt):
    L = []
    a = lambda t: L.extend(I(x) for x in t.strip().split('\n'))
    a('''s_cmp_lt_u32 s2, 256
s_cbranch_scc1 K1_go
s_endpgm
K1_go:
s_load_dwordx8 s[4:11], s[0:1], 0
s_load_dwordx2 s[18:19], s[0:1], 56
s_load_dwordx2 s[48:49], s[0:1], 32''')
    if opt.get('stamps'): a('s_memrealtime s[64:65]\ns_memtime s[68:69]')
    a('''v_lshrrev_b32 v29, 6, v0
v_and_b32 v30, 63, v0
v_readfirstlane_b32 s40, v29''')
    if opt.get('map', 0) == 0:
        a('s_and_b32 s46, s2, 7\ns_lshr_b32 s47, s2, 3')
    else:
        a('''s_and_b32 s46, s2, 1
s_lshl_b32 s46, s46, 2
s_bfe_u32 s52, s2, 0x20003
s_or_b32 s46, s46, s52
s_bfe_u32 s47, s2, 0x20001
s_lshl_b32 s47, s47, 3
s_lshr_b32 s52, s2, 5
s_or_b32 s47, s47, s52''')
    if not opt.get('qrot', 1): a('s_mov_b32 s13, 0')
    elif opt.get('map', 0) == 0: a('s_mul_i32 s52, s47, 26\ns_lshr_b32 s52, s52, 8\ns_mul_i32 s52, s52, 10\ns_sub_u32 s13, s47, s52')
    else: a('''s_bfe_u32 s53, s2, 0x10003
s_mul_i32 s53, s53, ''' + str(opt.get('qa', 5 - opt.get('q0', 0) // 2)) + '''
s_add_u32 s52, s52, s53
s_bfe_u32 s53, s2, 0x10004
s_mul_i32 s53, s53, ''' + str(opt.get('qb', 2)) + '''
s_add_u32 s52, s52, s53
s_sub_u32 s53, s52, %d
s_min_u32 s13, s52, s53''' % (10 - opt.get('q0', 0)))
    a('s_lshl_b32 s14, s13, 7\ns_mul_i32 s13, s13, %d' % WSTEP)
    a('''v_lshrrev_b32 v31, 3, v30
v_and_b32 v32, 6, v31
v_and_b32 v33, 7, v30
v_xor_b32 v32, v32, v33
v_lshl_add_u32 v31, v29, 6, v31
v_mul_u32_u24 v31, 1280, v31
v_lshl_add_u32 v25, v32, 4, v31
v_add_u32 v26, 9216, v25
v_add_u32 v27, 18432, v25
v_add_u32 v28, 27648, v25''')
    a('v_mul_u32_u24 v34, 6144, v29\nv_lshlrev_b32 v35, 4, v29')
    for t in range(3):
        a('''v_add_u32 v31, %d, v30
v_mul_u32_u24 v32, 171, v31
v_lshrrev_b32 v32, 12, v32
v_mul_u32_u24 v33, 24, v32
v_sub_u32 v33, v31, v33
v_lshlrev_b32 v36, 1, v32
v_and_b32 v36, 4, v36
v_xor_b32 v33, v33, v36
v_add_u32 v36, v35, v32
v_mul_u32_u24 v36, 12288, v36
v_lshl_add_u32 v33, v33, 4, v36
v_subrev_u32 v%d, %d, v33
v_and_b32 v32, 6, v32
v_xor_b32 v32, v32, v30
v_lshl_add_u32 v%d, v32, 4, v34''' % (64 * t, 22 + t, 1024 * t, 7 + t))
    a('''s_mul_i32 s41, s40, 6144
s_lshl_b32 s42, s40, 13
s_add_u32 s42, s42, %d
s_mul_i32 s52, s46, 307200
s_mul_i32 s53, s47, 384
s_lshl_b32 s54, s46, 5
s_add_u32 s54, s54, s47
s_mul_i32 s54, s54, 393216
s_mul_i32 s55, s46, 2880
s_mul_i32 s56, s47, 6
s_add_u32 s55, s55, s56
s_lshl_b32 s55, s55, 10
s_mov_b32 s22, 307200
s_mov_b32 s23, 0x00020000
s_sub_u32 s26, 7864320, s53
s_mov_b32 s27, 0x00020000
s_mov_b32 s30, 393216
s_mov_b32 s31, 0x00020000
s_mov_b32 s34, 393216
s_mov_b32 s35, 0x00020000
s_sub_u32 s38, 23592960, s55
s_mov_b32 s39, 0x00020000
s_waitcnt lgkmcnt(0)
s_add_u32 s20, s4, s52
s_addc_u32 s21, s5, 0
s_add_u32 s24, s10, s53
s_addc_u32 s25, s11, 0
s_add_u32 s28, s6, s54
s_addc_u32 s29, s7, 0
s_add_u32 s32, s8, s54
s_addc_u32 s33, s9, 0
s_add_u32 s36, s18, s55
s_addc_u32 s37, s19, 0''' % XB0)
    mid = '''s_add_u32 s52, s18, %d
s_addc_u32 s53, s19, 0
s_load_dword s45, s[52:53], 1024
s_mov_b32 s54, 2048
s_mov_b32 s55, 0x00020000
''' % k2f.OBYTES + k2f.inner(opt, 's56', 's57', 's58') + '''
s_lshl_b32 s59, s56, 6
''' + ('s_lshl_b32 s57, s57, 1' if opt.get('k2') == 2 else k2f.outer(opt, 's56', 's57', 's58')) + '''
s_lshl_b32 s57, s57, 7
s_add_u32 s48, s48, s57
s_addc_u32 s49, s49, 0
s_sub_u32 s50, 7864320, s57
s_mov_b32 s51, 0x00020000
s_mov_b32 s101, %d
v_lshrrev_b32 v31, 4, v0
v_min_u32 v31, 14, v31
v_mul_u32_u24 v31, 196608, v31
v_and_b32 v32, 15, v0
v_lshl_add_u32 v19, v32, 7, v31
''' % (-2048 if opt.get('op') else -(384 if opt.get('kmap', 1) else 192) * 1280) + '''v_lshrrev_b32 v31, 3, v30
v_and_b32 v32, 6, v31
v_and_b32 v33, 7, v30
v_xor_b32 v32, v32, v33
v_mul_u32_u24 v33, 1536, v29
v_add_u32 v31, v33, v31
v_mul_u32_u24 v31, 1280, v31
v_lshl_add_u32 v14, v32, 4, v31
v_add_u32 v15, 9216, v14
v_add3_u32 v11, v33, s59, v30
v_mul_u32_u24 v11, 1280, v11
'''
    if opt.get('k2') == 2:
        mid = mid.replace('s[52:53], 1024', 's[52:53], 32768').replace('s_mov_b32 s54, 2048', 's_mov_b32 s54, 36864')
        mid = mid[:mid.index('s_mov_b32 s101')] + k2g.wo_addr(14, 30, 29, 31) + '\n'
    mid += '''v_lshrrev_b32 v31, 4, v30
v_and_b32 v32, 15, v30
v_and_b32 v33, 6, v32
v_xor_b32 v33, v33, v31
v_lshlrev_b32 v33, 4, v33
v_lshl_add_u32 v20, v32, 7, v33
v_add_u32 v20, s42, v20
v_xor_b32 v21, 64, v20
v_mul_u32_u24 v1, 384, v32
v_add_u32 v1, v1, v33
v_add_u32 v1, %d, v1
v_xor_b32 v2, 64, v1
v_bfe_u32 v32, v30, 2, 2
v_lshl_add_u32 v33, v31, 3, v32
v_mul_u32_u24 v33, 384, v33
v_lshlrev_b32 v32, 1, v32
v_and_b32 v32, 4, v32
v_and_b32 v34, 3, v30
v_xor_b32 v32, v32, v34
v_lshl_add_u32 v16, v32, 4, v33
v_xor_b32 v17, 64, v16
v_lshrrev_b32 v31, 2, v30
v_and_b32 v32, 6, v31
v_lshrrev_b32 v33, 1, v34
v_xor_b32 v32, v32, v33
v_lshlrev_b32 v32, 4, v32
v_and_b32 v33, 1, v30
v_lshl_add_u32 v32, v33, 3, v32
v_mul_u32_u24 v31, 384, v31
v_add_u32 v3, v31, v32
v_add_u32 v3, %d, v3
v_xor_b32 v4, 32, v3
v_xor_b32 v5, 64, v3
v_xor_b32 v6, 96, v3
v_mul_u32_u24 v10, 786432, v29
v_lshl_add_u32 v10, v30, 4, v10
v_lshlrev_b32 v12, 2, v29
v_add_u32 v12, %d, v12
v_mov_b32 v13, %d
v_mov_b32 v31, 0x3f803f80
v_accvgpr_write_b32 a240, v31
v_accvgpr_write_b32 a241, v31
v_accvgpr_write_b32 a242, v31
v_accvgpr_write_b32 a243, v31
s_mov_b32 s44, 0x%08x
s_mov_b32 s4, 98304
s_mov_b32 s5, 49152
s_mov_b32 s6, 73728
s_mov_b32 s7, 49152
s_add_u32 s12, s41, 49152
s_add_u32 s15, s41, s12''' % (2 * TS, 2 * TS, FLAG, FLAG, f2u(math.log2(math.e) / math.sqrt(192.0)))
    if opt.get('sw'):
        mid += '''
v_mul_u32_u24 v31, 60, v29
v_add_u32 v31, v31, v30
v_lshlrev_b32 v19, 7, v31
v_subrev_u32 v31, 10, v30
v_not_b32 v31, v31
v_and_b32 v31, 0x40000000, v31
v_or_b32 v19, v19, v31
s_mul_i32 s101, s2, 30720
s_add_u32 s101, s101, s50
s_sub_u32 s101, s101, %d''' % (7864320 + 1280)
        if opt.get('sk'):
            nl = 60 // (6 - opt['sk'] - opt.get('sz', 0))
            mid = mid.replace('v_subrev_u32 v31, 10, v30', 'v_subrev_u32 v31, %d, v30' % nl)
            mid += '''
s_add_u32 s101, s101, 1280
s_max_i32 s101, s101, 0
v_add_u32 v19, s101, v19
s_mov_b32 s101, %d''' % (-(opt['sk'] + 1) * nl * 128)
    if opt.get('wl'):
        mid += '''
s_bfe_u32 s56, s2, 0x20001
s_lshl_b32 s56, s56, 5
s_lshr_b32 s57, s2, 3
s_add_u32 s56, s56, s57
s_mul_i32 s56, s56, 480
v_mul_u32_u24 v31, 120, v29
v_add3_u32 v31, v31, v30, s56
s_sub_u32 s56, s50, 7864320
v_lshl_add_u32 v11, v31, 7, s56
v_subrev_u32 v31, %d, v30
v_not_b32 v31, v31
v_and_b32 v31, 0x40000000, v31
v_or_b32 v11, v11, v31''' % opt['wl']
    if opt.get('pfk'):
        mid += '''
v_mul_u32_u24 v31, %d, v29
v_add_u32 v31, v31, v30
v_lshlrev_b32 v31, 7, v31
v_subrev_u32 v32, %d, v30
v_not_b32 v32, v32
v_and_b32 v32, 0x40000000, v32
v_or_b32 v31, v31, v32
s_mov_b32 s100, %d''' % (opt['pfk'], opt['pfk'], -opt['pfk'] * 512)
    mid = mid.split('\n')
    for qt in range(4):
        for hh in range(2): mid.append('s_mov_b32 s%d, %d' % (56 + 2 * qt + hh, qt * 196608 + hh * 4096))
    if opt.get('ktrace'): mid.append('s_mov_b32 s98, 0')
    if opt.get('ls'):
        for r in range(4): mid += ['v_accvgpr_write_b32 a%d, v%d' % (248 + r, 12 + r), 'v_mov_b32 v%d, v%d' % (NEGM[3] + r, 12 + r), 'v_mov_b32 v%d, 0' % (12 + r)]
    mid += ['s_cmp_eq_u32 s40, 3', 's_cselect_b32 s62, 0x7ff00000, s62', 's_cselect_b32 s63, 0x7ff00000, s63']
    return L, mid

def stamp_code(label, nst, tmp=96):
    L = []
    a = lambda t: L.extend(I(x) for x in t.strip().split('\n'))
    a('s_waitcnt vmcnt(0)\ns_memrealtime s[66:67]\ns_memtime s[70:71]\ns_memrealtime s[%d:%d]\ns_memtime s[%d:%d]\ns_waitcnt lgkmcnt(0)' % (72 + 4 * nst, 73 + 4 * nst, 74 + 4 * nst, 75 + 4 * nst))
    a('s_mov_b64 s[72:73], s[64:65]\ns_mov_b64 s[74:75], s[68:69]')
    a('''s_add_u32 s96, s18, 0x%x
s_addc_u32 s97, s19, 0
s_mov_b32 s98, 0x1000000
s_mov_b32 s99, 0x00020000
s_cmp_lg_u32 s40, 0
s_cbranch_scc1 %s
s_lshl_b32 s4, s2, 8
s_add_u32 s4, s4, 0x100000
v_lshlrev_b32 v11, 2, v0
v_lshlrev_b32 v14, 6, v255
s_nop 1
buffer_store_dword v14, v11, s[96:99], s4 offen
s_mul_i32 s4, s2, 128
v_mov_b32 v11, s4
s_mov_b64 exec, 1''' % (STAMP_OFF, label))
    regs = [64, 66, 68, 70] + [72 + 2 * i for i in range(2 * nst + 2)]
    for i, r in enumerate(regs):
        a('v_mov_b32 v14, s%d\nv_mov_b32 v15, s%d\nbuffer_store_dwordx2 v[14:15], v11, s[96:99], 0 offen offset:%d\ns_nop 1' % (r, r + 1, 8 * i))
    a('s_waitcnt vmcnt(0)\n%s:' % label)
    return L

def k1_fallback(opt):
    L = []
    a = lambda t: L.extend(I(x) for x in t.strip().split('\n'))
    MX = 12
    a('K1_fb:\ns_waitcnt vmcnt(0) lgkmcnt(0)\ns_barrier')
    a('s_sub_u32 s6, s6, %d\ns_sub_u32 s7, s7, %d' % (4 * TS, 4 * TS))
    for r in (1, 2): a('v_subrev_u32 v%d, s6, v%d' % (r, r))
    for r in (3, 4, 5, 6): a('v_subrev_u32 v%d, s7, v%d' % (r, r))
    for qt in range(4):
        a('v_mov_b32 v%d, 0xff7fffff' % (MX + qt))
        for r in range(4): a('v_mov_b32 v%d, 0' % (NEGM[qt] + r))
    a('s_mov_b32 s4, 0\nK1_fb_pass:\ns_mov_b32 s5, 0')
    for i in range(208): a('v_accvgpr_write_b32 a%d, 0' % i)
    a('K1_fb_loop:')
    def load(srd):
        for half in range(2):
            a('s_add_u32 m0, s41, %d\ns_add_u32 s43, s5, %d' % (4 * TS + half * 3072, half * 3072))
            for t in range(3): a('buffer_load_dwordx4 v%d, %s, s43 offen offset:%d lds' % (7 + t, srd, 1024 * t))
        a('s_waitcnt vmcnt(0)\ns_barrier')
    load('s[28:31]')
    for kt in range(4):
        for s in range(6): a('ds_read_b128 %s, v%d offset:%d' % (ar(RING + 4 * s), 1 + (s & 1), 128 * (s >> 1) + 6144 * kt))
        a('s_waitcnt lgkmcnt(0)')
        for qt in range(4):
            for s in range(6):
                d = vr(SBLK[kt, qt])
                a('v_mfma_f32_16x16x32_bf16 %s, %s, %s, %s' % (d, ar(RING + 4 * s), vr(qfrag(s, qt)), vr(NEGM[qt]) if s == 0 else d))
    a('s_nop 7\ns_cmp_lg_u32 s4, 0\ns_cbranch_scc1 K1_fb_pv')
    for kt in range(4):
        for qt in range(4):
            sb = SBLK[kt, qt]
            a('v_max3_f32 v%d, v%d, v%d, v%d\nv_max3_f32 v%d, v%d, v%d, v%d' % (MX + qt, MX + qt, sb, sb + 1, MX + qt, MX + qt, sb + 2, sb + 3))
    a('s_branch K1_fb_next\nK1_fb_pv:\ns_barrier')
    load('s[32:35]')
    for kt in range(4):
        for qt in range(4):
            sb = SBLK[kt, qt]
            for r in range(4): a('v_exp_f32 v%d, v%d' % (sb + r, sb + r))
    a('s_nop 0')
    for kt in range(4):
        for qt in range(4):
            sb = SBLK[kt, qt]; pb = PBLK[0, kt >> 1, qt] + 2 * (kt & 1)
            for h in range(2): a('v_cvt_pk_bf16_f32 v%d, v%d, v%d' % (pb + h, sb + 2 * h, sb + 2 * h + 1))
    a('s_nop 1')
    for qt in range(4):
        for kp in range(2): a('v_mfma_f32_16x16x32_bf16 %s, %s, %s, %s' % (ar(LACC + 4 * qt), ar(ONES), vr(PBLK[0, kp, qt]), ar(LACC + 4 * qt)))
    for dt in range(12):
        for kp in range(2):
            for hh in range(2): a('ds_read_b64_tr_b16 %s, v%d offset:%d' % (ar(RING + 4 * kp + 2 * hh, 2), 3 + (dt & 3), 128 * (dt >> 2) + 6144 * hh + 12288 * kp))
        a('s_waitcnt lgkmcnt(0)')
        for qt in range(4):
            for kp in range(2): a('v_mfma_f32_16x16x32_bf16 %s, %s, %s, %s' % (ar(oacc(dt, qt)), ar(RING + 4 * kp), vr(PBLK[0, kp, qt]), ar(oacc(dt, qt))))
    a('''K1_fb_next:
s_nop 7
s_barrier
s_add_u32 s5, s5, %d
s_cmp_lt_u32 s5, %d
s_cbranch_scc1 K1_fb_loop
s_cmp_lg_u32 s4, 0
s_cbranch_scc1 K1_fb_out''' % (TS, 16 * TS))
    for qt in range(4):
        t = MX + qt; u = PBLK[0, 0, 0]
        a('''v_mov_b32 v%d, v%d
s_nop 1
v_permlane32_swap_b32 v%d, v%d
v_max_f32 v%d, v%d, v%d
v_mov_b32 v%d, v%d
s_nop 1
v_permlane16_swap_b32 v%d, v%d
v_max_f32 v%d, v%d, v%d''' % (u, t, t, u, t, t, u, u, t, t, u, t, t, u))
        for r in range(4): a('v_sub_f32 v%d, 0, v%d' % (NEGM[qt] + r, t))
    a('s_mov_b32 s4, 1\ns_branch K1_fb_pass\nK1_fb_out:')
    for qt in range(4):
        a('v_accvgpr_read_b32 v11, a%d\ns_nop 0\nv_rcp_f32 v11, v11\ns_nop 0' % (LACC + 4 * qt))
        for s in range(6):
            t = 16 + 8 * (s & 1); d = late_blk(opt, s, qt) or t
            for e in range(2):
                for r in range(4): a('v_accvgpr_read_b32 v%d, a%d' % (t + 4 * e + r, oacc(2 * s + e, qt) + r))
            for r in range(8): a('v_mul_f32 v%d, v%d, v11' % (t + r, t + r))
            for h in range(4): a('v_cvt_pk_bf16_f32 v%d, v%d, v%d' % (d + h, t + 2 * h, t + 2 * h + 1))
            if d == t: a('buffer_store_dwordx4 %s, v10, s[36:39], s%d offen offset:%d%s' % (vr(t), 56 + 2 * qt + (s >> 2), (s & 3) * 1024, opt.get('opol', ' sc1')))
    a('s_waitcnt vmcnt(0)\ns_branch K1_done')
    return L

def finish(seq, name, verbose=False):
    resolve_waits(seq)
    if any(hasattr(x, 'mark') for x in seq): unify(seq)
    seq, nn = fix_hazards(seq, verbose)
    errs, info = check(seq, name)
    for e in errs[:20]: print('ERR', e)
    assert not errs, '%d errors' % len(errs)
    return seq, info, nn

def sizes(seq):
    import subprocess, tempfile, os
    ins = [x for x in seq if x.kind != 'label']
    d = tempfile.mkdtemp()
    open(d + '/a.s', 'w').write('.amdgcn_target "amdgcn-amd-amdhsa--gfx950"\n.text\n' + '\n'.join(x.txt for x in seq) + '\ns_endpgm\n')
    subprocess.check_call(['clang', '-x', 'assembler', '-target', 'amdgcn-amd-amdhsa', '-mcpu=gfx950', '-c', d + '/a.s', '-o', d + '/a.o'])
    o = subprocess.check_output(['llvm-objdump', '-d', d + '/a.o'], text=True)
    offs = [int(m.group(1), 16) for m in re.finditer(r'// ([0-9A-F]{12}):', o)]
    assert len(offs) == len(ins) + 1, (len(offs), len(ins))
    for x, a, b in zip(ins, offs, offs[1:]): x.size = b - a

def add_touch(seq, tag, opt):
    NC = opt.get('ncls', 1); STEP = opt.get('pstep', 4096 // NC)
    chains = []
    for mark, lab in (('; touch', tag + '_tr'), ('; touch2', tag + '_ts')):
        if mark not in [x.txt for x in seq]: continue
        t = [x.txt for x in seq].index(mark)
        chain = [I('s_mov_b64 vcc, 1')]
        leaves = {}
        if NC == 1:
            for w in range(4):
                leaves[0, w] = I('s_cbranch_scc1 %s' % lab)
                chain += [I('s_cmp_eq_u32 s40, %d' % w), leaves[0, w]]
        else:
            bits = [('s40', 0), ('s40', 1)] + [('s2', 3 + i) for i in range(NC.bit_length() - 1)]
            def tree(level, val):
                if level == len(bits) - 1:
                    r, b = bits[level]
                    v1 = val | (1 << level)
                    l1 = I('s_cbranch_scc1 %s' % lab); l0 = I('s_branch %s' % lab)
                    leaves[v1 >> 2, v1 & 3] = l1; leaves[val >> 2, val & 3] = l0
                    return [I('s_bitcmp1_b32 %s, %d' % (r, b)), l1, l0]
                r, b = bits[level]
                nm = '%s_n%d_%d' % (lab, level, val)
                return [I('s_bitcmp1_b32 %s, %d' % (r, b)), I('s_cbranch_scc1 %s' % nm)] + tree(level + 1, val) + [I(nm + ':')] + tree(level + 1, val | (1 << level))
            chain += tree(0, 0)
        chain += [I('%s:' % lab), I('s_mov_b64 vcc, 0')]
        seq = seq[:t] + chain + seq[t + 1:]
        chains.append((chain, lab, leaves))
    l3 = None; p3 = []
    if '; touch3' in [x.txt for x in seq]:
        t = [x.txt for x in seq].index('; touch3')
        l3 = [I('s_cbranch_scc1 K2_t3') for w in range(4)]
        c3 = [I('s_mov_b64 vcc, 1')] + sum(([I('s_cmp_eq_u32 s40, %d' % w), l3[w]] for w in range(4)), []) + [I('K2_t3:'), I('s_mov_b64 vcc, 0')]
        seq = seq[:t] + c3 + seq[t + 1:]
    sizes(seq)
    end0 = 0
    for x in seq:
        if x.kind != 'label': end0 += x.size
        if x is chains[0][0][-1]: break
    out = []; off = 0; nxt = 4096 if NC == 1 else (end0 // STEP + 1) * STEP; pads = []; cold = False
    def pad():
        nonlocal off
        b = I('s_cbranch_vccnz %s' % chains[0][1]); pads.append((off, b)); out.append(I('%s_p%d:' % (tag, len(pads) - 1))); out.append(b); off += 4
    inchain = set(id(x) for c in chains for x in c[0][1:])
    if l3: inchain |= set(id(x) for x in c3[1:])
    n3 = None; S3 = opt.get('s3', 4096)
    for x in seq:
        if x.txt == '; cold': cold = True; print('   hot code bytes', off)
        if x.txt == '; pad':
            if off % 4096 > 64 and NC == 1: pad()
            continue
        if l3 and x is c3[-1]: n3 = (off // S3 + 1) * S3
        if x.kind != 'label':
            if n3 is not None and off >= n3 and not cold:
                p3.append(I('s_cbranch_vccnz K2_t3')); out += [I('K2_q%d:' % (len(p3) - 1)), p3[-1]]; off += 4; n3 += S3
            if off >= nxt and not cold and id(x) not in inchain:
                pad()
                while nxt <= off: nxt += STEP
            off += x.size
        out.append(x)
    pos = {id(x): i for i, x in enumerate(out)}
    split = next((i for i, x in enumerate(out) if x.txt == 'K1_w3:'), None)
    done = next(i for i, x in enumerate(out) if x.txt == 'K1_done:')
    if split is None: split = done
    split2 = pos[id(chains[1][0][0])] if len(chains) > 1 else len(out)
    for c in range(NC):
        my = [i for i, (o, b) in enumerate(pads) if NC == 1 or (o // STEP) % NC == c]
        if opt.get('pmax'): my = my[:opt['pmax']]
        first = [i for i in my if pos[id(pads[i][1])] < split]
        second = [i for i in my if split <= pos[id(pads[i][1])] < min(done, split2)]
        tl = [i for i in my if min(done, split2) <= pos[id(pads[i][1])] < split2]
        third = [i for i in my if split2 <= pos[id(pads[i][1])]]
        order = []
        for k in range(max(len(first), len(second))):
            if k < len(second): order.append(second[k])
            if k < len(first): order.append(first[k])
        order += tl
        for (chain, lab, leaves), order in zip(chains, (order, third)):
            for w in range(4):
                mine = order[w::4]
                if not mine: continue
                br = leaves[c, w]
                br.txt = br.txt.split()[0] + ' %s_p%d' % (tag, mine[0])
                for a, b in zip(mine, mine[1:] + [None]):
                    pads[a][1].txt = 's_cbranch_vccnz ' + ('%s_p%d' % (tag, b) if b is not None else lab)
    for i, b in enumerate(p3):
        if i < 4: l3[i].txt = 's_cbranch_scc1 K2_q%d' % i
        if i + 4 < len(p3): b.txt = 's_cbranch_vccnz K2_q%d' % (i + 4)
    print('   page pads', len(p3))
    print('   pads', len(pads), [o for o, b in pads][:40])
    return out

def gen_k1(opt):
    pro, mid = k1_prologue(opt)
    opt = dict(opt); opt['mid'] = mid
    out = []; infos = []
    pro, _ = fix_hazards(pro)
    sl = str(opt.get('sl', '0,10,12,41')).split(',')
    def stamp(nm):
        if not opt.get('stamps') or nm not in sl: return []
        k = 1 + sl.index(nm)
        return [I('s_memrealtime s[%d:%d]' % (72 + 4 * k, 73 + 4 * k)), I('s_memtime s[%d:%d]' % (74 + 4 * k, 75 + 4 * k)), I('s_waitcnt lgkmcnt(0)')]
    tails = []
    for NQ in ((4,) if opt.get('one') else (4, 3)):
        seq, over, wo = k1_body(NQ, opt)
        seq += [I('s_cmp_lg_u32 s100, 0'), I('s_cbranch_scc1 K1_fb'), WAIT(sum((wo[m] for m in range(12)), []))]
        seq += (k2g if opt.get('k2') == 2 else k2f).tail(opt, wo, stamp, late_stores(opt), [x for x in seq if x.op.startswith('buffer_store')][-1:])
        full, info, nn = finish(pro + seq, 'K1/NQ%d' % NQ, opt.get('verbose'))
        assert full[:len(pro)] == pro
        print('K1 NQ=%d: %d instrs, overflow %d, nops %d, est cycles %d' % (NQ, len(full), over, nn, est_cycles(full)))
        infos.append(info)
        if opt.get('fold', 1): full = fold(full, 'K1q%d' % NQ)
        print('   folded: %d instrs' % len(full))
        d = [x.txt for x in full].index('K1_done:')
        tails.append(full[d:]); full = full[:d]
        t = [x.txt for x in full].index('; touch')
        if opt.get('one'): out += full
        elif NQ == 4:
            common = [x.txt for x in full[:t]]
            out += full[:t + 1] + [I('s_cmp_eq_u32 s40, 3'), I('s_cbranch_scc1 K1_w3')] + full[t + 1:] + [I('s_branch K1_done'), I('K1_w3:'), I('; pad')]
        else:
            assert common == [x.txt for x in full[:t]]
            out += full[t + 1:]
    ce = cross_check(infos)
    for e in ce: print('ERR', e)
    assert not ce
    assert len(tails[0]) == len(tails[-1])
    for x, y in zip(tails[0], tails[-1]):
        if x.txt != y.txt:
            c = [int(re.fullmatch(r's_waitcnt vmcnt\((\d+)\)', z.txt).group(1)) for z in (x, y)]
            print('   tail wait', c); x.txt = 's_waitcnt vmcnt(%d)' % min(c); x.parse()
    out += (k2g if opt.get('k2') == 2 else k2f).patch(tails[0])
    if opt.get('k2') == 2: out += [I('s_branch K2_st' if opt.get('stamps') else 's_endpgm')] + k2g.slow(opt) + [I('K2_st:')]
    out += [I('; cold')]
    if opt.get('stamps'): out += stamp_code('K1_st', 5)
    out += [I('s_endpgm')]
    fb, _, _ = finish(k1_fallback(opt), 'fb')
    out += (k2g if opt.get('k2') == 2 else k2f).rest(opt) + fb
    if opt.get('touch', 1): out = add_touch(out, 'K1', opt)
    return out

def kdesc(name, vgpr, sgpr, accum):
    return '''.section .rodata,"a"
.p2align 6
.amdhsa_kernel %s
  .amdhsa_next_free_vgpr %d
  .amdhsa_next_free_sgpr %d
  .amdhsa_accum_offset %d
  .amdhsa_group_segment_fixed_size 0
  .amdhsa_kernarg_size 64
  .amdhsa_user_sgpr_count 2
  .amdhsa_user_sgpr_kernarg_segment_ptr 1
  .amdhsa_system_sgpr_workgroup_id_x 1
.end_amdhsa_kernel
''' % (name, vgpr, sgpr, accum)

MACROS = {}
def compact(x):
    t = x.txt
    m = re.fullmatch(r'v_mfma_f32_16x16x32_bf16 ([va])\[(\d+):\d+\], ([va])\[(\d+):\d+\], ([va])\[(\d+):\d+\], (.*)', t)
    if m:
        dc, d, ac, a, bc, b, c = m.groups()
        o = lambda cl, n: '%s[\\%s:\\%s+3]' % (cl, n, n)
        if c == '0': suf, cs, extra = 'Z', '0', ''
        elif c == x.dreg: suf, cs, extra = '', o(dc, 'd'), ''
        else: suf, cs, extra = 'C', o(dc, 'c'), ',' + re.match(r'[va]\[(\d+)', c).group(1)
        nm = 'M' + dc + ac + bc + suf
        MACROS[nm] = '.macro %s d,a,b%s\nv_mfma_f32_16x16x32_bf16 %s, %s, %s, %s\n.endm\n' % (nm, ',c' if extra else '', o(dc, 'd'), o(ac, 'a'), o(bc, 'b'), cs)
        return '%s %s,%s,%s%s' % (nm, d, a, b, extra)
    m = re.fullmatch(r'ds_read_(b64_tr_b16|b128) ([va])\[(\d+):\d+\], v(\d+) offset:(\d+)', t)
    if m:
        k, dc, d, a, off = m.groups()
        nm = ('T' if k != 'b128' else 'R') + dc; w = 1 if k != 'b128' else 3
        MACROS[nm] = '.macro %s d,a,o\nds_read_%s %s[\\d:\\d+%d], v\\a offset:\\o\n.endm\n' % (nm, k, dc, w)
        return '%s %s,%s,%s' % (nm, d, a, off)
    m = re.fullmatch(r'v_exp_f32 v(\d+), v(\d+)', t)
    if m and m.group(1) == m.group(2):
        MACROS['EX'] = '.macro EX d\nv_exp_f32 v\\d, v\\d\n.endm\n'
        return 'EX %s' % m.group(1)
    m = re.fullmatch(r'v_cvt_pk_bf16_f32 v(\d+), v(\d+), v(\d+)', t)
    if m:
        MACROS['CV'] = '.macro CV d,a,b\nv_cvt_pk_bf16_f32 v\\d, v\\a, v\\b\n.endm\n'
        return 'CV %s,%s,%s' % m.groups()
    m = re.fullmatch(r's_waitcnt lgkmcnt\((\d+)\)', t)
    if m:
        MACROS['WL'] = '.macro WL n\ns_waitcnt lgkmcnt(\\n)\n.endm\n'
        return 'WL %s' % m.group(1)
    return t.replace(', ', ',')

def emit(kernels, comp=True):
    s = ''
    for name, grid, lds, seq, vg, acc in kernels:
        s += '; @launch grid=(%d,1,1) block=(256,1,1) lds=%d\n' % (grid, lds)
    s += '.amdgcn_target "amdgcn-amd-amdhsa--gfx950"\n'
    body = ''
    for name, grid, lds, seq, vg, acc in kernels:
        body += '.text\n.globl %s\n.p2align 12\n.p2align 8\n.type %s,@function\n%s:\n' % (name, name, name)
        body += '\n'.join((compact(x) if comp else x.txt) for x in seq) + '\n'
        body += kdesc(name, vg, 102, acc)
    return s + ''.join(MACROS.values()) + body

if __name__ == '__main__':
    opt = {}
    outp = sys.argv[1]
    for a in sys.argv[2:]:
        k, v = a.split('=')
        try: v = int(v)
        except ValueError: v = v.replace('_', ' ')
        opt[k] = v
    ks = []
    if opt.get('fixw'): k2f.WSTEP = 0
    if opt.get('k1', 1): ks.append(('standalone__gqa_block_cached__near_ridge_kernel', 256, 163840, gen_k1(opt), 512, 256))
    txt = emit(ks, opt.get('comp', 1))
    open(outp, 'w').write(txt)
    print(outp, len(txt), 'bytes')
```
